```python
import torch

def _softmax(x, axis=-1):
    return torch.softmax(x, dim=axis)
def _gelu(x):
    return torch.nn.functional.gelu(x, approximate="tanh")
def _silu(x):
    return torch.nn.functional.silu(x)
def _sigmoid(x):
    return torch.sigmoid(x)
def _layernorm(x, axis=-1, eps=1e-5):
    m = x.mean(dim=axis, keepdim=True)
    v = x.var(dim=axis, keepdim=True, unbiased=False)
    return (x - m) / torch.sqrt(v + eps)
def _scatter_add(tgt, idx, src, axis=0):
    return tgt.clone().index_add_(axis, idx, src)
def _segment_sum(src, seg, n):
    out = torch.zeros((n,) + src.shape[1:], dtype=src.dtype)
    return out.index_add_(0, seg, src)
def _pad(x, pw):
    flat = tuple(v for pair in reversed(pw) for v in pair)
    return torch.nn.functional.pad(x, flat)

kernel_name = 'sequential_preLN__spectral_fnet__swiglu_ffn__prompt'

def setup_inputs():

    _w = (lambda a: (lambda t: t.to(torch.bfloat16) if t.is_floating_point() else t)(torch.as_tensor(a)))
    def _A_setup():
        B, S, D = 1, 2048, 512
        ns = torch.arange(S)[:, None] * torch.arange(S)[None, :]
        nd = torch.arange(D)[:, None] * torch.arange(D)[None, :]
        Ws_re = torch.cos(-2.0 * torch.pi * ns / S).to(float)
        Ws_im = torch.sin(-2.0 * torch.pi * ns / S).to(float)
        Wd_re = torch.cos(-2.0 * torch.pi * nd / D).to(float)
        Wd_im = torch.sin(-2.0 * torch.pi * nd / D).to(float)
        return {
            "x": _w((lambda *s: torch.randn(*s, dtype=torch.bfloat16) * 0.05)(B, S, D)),
            "dft_seq_re": _w(Ws_re),
            "dft_seq_im": _w(Ws_im),
            "dft_hid_re": _w(Wd_re),
            "dft_hid_im": _w(Wd_im),
        }
    _A_in = _A_setup()

    def _B_setup():
        B, S, D, F = 1, 2048, 512, 1792
        return {
            "x": _w((lambda *s: torch.randn(*s, dtype=torch.bfloat16) * 0.05)(B, S, D)),
            "w_gate": _w((lambda *s: torch.randn(*s, dtype=torch.bfloat16) * 0.2)(D, F)),
            "w_up": _w((lambda *s: torch.randn(*s, dtype=torch.bfloat16) * 0.2)(D, F)),
            "w_down": _w((lambda *s: torch.randn(*s, dtype=torch.bfloat16) * 0.2)(F, D)),
        }
    _B_in = _B_setup()

    return {
        "A_x": _A_in["x"],
        "A_dft_seq_re": _A_in["dft_seq_re"],
        "A_dft_seq_im": _A_in["dft_seq_im"],
        "A_dft_hid_re": _A_in["dft_hid_re"],
        "A_dft_hid_im": _A_in["dft_hid_im"],
        "B_x": _B_in["x"],
        "B_w_gate": _B_in["w_gate"],
        "B_w_up": _B_in["w_up"],
        "B_w_down": _B_in["w_down"],
    }

def reference(A_x, A_dft_seq_re, A_dft_seq_im, A_dft_hid_re, A_dft_hid_im, B_x, B_w_gate, B_w_up, B_w_down):
    def _A_ref(x, dft_seq_re, dft_seq_im, dft_hid_re, dft_hid_im):
        a = torch.einsum("bsd,ed->bse", x, dft_hid_re)
        b = torch.einsum("bsd,ed->bse", x, dft_hid_im)
        y = torch.einsum("ts,bse->bte", dft_seq_re, a) - torch.einsum("ts,bse->bte", dft_seq_im, b)
        return y

    def _B_ref(x, w_gate, w_up, w_down):
        g = _silu(x @ w_gate)
        u = x @ w_up
        return (g * u) @ w_down

    x = A_x
    h = x + _A_ref(_layernorm(x, axis=-1), A_dft_seq_re, A_dft_seq_im, A_dft_hid_re, A_dft_hid_im)
    h2 = h + _B_ref(_layernorm(h, axis=-1), B_w_gate, B_w_up, B_w_down)
    return h2
```

```python
class Asm:
    def __init__(self):
        self.lines = []
        self._uid = 0
    def __call__(self, s):
        for ln in s.strip('\n').split('\n'):
            self.lines.append('    ' + ln.strip() if not ln.strip().endswith(':') else ln.strip())
    def raw(self, s):
        self.lines.append(s)
    def label(self, name):
        self.lines.append(name + ':')
    def uid(self, prefix='L'):
        self._uid += 1
        return '%s_%d' % (prefix, self._uid)
    def text(self):
        return '\n'.join(self.lines) + '\n'

    def kernel_begin(self, name):
        self.raw('.text')
        self.raw('.globl %s' % name)
        self.raw('.p2align 8')
        self.raw('.type %s,@function' % name)
        self.raw('%s:' % name)

    def srd(self, d, base, nbytes):
        self('s_mov_b32 s%d, s%d' % (d, base))
        self('s_and_b32 s%d, s%d, 0xffff' % (d + 1, base + 1))
        self('s_mov_b32 s%d, 0x%x' % (d + 2, nbytes))
        self('s_mov_b32 s%d, 0x20000' % (d + 3))


def descriptor(name, vgpr, accum_offset, sgpr=102):
    return '\n'.join([
        '.amdhsa_kernel %s' % name,
        '  .amdhsa_next_free_vgpr %d' % vgpr,
        '  .amdhsa_next_free_sgpr %d' % sgpr,
        '  .amdhsa_accum_offset %d' % accum_offset,
        '  .amdhsa_group_segment_fixed_size 0',
        '  .amdhsa_kernarg_size 96',
        '  .amdhsa_user_sgpr_count 2',
        '  .amdhsa_user_sgpr_kernarg_segment_ptr 1',
        '  .amdhsa_system_sgpr_workgroup_id_x 1',
        '  .amdhsa_float_denorm_mode_32 3',
        '.end_amdhsa_kernel'])


def vr(a, n=1):
    return 'v%d' % a if n == 1 else 'v[%d:%d]' % (a, a + n - 1)
def ar(a, n=1):
    return 'a%d' % a if n == 1 else 'a[%d:%d]' % (a, a + n - 1)
def sr(a, n=1):
    return 's%d' % a if n == 1 else 's[%d:%d]' % (a, a + n - 1)


def build_file(launches, body, descs, header=''):
    out = []
    if header:
        out.append(header.rstrip('\n'))
    for (k, g, b, lds) in launches:
        out.append('; @launch kernel=%s grid=(%d,1,1) block=(%d,1,1) lds=%d' % (k, g, b, lds))
    out.append('.amdgcn_target "amdgcn-amd-amdhsa--gfx950"')
    out.append(body.rstrip('\n'))
    out.append('.section .rodata,"a"')
    for d in descs:
        out.append('.p2align 6')
        out.append(d)
    return '\n'.join(out) + '\n'
```

```python
import re
TRANS = ('v_exp_f32', 'v_log_f32', 'v_rcp_f32', 'v_rsq_f32', 'v_sqrt_f32', 'v_sin_f32', 'v_cos_f32')
REG = re.compile(r'^-?\|?(?:abs\()?([vas])(?:(\d+)|\[(\d+):(\d+)\])\)?\|?$')

def regs(op):
    op = op.strip()
    if op in ('vcc', 'vcc_lo', 'vcc_hi'): return {('s', 'vcc')}
    if op in ('exec', 'exec_lo', 'exec_hi'): return {('s', 'exec')}
    if op == 'm0': return {('s', 'm0')}
    m = REG.match(op)
    if not m: return set()
    k = m.group(1)
    lo, hi = (int(m.group(2)),) * 2 if m.group(2) else (int(m.group(3)), int(m.group(4)))
    return {(k, i) for i in range(lo, hi + 1)}

class I:
    def __init__(s, line):
        s.line = line
        t = line.split(';')[0].strip()
        s.label = t[:-1] if t.endswith(':') else None
        s.kind = None; s.w = set(); s.r = set(); s.slots = 0; s.target = None
        if not t or s.label or t.startswith('.'): return
        p = t.split(None, 1)
        s.op = re.sub(r'_(e32|e64|dpp|sdwa)$', '', p[0]); s.dpp = p[0].endswith('_dpp')
        rest = p[1] if len(p) > 1 else ''
        ops = [o.strip() for o in rest.split(',')]
        if ops:
            last = ops[-1].split()
            mods = last[1:] if last else []
            ops[-1] = last[0] if last else ''
        s.mods = mods; s.ops = ops; s.slots = 1
        op = s.op
        R = [regs(o) for o in ops]
        if op == 's_nop': s.kind = 'nop'; s.slots = int(ops[0], 0) + 1
        elif op.startswith('v_mfma'):
            s.kind = 'mfma'; s.w = R[0]; s.a = R[1] | R[2]; s.c = R[3]; s.r = s.a | s.c
            s.passes = 8 if '32x32' in op else 4
        elif op.startswith('v_'):
            s.kind = 'valu'
            s.w = set(R[0]); s.r = set().union(*R[1:]) if len(R) > 1 else set()
            if op.startswith('v_permlane') and 'swap' in op: s.w = R[0] | R[1]; s.r = R[0] | R[1]
            if op in ('v_fmac_f32', 'v_dot2c_f32_bf16', 'v_writelane_b32') or s.dpp: s.r |= R[0]
            if op in ('v_add_co_u32', 'v_sub_co_u32', 'v_addc_co_u32'): s.w |= R[1]; s.r = set().union(*R[2:])
        elif op.startswith('ds_'):
            s.kind = 'ds'
            if op.startswith('ds_read') or op.startswith('ds_bpermute') or op.startswith('ds_swizzle') or op.startswith('ds_permute'):
                s.w = R[0]; s.r = set().union(*R[1:])
            else: s.r = set().union(*R)
        elif op.startswith('buffer_'):
            s.kind = 'vmem'; s.lds = 'lds' in mods
            if op in ('buffer_inv', 'buffer_wbl2'): pass
            elif s.lds: s.r = set().union(*R) | {('s', 'm0')}
            elif op.startswith('buffer_load'): s.w = R[0]; s.r = set().union(*R[1:])
            else:
                s.r = set().union(*R); s.data = R[0]
                if 'atomic' in op and 'sc0' in mods: s.w = R[0]
        elif op.startswith('s_cbranch') or op == 's_branch': s.kind = 'br'; s.target = ops[0]
        elif op.startswith('s_'):
            s.kind = 'salu'
            if op in ('s_waitcnt', 's_barrier', 's_endpgm', 's_setprio', 's_sleep'): pass
            elif op.startswith('s_cmp') or op.startswith('s_bitcmp'): s.r = set().union(*R)
            else:
                s.w = set(R[0]); s.r = set().union(*R[1:]) if len(R) > 1 else set()
                if 'saveexec' in op: s.w |= {('s', 'exec')}
        else:
            raise ValueError('unparsed: ' + line)

def vonly(x): return {r for r in x if r[0] != 's'}
def sonly(x): return {r for r in x if r[0] == 's'}

def need(p, c):
    n = 0
    if p.kind == 'valu':
        pw = vonly(p.w); ps = sonly(p.w)
        isdot = p.op.startswith('v_dot')
        if c.kind == 'mfma' and pw & c.r: n = max(n, 3 if isdot else 2)
        if c.kind == 'valu':
            if p.op in TRANS and c.op not in TRANS and pw & c.r: n = max(n, 1)
            if c.op in ('v_readfirstlane_b32', 'v_readlane_b32') and pw & c.r: n = max(n, 1)
            if (c.op.startswith('v_permlane') or c.dpp) and pw & c.r: n = max(n, 2)
            if ps & c.r: n = max(n, 4 if c.op in ('v_readlane_b32', 'v_writelane_b32') else 2)
            if isdot and pw & (c.r | c.w):
                same_c = c.op == p.op and not (pw & (regs(c.ops[1]) | regs(c.ops[2])))
                if not same_c: n = max(n, 3)
        if c.kind in ('vmem', 'ds') and isdot and pw & c.r: n = max(n, 3)
        if c.kind == 'vmem' and ps & c.r: n = max(n, 5)
        if c.kind in ('vmem', 'ds') and p.op in TRANS and pw & c.r: n = max(n, 1)
    if p.kind == 'mfma':
        big = 12 if p.passes == 8 else 8
        if c.kind in ('valu', 'vmem', 'ds') and p.w & (c.r | c.w): n = max(n, big)
        if c.kind == 'mfma':
            if p.w & c.a: n = max(n, big)
            if p.w & c.c and not (p.w == c.c and p.passes == c.passes): n = max(n, big - 2)
        if c.kind == 'valu' and p.c & c.w: n = max(n, 7 if p.passes == 8 else 3)
    if p.kind == 'salu' and ('s', 'm0') in p.w and c.kind == 'vmem' and c.lds: n = max(n, 1)
    if p.kind == 'vmem' and hasattr(p, 'data') and ('x4' in p.op or 'x3' in p.op):
        if p.data & c.w: n = max(n, 2 if c.kind == 'valu' else 1)
    return n

def deficit(hist, c):
    d = 0; dist = 0
    for p in reversed(hist):
        if dist >= 20: break
        d = max(d, need(p, c) - dist)
        dist += p.slots
    return d

def fix(text, verbose=False):
    out = []; hist = []; total = 0
    for ln in text.split('\n'):
        i = I(ln)
        if i.kind is None:
            out.append(i); continue
        d = deficit(hist, i)
        if d > 0:
            total += d
            if verbose: print('pad %d before: %s' % (d, ln.strip()))
            n = I('    s_nop %d' % (d - 1)); out.append(n); hist.append(n)
        out.append(i); hist.append(i)
        if i.op in ('s_branch', 's_endpgm'): hist = []
    pos = {x.label: k for k, x in enumerate(out) if x.label}
    for k, x in enumerate(out):
        if x.kind != 'br': continue
        h = []
        for y in out[max(0, k - 40):k + 1]:
            if y.kind is None: continue
            h.append(y)
            if y is not x and y.op in ('s_branch', 's_endpgm'): h = []
        n0 = 0
        for y in out[pos[x.target]:]:
            if y.kind is None: continue
            if deficit(h, y) > 0:
                raise RuntimeError('hazard across branch %s -> %s' % (x.line.strip(), y.line.strip()))
            h.append(y); n0 += y.slots
            if n0 > 20 or y.op in ('s_branch', 's_endpgm'): break
    return '\n'.join(x.line for x in out), total
```

```python
import sys, struct
from asmlib import *
import hazard

WS_BYTES = 268435456
Z_OFF, XP_OFF, WP_OFF = 0, 1 << 20, 3 << 20
ZC_OFF, MX_OFF = 7 << 20, (7 << 20) + 4096
ACT_OFF, HB_OFF = 8 << 20, 16 << 20
STAMP_OFF = 128 << 20
OOB = 0x20000000

def fl(x):
    return '0x%08x' % struct.unpack('<I', struct.pack('<f', x))[0]

class VM:
    def __init__(self, a): self.a = a; self.q = []
    def issue(self, tag): self.q.append(tag)
    def wait(self, tag):
        idx = [i for i, t in enumerate(self.q) if t == tag]
        if not idx: return
        n = len(self.q) - 1 - idx[-1]
        assert n <= 63
        self.a('s_waitcnt vmcnt(%d)' % n)
        self.q = self.q[idx[-1] + 1:]

class LG(VM):
    def wait(self, tag):
        idx = [i for i, t in enumerate(self.q) if t == tag]
        if not idx: return
        n = len(self.q) - 1 - idx[-1]
        self.a('s_waitcnt lgkmcnt(%d)' % min(n, 15))
        self.q = self.q[idx[-1] + 1:] if n <= 15 else self.q[-15:]

class Stamps:
    def __init__(self, a, on, slot): self.a = a; self.on = on; self.slot = slot; self.n = 0
    def mark(self):
        if self.on:
            self.a('s_memrealtime s[%d:%d]' % (64 + 2 * self.n, 65 + 2 * self.n)); self.n += 1
    def flush(self, srd, wave_s, n=None):
        if not self.on: return
        a = self.a
        a('s_waitcnt vmcnt(0)')
        self.mark()
        a('s_waitcnt lgkmcnt(0)')
        a('s_lshl_b32 s62, s2, 3')
        a('s_add_u32 s62, s62, s%d' % wave_s)
        a('s_lshl_b32 s62, s62, 6')
        a('s_add_u32 s62, s62, %d' % (STAMP_OFF + self.slot * 131072))
        a('s_mov_b64 exec, 1')
        a('v_mov_b32 v1, 0')
        for i in range(self.n):
            a('v_mov_b32 v2, s%d' % (64 + 2 * i))
            a('buffer_store_dword v2, v1, %s, s62 offen offset:%d' % (sr(srd, 4), 4 * i))

def gen_k1(name, stamps):
    a = Asm()
    XROW = 1056
    L_WST = 64 * XROW
    L_EX = L_WST + 16384
    L_R = L_EX + 8192
    L_PART = L_R + 256
    LDS = L_PART + 128
    SX, SG, SU, SW = 8, 12, 16, 20
    sW8, sP, sJ, sPS, sT0, sT1, sT2, sLAM, sPHI = 3, 24, 25, 26, 27, 28, 29, 30, 31
    a.kernel_begin(name)
    st = Stamps(a, stamps, 0)
    st.mark()
    a('s_load_dwordx2 s[4:5], s[0:1], 0')
    a('s_load_dwordx4 s[32:35], s[0:1], 48')
    a('s_load_dwordx2 s[6:7], s[0:1], 88')
    a('s_cmp_ge_u32 s2, 256')
    a('s_cbranch_scc1 %s_end' % name)
    a('v_lshrrev_b32 v2, 6, v0')
    a('v_and_b32 v0, 63, v0')
    a('v_readfirstlane_b32 s%d, v2' % sW8)
    a('v_lshlrev_b32 v1, 4, v0')
    a('s_and_b32 s%d, s2, 31' % sP)
    a('s_lshr_b32 s%d, s2, 5' % sJ)
    a('s_sub_u32 s%d, 64, s%d' % (sT0, sP))
    a('s_cmp_eq_u32 s%d, 0' % sP)
    a('s_cselect_b32 s36, 32, s%d' % sT0)
    a('s_cselect_b32 s%d, 0, 1.0' % sLAM)
    a('s_cselect_b32 s37, 0, %s' % fl(-0.25))
    a('s_cmp_ge_u32 s%d, 4' % sW8)
    a('s_cselect_b32 s%d, s36, s%d' % (sT0, sP))
    a('s_and_b32 s%d, s%d, 3' % (sT1, sW8))
    a('s_lshl_b32 s%d, s%d, 9' % (sT1, sT1))
    a('s_add_u32 s%d, s%d, s%d' % (sT0, sT0, sT1))
    a('s_lshl_b32 s%d, s%d, 10' % (sT0, sT0))
    a('s_mul_i32 s%d, s%d, %d' % (sT1, sW8, 8 * XROW))
    a('s_waitcnt lgkmcnt(0)')
    a.srd(SX, 4, 2048 * 1024)
    for n in range(8):
        a('s_mov_b32 m0, s%d' % sT1)
        a('s_add_u32 s%d, s%d, %d' % (sT1, sT1, XROW))
        a('buffer_load_dwordx4 v1, %s, s%d offen lds' % (sr(SX, 4), sT0))
        a('s_add_u32 s%d, s%d, 65536' % (sT0, sT0))
    a.srd(SW, 6, WS_BYTES)
    a('v_and_b32 v2, 15, v0')
    a('v_lshrrev_b32 v3, 4, v0')
    a('s_bitcmp1_b32 s%d, 1' % sW8)
    a('s_cselect_b32 s%d, s36, s%d' % (sPS, sP))
    a('s_cselect_b32 s%d, s37, 0' % sPHI)
    a('s_cmp_ge_u32 s%d, 4' % sW8)
    a('s_cbranch_scc1 %s_helper' % name)

    WA, WB = 128, 192
    TC, TS, TN = 104, 112, 120
    ACC = 88
    XF = 32
    a('s_and_b32 s%d, s%d, 1' % (sT0, sW8))
    a('s_lshl_b32 s%d, s%d, 4' % (sT0, sT0))
    a('s_lshl_b32 s%d, s%d, 5' % (sT1, sJ))
    a('s_add_u32 s%d, s%d, s%d' % (sT0, sT0, sT1))
    a('v_add_u32 v4, s%d, v2' % sT0)
    a('v_mov_b32 v5, 0x100')
    a('v_cmp_eq_u32 vcc, 0, v4')
    a('v_cndmask_b32 v4, v4, v5, vcc')
    a('v_cvt_f32_u32 v5, v4')
    a('v_mul_f32 v5, %s, v5' % fl(1 / 512))
    a('v_cvt_f32_u32 v6, v3')
    a('v_mul_f32 v6, 0x41000000, v6')
    a('v_mul_f32 v6, v6, v5')
    for ks in range(4):
        for n in range(4):
            a('v_fmamk_f32 v8, v5, %s, v6' % fl(32 * ks + 2 * n))
            a('v_fmamk_f32 v9, v5, %s, v6' % fl(32 * ks + 2 * n + 1))
            a('v_cos_f32 v10, v8')
            a('v_cos_f32 v11, v9')
            a('v_sin_f32_e64 v12, -v8')
            a('v_sin_f32_e64 v13, -v9')
            a('v_cvt_pk_bf16_f32 v%d, v10, v11' % (WA + 4 * ks + n))
            a('v_cvt_pk_bf16_f32 v%d, v12, v13' % (WB + 4 * ks + n))
    a('v_and_b32 v8, 1, v4')
    a('v_cmp_eq_u32 vcc, 1, v8')
    a('s_mov_b32 s%d, 0x80008000' % sT0)
    a('v_mul_lo_u32 v9, v8, s%d' % sT0)
    a('v_bfe_u32 v10, v4, 1, 1')
    a('v_mul_lo_u32 v10, v10, s%d' % sT0)
    a('v_xor_b32 v11, v9, v10')
    for i in range(16):
        a('v_cndmask_b32 v12, v%d, v%d, vcc' % (WA + i, WB + i))
        a('v_cndmask_b32 v13, v%d, v%d, vcc' % (WB + i, WA + i))
        a('v_xor_b32 v%d, v9, v%d' % (WA + 32 + i, WA + i))
        a('v_xor_b32 v%d, v9, v%d' % (WB + 32 + i, WB + i))
        a('v_xor_b32 v%d, v10, v12' % (WA + 16 + i))
        a('v_xor_b32 v%d, v11, v13' % (WB + 16 + i))
        a('v_xor_b32 v%d, v11, v12' % (WA + 48 + i))
        a('v_xor_b32 v%d, v10, v13' % (WB + 48 + i))
    a('v_lshlrev_b32 v8, 8, v3')
    a('v_add_u32 v8, s%d, v8' % sPS)
    a('v_cvt_f32_u32 v8, v8')
    a('v_cvt_f32_u32 v9, v2')
    a('v_mov_b32 v16, s%d' % sPHI)
    for tb in range(2):
        a('v_add_f32 v10, %s, v9' % fl(16.0 * tb))
        a('v_mul_f32 v10, %s, v10' % fl(1 / 2048))
        a('v_fma_f32 v11, v10, v8, v16')
        for n in range(4):
            s1 = [(0, 1), (2, 3), (16, 17), (18, 19)][n]
            a('v_fmamk_f32 v12, v10, %s, v11' % fl(64.0 * s1[0]))
            a('v_fmamk_f32 v13, v10, %s, v11' % fl(64.0 * s1[1]))
            a('v_cos_f32 v14, v12')
            a('v_cos_f32 v15, v13')
            a('v_sin_f32 v12, v12')
            a('v_sin_f32 v13, v13')
            a('v_cvt_pk_f16_f32 v%d, v14, v15' % (TC + 4 * tb + n))
            a('v_cvt_pk_f16_f32 v%d, v12, v13' % (TS + 4 * tb + n))
            a('v_cvt_pk_f16_f32 v%d, -v12, -v13' % (TN + 4 * tb + n))
    a('s_lshr_b32 s%d, s%d, 1' % (sT0, sW8))
    a('s_mul_i32 s%d, s%d, %d' % (sT1, sT0, 32 * XROW))
    a('v_mul_u32_u24 v8, %d, v2' % XROW)
    a('v_lshl_add_u32 v8, v3, 4, v8')
    a('v_add_u32 v8, s%d, v8' % sT1)
    a('s_lshl_b32 s%d, s%d, 7' % (sT1, sT0))
    a('s_add_u32 s%d, s%d, %d' % (sT1, sT1, L_R))
    a('v_lshl_add_u32 v9, v3, 4, s%d' % sT1)
    a('s_lshl_b32 s%d, s%d, 11' % (sT1, sW8))
    a('s_add_u32 s%d, s%d, %d' % (sT2, sT1, L_EX))
    a('v_add_u32 v10, s%d, v1' % sT2)
    a('s_xor_b32 s%d, s%d, 4096' % (sT1, sT1))
    a('s_add_u32 s%d, s%d, %d' % (sT2, sT1, L_EX))
    a('v_add_u32 v11, s%d, v1' % sT2)
    a('v_lshlrev_b32 v12, 15, v2')
    a('v_lshl_add_u32 v12, v3, 3, v12')
    a('s_lshl_b32 s%d, s%d, 12' % (sT1, sJ))
    a('s_lshl_b32 s%d, s%d, 7' % (sT2, sP))
    a('s_add_u32 s%d, s%d, s%d' % (sT1, sT1, sT2))
    a('s_lshl_b32 s%d, s%d, 5' % (sT2, sW8))
    a('s_add_u32 s38, s%d, s%d' % (sT1, sT2))
    a('s_add_u32 s38, s38, %d' % Z_OFF)
    a('s_add_u32 s39, s38, %d' % (16 * 32768))
    st.mark()
    a('s_waitcnt vmcnt(0)')
    a('s_barrier')
    st.mark()
    lg = LG(a)
    if stamps: a('s_waitcnt lgkmcnt(0)')
    PD = 7
    def rd(ks):
        for rb in range(2):
            a('ds_read_b128 %s, v8 offset:%d' % (vr(XF + 8 * (ks % PD) + 4 * rb, 4), rb * 16 * XROW + ks * 64))
            lg.issue(('x', ks, rb))
    for ks in range(PD - 1): rd(ks)
    for ks in range(16):
        if ks + PD - 1 < 16: rd(ks + PD - 1)
        for rb in range(2):
            lg.wait(('x', ks, rb))
            for part, W in enumerate((WA, WB)):
                acc = vr(ACC + 8 * part + 4 * rb, 4)
                a('v_mfma_f32_16x16x32_bf16 %s, %s, %s, %s' % (acc, vr(XF + 8 * (ks % PD) + 4 * rb, 4), vr(W + 4 * ks, 4), acc if ks else '0'))
    a('s_barrier')
    a('ds_read_b128 v[16:19], v9')
    a('ds_read_b128 v[20:23], v9 offset:64')
    a('s_waitcnt lgkmcnt(0)')
    for part in range(2):
        for i in range(8):
            a('v_mul_f32 v%d, v%d, v%d' % (ACC + 8 * part + i, ACC + 8 * part + i, 16 + i))
        for n in range(4):
            a('v_cvt_pk_f16_f32 v%d, v%d, v%d' % (24 + 4 * part + n, ACC + 8 * part + 2 * n, ACC + 8 * part + 2 * n + 1))
    KP, SD = 40, 32
    for tb in range(2):
        a('v_mfma_f32_16x16x32_f16 %s, v[24:27], %s, 0' % (vr(SD + 4 * tb, 4), vr(TN + 4 * tb, 4)))
    for tb in range(2):
        a('v_mfma_f32_16x16x32_f16 %s, v[28:31], %s, %s' % (vr(SD + 4 * tb, 4), vr(TC + 4 * tb, 4), vr(SD + 4 * tb, 4)))
    for tb in range(2):
        a('v_mfma_f32_16x16x32_f16 %s, v[24:27], %s, 0' % (vr(KP + 4 * tb, 4), vr(TC + 4 * tb, 4)))
    for tb in range(2):
        a('v_mfma_f32_16x16x32_f16 %s, v[28:31], %s, %s' % (vr(KP + 4 * tb, 4), vr(TS + 4 * tb, 4), vr(KP + 4 * tb, 4)))
    a('ds_write_b128 v10, %s' % vr(SD, 4))
    a('ds_write_b128 v10, %s offset:1024' % vr(SD + 4, 4))
    a('s_waitcnt lgkmcnt(0)')
    a('s_barrier')
    a('ds_read_b128 v[48:51], v11')
    a('ds_read_b128 v[52:55], v11 offset:1024')
    a('s_waitcnt lgkmcnt(0)')
    for i in range(8):
        a('v_fma_f32 v%d, v%d, s%d, v%d' % (KP + i, 48 + i, sLAM, KP + i))
    for n in range(4):
        a('v_cvt_pk_f16_f32 v%d, v%d, v%d' % (48 + n, KP + 2 * n, KP + 2 * n + 1))
    a('buffer_store_dwordx2 v[48:49], v12, %s, s38 offen' % sr(SW, 4))
    a('buffer_store_dwordx2 v[50:51], v12, %s, s39 offen' % sr(SW, 4))
    st.mark()
    n_main = st.n
    st.flush(SW, sW8)
    a('s_endpgm')

    a.label('%s_helper' % name)
    st.n = 1
    vm = VM(a)
    for _ in range(8): vm.issue('x')
    sHW, sKS, sD0, sSG, sWO = 40, 41, 42, 43, 44
    a.srd(SG, 32, 512 * 3584)
    a.srd(SU, 34, 512 * 3584)
    a('s_and_b32 s%d, s%d, 3' % (sHW, sW8))
    a('s_and_b32 s%d, s2, 7' % sT0)
    a('s_lshl_b32 s%d, s%d, 2' % (sT0, sT0))
    a('s_add_u32 s%d, s%d, s%d' % (sKS, sT0, sHW))
    a('s_lshl_b32 s%d, s%d, 4' % (sT0, sKS))
    a('s_sub_u32 s%d, 768, s%d' % (sT1, sT0))
    a('s_cmp_ge_u32 s%d, 16' % sKS)
    a('s_cselect_b32 s%d, s%d, s%d' % (sD0, sT1, sT0))
    a('s_cselect_b32 s%d, -1, 1' % sSG)
    a('s_lshr_b32 s%d, s2, 3' % sT0)
    a('s_lshl_b32 s%d, s%d, 7' % (sT1, sT0))
    a('s_lshl_b32 s%d, s%d, 17' % (sWO, sT0))
    a('s_lshl_b32 s%d, s%d, 10' % (sT2, sKS))
    a('s_add_u32 s%d, s%d, s%d' % (sWO, sWO, sT2))
    a('s_add_u32 s%d, s%d, %d' % (sWO, sWO, WP_OFF))
    a('s_cmp_ge_u32 s2, 224')
    a('s_cselect_b32 s%d, %d, s%d' % (sT1, OOB, sT1))
    a('s_cselect_b32 s%d, %d, s%d' % (sWO, OOB, sWO))
    a('v_lshrrev_b32 v4, 3, v0')
    a('v_and_b32 v5, 7, v0')
    a('v_lshlrev_b32 v5, 4, v5')
    a('v_mov_b32 v6, s%d' % sD0)
    a('v_mad_i32_i24 v6, v4, s%d, v6' % sSG)
    a('s_lshl_b32 s%d, s%d, 3' % (sT2, sSG))
    a('v_add_u32 v7, s%d, v6' % sT2)
    a('v_mov_b32 v8, 0x100')
    a('v_cmp_eq_u32 vcc, 0x200, v6')
    a('v_cndmask_b32 v6, v6, v8, vcc')
    a('s_movk_i32 s%d, 3584' % sT2)
    a('v_mad_u32_u24 v6, v6, s%d, v5' % sT2)
    a('v_mad_u32_u24 v7, v7, s%d, v5' % sT2)
    a('s_lshl_b32 s%d, s%d, 12' % (sT2, sHW))
    a('s_add_u32 s45, s%d, %d' % (sT2, L_WST))
    for mat, S_ in enumerate((SG, SU)):
        for n in range(2):
            a('s_add_u32 m0, s45, %d' % (mat * 2048 + n * 1024))
            a('buffer_load_dwordx4 v%d, %s, s%d offen lds' % (6 + n, sr(S_, 4), sT1))
            vm.issue('w')
    a('s_and_b32 s%d, s%d, 1' % (sT0, sHW))
    a('s_lshl_b32 s%d, s%d, 10' % (sT0, sT0))
    a('s_add_u32 s%d, s%d, s%d' % (sT0, sT0, sPS))
    a('v_lshl_add_u32 v8, v2, 6, s%d' % sT0)
    a('s_lshl_b32 s%d, s%d, 2' % (sT0, sJ))
    a('v_add_u32 v9, s%d, v3' % sT0)
    a('v_mul_u32_u24 v8, v8, v9')
    a('v_cvt_f32_u32 v8, v8')
    a('v_mov_b32 v9, s%d' % sPHI)
    a('v_fmamk_f32 v8, v8, %s, v9' % fl(1 / 2048))
    a('v_cos_f32 v10, v8')
    a('v_sin_f32 v11, v8')
    a('v_mul_f32 v11, s%d, v11' % sLAM)
    a('s_mul_i32 s%d, s%d, %d' % (sT0, sHW, 16 * XROW))
    a('v_mul_u32_u24 v12, %d, v2' % XROW)
    a('v_add_u32 v13, s%d, v12' % sT0)
    a('v_lshl_add_u32 v12, v3, 4, v13')
    a('v_mov_b32 v14, 0')
    a('v_mov_b32 v15, 0')
    a('v_mov_b32 v16, 0')
    a('v_mov_b32 v17, 0')
    a('v_mov_b32 v18, 0x3f803f80')
    st.mark()
    vm.wait('x')
    a('s_barrier')
    st.mark()
    if stamps: a('s_waitcnt lgkmcnt(0)')
    lg = LG(a)
    a('ds_read_b32 v19, v13'); lg.issue('x0')
    for ks in range(14):
        a('ds_read_b128 %s, v12 offset:%d' % (vr(64 + 4 * ks, 4), ks * 64)); lg.issue(ks)
    for ks in range(16):
        lg.wait(ks)
        if ks + 14 < 16:
            a('ds_read_b128 %s, v12 offset:%d' % (vr(64 + 4 * (ks + 14), 4), (ks + 14) * 64)); lg.issue(ks + 14)
        for n in range(4):
            r = 64 + 4 * ks + n
            a('v_dot2c_f32_bf16 v%d, v%d, v%d' % (14 + (n & 1), r, r))
            a('v_dot2c_f32_bf16 v%d, v%d, v18' % (16 + (n & 1), r))
    a('v_add_f32 v14, v14, v15')
    a('v_add_f32 v16, v16, v17')
    for op in ('v_permlane32_swap_b32', 'v_permlane16_swap_b32'):
        a('v_mov_b32 v15, v14')
        a('v_mov_b32 v17, v16')
        a('%s v14, v15' % op)
        a('%s v16, v17' % op)
        a('v_add_f32 v14, v14, v15')
        a('v_add_f32 v16, v16, v17')
    a('v_mul_f32 v16, %s, v16' % fl(-1 / 512))
    a('v_mul_f32 v14, %s, v14' % fl(1 / 512))
    a('v_fma_f32 v14, -v16, v16, v14')
    a('v_max_f32 v14, 0, v14')
    a('v_add_f32 v14, %s, v14' % fl(1e-5))
    a('v_rsq_f32 v14, v14')
    a('v_lshlrev_b32 v19, 16, v19')
    a('v_add_f32 v19, v19, v16')
    a('s_lshl_b32 s%d, s%d, 6' % (sT0, sHW))
    a('s_add_u32 s%d, s%d, %d' % (sT0, sT0, L_R))
    a('v_lshl_add_u32 v20, v2, 2, s%d' % sT0)
    a('ds_write_b32 v20, v14')
    a('v_mul_f32 v19, v19, v14')
    a('v_mul_f32 v10, v10, v19')
    a('v_mul_f32 v11, v11, v19')
    for rot in (8, 4, 2, 1):
        a('v_add_f32_dpp v10, v10, v10 row_ror:%d row_mask:0xf bank_mask:0xf' % rot)
        a('v_add_f32_dpp v11, v11, v11 row_ror:%d row_mask:0xf bank_mask:0xf' % rot)
    a('v_sub_f32 v10, 0, v10')
    a('s_lshl_b32 s%d, s%d, 5' % (sT0, sHW))
    a('s_lshr_b32 s%d, s%d, 1' % (sT1, sHW))
    a('s_lshl_b32 s%d, s%d, 2' % (sT1, sT1))
    a('s_add_u32 s%d, s%d, s%d' % (sT0, sT0, sT1))
    a('s_add_u32 s%d, s%d, %d' % (sT0, sT0, L_PART))
    a('v_lshl_add_u32 v20, v3, 3, s%d' % sT0)
    a('v_xor_b32 v21, 4, v20')
    a('ds_write_b32 v20, v10')
    a('ds_write_b32 v21, v11')
    a('s_waitcnt lgkmcnt(0)')
    a('s_barrier')
    st.mark()
    if stamps: a('s_waitcnt lgkmcnt(0)')
    a('v_and_b32 v22, 31, v0')
    a('v_lshrrev_b32 v23, 5, v0')
    a('s_lshr_b32 s%d, s%d, 1' % (sT0, sHW))
    a('s_mul_i32 s%d, s%d, %d' % (sT0, sT0, 32 * XROW))
    a('v_mul_u32_u24 v22, %d, v22' % XROW)
    a('v_add_u32 v22, s%d, v22' % sT0)
    a('s_and_b32 s%d, s%d, 1' % (sT0, sHW))
    a('s_lshl_b32 s%d, s%d, 1' % (sT0, sT0))
    a('s_lshl_b32 s%d, s%d, 2' % (sT1, sJ))
    a('s_add_u32 s%d, s%d, s%d' % (sT0, sT0, sT1))
    a('s_lshl_b32 s%d, s%d, 5' % (sT1, sPS))
    a('s_add_u32 s%d, s%d, s%d' % (sT1, sT1, sT0))
    a('s_lshl_b32 s%d, s%d, 10' % (sT1, sT1))
    a('s_add_u32 s46, s%d, %d' % (sT1, XP_OFF))
    a('s_lshl_b32 s%d, s%d, 5' % (sT0, sT0))
    a('v_lshl_add_u32 v23, v23, 4, s%d' % sT0)
    a('s_cmp_ge_u32 s%d, 4' % sJ)
    a('s_cbranch_scc1 %s_xr' % name)
    a('v_add_u32 v24, v22, v23')
    a('ds_read_b128 v[32:35], v24')
    a('ds_read_b128 v[36:39], v24 offset:32')
    a('s_waitcnt lgkmcnt(0)')
    a('s_branch %s_xs' % name)
    a.label('%s_xr' % name)
    a('v_sub_u32 v23, 1536, v23')
    a('v_add_u32 v24, v22, v23')
    a('v_subrev_u32 v24, 48, v24')
    a('v_mov_b32 v25, 0x200')
    a('v_cmp_eq_u32 vcc, 0x400, v23')
    a('v_cndmask_b32 v25, v23, v25, vcc')
    a('v_add_u32 v25, v22, v25')
    a('ds_read_b128 v[40:43], v24 offset:32')
    a('ds_read_b32 v44, v25')
    a('ds_read_b128 v[48:51], v24')
    a('ds_read_b32 v52, v24 offset:16')
    a('s_mov_b32 s%d, 0xffff' % sT0)
    a('s_waitcnt lgkmcnt(0)')
    for f in range(2):
        for n in range(4):
            a('v_bfi_b32 v%d, s%d, v%d, v%d' % (32 + 4 * f + n, sT0, 40 + 8 * f + 4 - n, 40 + 8 * f + 3 - n))
    a.label('%s_xs' % name)
    a('buffer_store_dwordx4 v[32:35], v1, %s, s46 offen' % sr(SW, 4)); vm.issue('s')
    a('buffer_store_dwordx4 v[36:39], v1, %s, s46 offen offset:1024' % sr(SW, 4)); vm.issue('s')
    a('s_barrier')
    a('s_lshl_b32 s%d, s%d, 7' % (sT0, sPS))
    a('s_and_b32 s%d, s%d, 1' % (sT1, sHW))
    a('s_lshl_b32 s%d, s%d, 6' % (sT1, sT1))
    a('s_add_u32 s%d, s%d, s%d' % (sT0, sT0, sT1))
    a('s_add_u32 s%d, s%d, %d' % (sT0, sT0, MX_OFF))
    a('s_cmp_eq_u32 s%d, 0' % sJ)
    a('s_cselect_b32 s%d, s%d, %d' % (sT0, sT0, OOB))
    a('v_lshlrev_b32 v26, 2, v2')
    a('v_and_b32 v27, 3, v0')
    a('v_lshlrev_b32 v28, 3, v27')
    a('v_add_u32 v28, %d, v28' % L_PART)
    for w in range(4):
        a('ds_read_b64 %s, v28 offset:%d' % (vr(40 + 2 * w, 2), 32 * w))
    a('s_mov_b64 exec, 0xffff')
    a('buffer_store_dword v16, v26, %s, s%d offen' % (sr(SW, 4), sT0)); vm.issue('s')
    a('s_mov_b64 exec, -1')
    a('s_lshl_b32 s%d, s%d, 9' % (sT0, sJ))
    a('s_lshl_b32 s%d, s%d, 2' % (sT1, sP))
    a('s_add_u32 s%d, s%d, s%d' % (sT0, sT0, sT1))
    a('s_add_u32 s%d, s%d, %d' % (sT0, sT0, ZC_OFF))
    a('s_cmp_eq_u32 s%d, 0' % sHW)
    a('s_cselect_b32 s%d, s%d, %d' % (sT0, sT0, OOB))
    a('v_lshlrev_b32 v27, 7, v27')
    a('s_waitcnt lgkmcnt(0)')
    a('v_add_f32 v40, v40, v42')
    a('v_add_f32 v41, v41, v43')
    a('v_add_f32 v44, v44, v46')
    a('v_add_f32 v45, v45, v47')
    a('v_add_f32 v40, v40, v44')
    a('v_add_f32 v41, v41, v45')
    a('v_cvt_pk_f16_f32 v40, v40, v41')
    a('s_mov_b64 exec, 0xf')
    a('buffer_store_dword v40, v27, %s, s%d offen' % (sr(SW, 4), sT0)); vm.issue('s')
    a('s_mov_b64 exec, -1')
    a('v_lshrrev_b32 v22, 5, v0')
    a('v_bfe_u32 v23, v0, 4, 1')
    a('v_bfe_u32 v24, v0, 2, 2')
    a('v_and_b32 v25, 3, v0')
    a('v_lshlrev_b32 v22, 9, v22')
    a('v_lshl_add_u32 v22, v23, 11, v22')
    a('v_lshl_add_u32 v22, v24, 7, v22')
    a('v_lshl_add_u32 v22, v25, 3, v22')
    a('v_add_u32 v22, s45, v22')
    vm.wait('w')
    st.mark()
    if stamps: a('s_waitcnt lgkmcnt(0)')
    for f in range(4):
        for n in range(2):
            a('ds_read_b64_tr_b16 %s, v22 offset:%d' % (vr(64 + 4 * f + 2 * n, 2), n * 1024 + f * 32))
    for f in range(4):
        a('s_waitcnt lgkmcnt(%d)' % (6 - 2 * f))
        a('buffer_store_dwordx4 %s, v1, %s, s%d offen' % (vr(64 + 4 * f, 4), sr(SW, 4), sWO))
        if f < 3: a('s_add_u32 s%d, s%d, 32768' % (sWO, sWO))
    st.mark()
    st.flush(SW, sW8)
    a.label('%s_end' % name)
    a('s_endpgm')
    return a.text(), descriptor(name, 256, 256), (name, 256, 512, LDS)


def emit_dmat(a, D, vT2f, vH, tmp, vSign):
    a('v_mul_f32 v%d, v%d, v%d' % (tmp, vT2f, vH))
    for ks in range(4):
        for n in range(4):
            a('v_fmamk_f32 v%d, v%d, %s, v%d' % (tmp + 1, vT2f, fl(8.0 * ks + n), tmp))
            a('v_cos_f32 v%d, v%d' % (tmp + 2, tmp + 1))
            a('v_sin_f32 v%d, v%d' % (tmp + 3, tmp + 1))
            if ks == 0 and n == 0:
                a('v_cndmask_b32 v%d, v%d, v%d, vcc' % (tmp + 3, tmp + 3, vSign))
            a('v_cvt_pk_f16_f32 v%d, v%d, v%d' % (D + 4 * ks + n, tmp + 2, tmp + 3))

def emit_ident(a, PI, vM, vHi, tmp):
    a('v_lshlrev_b32 v%d, 3, v%d' % (tmp, vHi))
    a('v_sub_u32 v%d, v%d, v%d' % (tmp, vM, tmp))
    a('v_and_b32 v%d, 1, v%d' % (tmp + 1, tmp))
    a('v_lshlrev_b32 v%d, 4, v%d' % (tmp + 1, tmp + 1))
    a('v_mov_b32 v%d, 0x3f80' % (tmp + 2))
    a('v_lshlrev_b32 v%d, v%d, v%d' % (tmp + 1, tmp + 1, tmp + 2))
    a('v_ashrrev_i32 v%d, 1, v%d' % (tmp, tmp))
    for kap in range(2):
        for n in range(4):
            a('v_cmp_eq_u32 vcc, %d, v%d' % (8 * kap + n, tmp))
            a('v_cndmask_b32 v%d, 0, v%d, vcc' % (PI + 4 * kap + n, tmp + 1))

def gen_k23(name, stamps):
    a = Asm()
    LDS = 163840
    SW = 8
    sW8, sW, sTAU, sSL, sT1, sPAR, sPP, sG, sGM, sA, sB, sC = 3, 12, 13, 14, 15, 16, 17, 18, 19, 20, 21, 22
    sT1G0, sT1G1 = 23, 24
    SLOT = [65536, 98304, 131072, 0, 32768, 65536, 98304]
    a.kernel_begin(name)
    st = Stamps(a, stamps, 1)
    st.mark()
    a('s_load_dwordx2 s[4:5], s[0:1], 88')
    a('s_cmp_ge_u32 s2, 256')
    a('s_cbranch_scc1 %s_end' % name)
    a('v_lshrrev_b32 v2, 6, v0')
    a('v_and_b32 v0, 63, v0')
    a('v_readfirstlane_b32 s%d, v2' % sW8)
    a('v_lshlrev_b32 v1, 4, v0')
    a('s_and_b32 s%d, s2, 6' % sA)
    a('s_lshl_b32 s%d, s%d, 1' % (sA, sA))
    a('s_bfe_u32 s%d, s2, 0x20003' % sB)
    a('s_add_u32 s%d, s%d, s%d' % (sTAU, sA, sB))
    a('s_and_b32 s%d, s2, 1' % sA)
    a('s_lshl_b32 s%d, s%d, 3' % (sA, sA))
    a('s_lshr_b32 s%d, s2, 5' % sB)
    a('s_add_u32 s%d, s%d, s%d' % (sSL, sA, sB))
    a('s_and_b32 s%d, s%d, 3' % (sW, sW8))
    a('s_lshr_b32 s%d, s%d, 1' % (sG, sW))
    a('s_and_b32 s%d, s%d, 1' % (sPAR, sW))
    a('s_sub_u32 s%d, 32, s%d' % (sA, sTAU))
    a('s_xor_b32 s%d, s%d, 1' % (sB, sG))
    a('s_cmp_eq_u32 s%d, 0' % sTAU)
    a('s_cselect_b32 s%d, 16, s%d' % (sT1G1, sA))
    a('s_cselect_b32 s%d, s%d, s%d' % (sGM, sG, sB))
    a('s_cmp_eq_u32 s%d, 0' % sG)
    a('s_cselect_b32 s%d, s%d, s%d' % (sT1, sTAU, sT1G1))
    a('s_lshl_b32 s%d, s%d, 5' % (sA, sPAR))
    a('s_add_u32 s%d, s%d, s%d' % (sPP, sT1, sA))
    a('v_and_b32 v2, 31, v0')
    a('v_lshrrev_b32 v3, 5, v0')
    a('s_waitcnt lgkmcnt(0)')
    a.srd(SW, 4, WS_BYTES)
    a('s_cmp_ge_u32 s%d, 4' % sW8)
    a('s_cbranch_scc1 %s_loader' % name)

    def common_setup():
        a('v_lshl_add_u32 v4, v2, 1, s%d' % sPAR)
        a('s_cmp_eq_u32 s%d, 0' % sT1)
        a('s_cselect_b32 s%d, 64, 63' % sA)
        a('v_sub_u32 v5, s%d, v4' % sA)
        a('v_and_b32 v5, 63, v5')
        a('v_lshlrev_b32 v7, 31, v4')
        a('v_or_b32 v7, 1.0, v7')
        a('v_lshlrev_b32 v8, 31, v5')
        a('v_or_b32 v8, 1.0, v8')
        a('v_cvt_f32_u32 v4, v4')
        a('v_cvt_f32_u32 v5, v5')
        a('v_mul_f32 v4, %s, v4' % fl(1 / 64))
        a('v_mul_f32 v5, %s, v5' % fl(1 / 64))
        a('v_cvt_f32_u32 v6, v3')
        a('v_mul_f32 v6, 4.0, v6')
        a('v_bfe_u32 v9, v0, 2, 2')
        a('v_lshlrev_b32 v9, 6, v9')
        a('v_lshl_add_u32 v9, v3, 9, v9')
        a('v_bfe_u32 v10, v0, 4, 1')
        a('v_lshl_add_u32 v9, v10, 5, v9')
        a('v_and_b32 v10, 3, v0')
        a('v_lshl_add_u32 v9, v10, 3, v9')

    XH, DL, DR, PI, CM, ACC, AF = 128, 16, 32, 48, 56, 72, 104
    NAF = 6
    vm = VM(a)
    a('s_lshl_b32 s%d, s%d, 7' % (sA, sT1))
    a('s_add_u32 s%d, s%d, %d' % (sA, sA, ZC_OFF))
    a('v_lshlrev_b32 v10, 4, v3')
    for ks in range(4):
        a('buffer_load_dwordx4 %s, v10, %s, s%d offen offset:%d' % (vr(AF + 4 * ks, 4), sr(SW, 4), sA, 32 * ks)); vm.issue('zc')
    a('s_lshl_b32 s%d, s%d, 7' % (sA, sPP))
    a('s_add_u32 s%d, s%d, %d' % (sA, sA, MX_OFF))
    a('v_lshlrev_b32 v10, 2, v2')
    a('buffer_load_dword v11, v10, %s, s%d offen' % (sr(SW, 4), sA)); vm.issue('zc')
    a('s_lshl_b32 s%d, s%d, 15' % (sA, sPP))
    a('s_add_u32 s%d, s%d, %d' % (sA, sA, XP_OFF))
    a('s_add_u32 s%d, s%d, 16384' % (sB, sA))
    order = []
    for b in range(8): order += [b, 8 + b]
    for b in range(8):
        for half, sreg in ((0, sA), (1, sB)):
            beta = b + 8 * half
            for kap in range(2):
                a('buffer_load_dwordx4 %s, v1, %s, s%d offen offset:%d' % (vr(XH + 8 * beta + 4 * kap, 4), sr(SW, 4), sreg, (b & 1) * 2048 + kap * 1024))
                vm.issue(('x', beta))
        if b & 1:
            a('s_add_u32 s%d, s%d, 4096' % (sA, sA))
            a('s_add_u32 s%d, s%d, 4096' % (sB, sB))
    common_setup()
    a('v_cmp_eq_u32 vcc, 0, v3')
    emit_dmat(a, DL, 4, 6, 12, 7)
    emit_dmat(a, DR, 5, 6, 12, 8)
    emit_ident(a, PI, 2, 3, 12)
    a('v_cmp_ne_u32 vcc, 0, v2')
    a('v_cndmask_b32 v8, 0, -1, vcc')
    a('s_lshl_b32 s%d, s%d, 15' % (sA, sG))
    a('s_lshl_b32 s%d, s%d, 15' % (sB, sGM))
    a('v_add_u32 v10, s%d, v9' % sB)
    a('v_add_u32 v9, s%d, v9' % sA)
    a('v_mov_b32 v6, 0')
    a('v_mov_b32 v7, 0')
    a('v_add_u32 v4, 65536, v1')
    a('v_add_u32 v5, 131072, v1')
    a('s_mul_i32 s%d, s%d, 112' % (sA, sPP))
    a('s_mul_i32 s%d, s%d, 7' % (sB, sSL))
    a('s_add_u32 s%d, s%d, s%d' % (sA, sA, sB))
    a('s_lshl_b32 s%d, s%d, 10' % (sA, sA))
    a('s_add_u32 s%d, s%d, %d' % (sC, sA, ACT_OFF))
    st.mark()
    vm.wait('zc')
    for i in range(16): a('v_mov_b32 v%d, v11' % (CM + i))
    for ks in range(4):
        a('v_mfma_f32_32x32x16_f16 %s, %s, %s, %s' % (vr(CM, 16), vr(AF + 4 * ks, 4), vr(DL + 4 * ks, 4), vr(CM, 16)))
    a('s_barrier')
    st.mark()
    if stamps: a('s_waitcnt lgkmcnt(0)')
    lg = LG(a)
    frags = [(n, ks) for n in range(16) for ks in range(4)]
    state = {'rd': 0}
    def zread():
        f = state['rd']
        if f >= len(frags): return
        n, ks = frags[f]
        if ks == 0 and n in (4, 8, 12): a('s_barrier')
        beta = order[n]
        base = 9 if beta < 8 else 10
        reg = AF + 4 * (f % NAF)
        for q in range(2):
            a('ds_read_b64_tr_b16 %s, v%d offset:%d' % (vr(reg + 2 * q, 2), base, (beta & 7) * 4096 + ks * 1024 + q * 256))
            lg.issue(('z', f))
        state['rd'] += 1
    def post(n):
        beta = order[n]; acc = ACC + 16 * (n & 1); ops = []
        for i in range(8):
            ops.append('v_cvt_pk_bf16_f32 v%d, v%d, v%d' % (XH + 8 * beta + i, acc + 2 * i, acc + 2 * i + 1))
        dots = ['v_dot2c_f32_bf16 v%d, v%d, v%d' % (6 + (i & 1), XH + 8 * beta + i, XH + 8 * beta + i) for i in range(8)]
        return ops[:4] + ops[4:] + dots
    for _ in range(NAF - 1): zread()
    for n in range(16):
        beta = order[n]; acc = vr(ACC + 16 * (n & 1), 16); D = DL if beta < 8 else DR
        pend = post(n - 1) if n else []
        for ks in range(4):
            f = 4 * n + ks
            lg.wait(('z', f))
            reg = AF + 4 * (f % NAF)
            if n == 0:
                for i in range(4): a('v_and_b32 v%d, v8, v%d' % (reg + i, reg + i))
            a('v_mfma_f32_32x32x16_f16 %s, %s, %s, %s' % (acc, vr(reg, 4), vr(D + 4 * ks, 4), acc if ks else vr(CM, 16)))
            zread()
            if ks >= 2:
                for o in pend[:4]: a(o)
                pend = pend[4:]
        vm.wait(('x', beta))
        for kap in range(2):
            a('v_mfma_f32_32x32x16_bf16 %s, %s, %s, %s' % (acc, vr(PI + 4 * kap, 4), vr(XH + 8 * beta + 4 * kap, 4), acc))
            for o in pend[:4]: a(o)
            pend = pend[4:]
    a('s_barrier')
    st.mark()
    if stamps: a('s_waitcnt lgkmcnt(0)')
    WF, NWF = 16, 8
    TMP, OUT = 104, 124
    lg = LG(a)
    wst = {'rd': 0}
    def wread():
        f = wst['rd']
        if f >= 224: return
        i, ks = divmod(f, 32)
        if ks == 0 and i > 0: a('s_barrier')
        base = {0: 1, 1: 4, 2: 5}[SLOT[i] >> 16]
        a('ds_read_b128 %s, v%d offset:%d' % (vr(WF + 4 * (f % NWF), 4), base, (SLOT[i] & 65535) + ks * 1024))
        lg.issue(('w', f))
        wst['rd'] += 1
    for _ in range(NWF - 1): wread()
    for o in post(15): a(o)
    stats = ['v_add_f32 v6, v6, v7', 'v_mov_b32 v7, v6', 'v_permlane32_swap_b32 v6, v7', 'v_add_f32 v6, v6, v7',
             'v_mov_b32 v7, %s' % fl(1e-5), 'v_fmamk_f32 v6, v6, %s, v7' % fl(1 / 512), 'v_rsq_f32 v7, v6',
             'v_mul_f32 v7, %s, v7' % fl(-1.4426950408889634)]
    def epi(i):
        acc = ACC + 16 * (i & 1); ops = []
        for hf in range(2):
            R = range(4 * hf, 4 * hf + 4)
            ops += ['v_mul_f32 v%d, v7, v%d' % (TMP + r, acc + r) for r in R]
            ops += ['v_exp_f32 v%d, v%d' % (TMP + r, TMP + r) for r in R]
            ops += ['v_mul_f32 v%d, v%d, v%d' % (TMP + 8 + r, acc + r, acc + 8 + r) for r in R]
            ops += ['v_fma_f32 v%d, v%d, v6, v6' % (TMP + r, TMP + r) for r in R]
            ops += ['v_rcp_f32 v%d, v%d' % (TMP + r, TMP + r) for r in R]
            ops += ['v_mul_f32 v%d, v%d, v%d' % (TMP + r, TMP + r, TMP + 8 + r) for r in R]
            ops += ['v_cvt_pk_bf16_f32 v%d, v%d, v%d' % (OUT + r // 2, TMP + r, TMP + r + 1) for r in R if r % 2 == 0]
        ops.append('buffer_store_dwordx4 %s, v1, %s, s%d offen %s' % (vr(OUT, 4), sr(SW, 4), sC, ACT_FLAGS))
        ops.append('s_add_u32 s%d, s%d, 1024' % (sC, sC))
        return ops
    for i in range(7):
        acc = vr(ACC + 16 * (i & 1), 16)
        pend = epi(i - 1) if i else list(stats)
        for ks in range(32):
            f = 32 * i + ks
            lg.wait(('w', f))
            a('v_mfma_f32_32x32x16_bf16 %s, %s, %s, %s' % (acc, vr(WF + 4 * (f % NWF), 4), vr(XH + 4 * ks, 4), acc if ks else '0'))
            wread()
            if ks >= 3:
                for o in pend[:2]: a(o)
                pend = pend[2:]
        assert not pend
    st.mark()
    for o in epi(6): a(o)
    st.mark()
    st.flush(SW, sW8)
    a('s_endpgm')

    a.label('%s_loader' % name)
    st.n = 1
    vm = VM(a)
    sZS, sZD, sWS = 25, 26, 27
    a('s_lshl_b32 s%d, s%d, 15' % (sA, sT1))
    a('s_lshl_b32 s%d, s%d, 11' % (sB, sPAR))
    a('s_add_u32 s%d, s%d, s%d' % (sZS, sA, sB))
    a('s_add_u32 s%d, s%d, %d' % (sZS, sZS, Z_OFF))
    a('s_lshl_b32 s%d, s%d, 15' % (sA, sG))
    a('s_add_u32 s%d, s%d, s%d' % (sZD, sA, sB))
    for b in range(8):
        a('s_add_u32 m0, s%d, %d' % (sZD, 4096 * b))
        for q in range(2):
            a('buffer_load_dwordx4 v1, %s, s%d offen offset:%d lds' % (sr(SW, 4), sZS, 1024 * q)); vm.issue(('z', b >> 1))
        a('s_add_u32 s%d, s%d, 4096' % (sZS, sZS))
    LX, LD, LPI, LAF, LACC = 16, 24, 40, 48, 64
    a('s_lshl_b32 s%d, s%d, 15' % (sA, sPP))
    a('s_lshl_b32 s%d, s%d, 11' % (sB, sSL))
    a('s_add_u32 s%d, s%d, s%d' % (sA, sA, sB))
    a('s_add_u32 s%d, s%d, %d' % (sA, sA, XP_OFF))
    for kap in range(2):
        a('buffer_load_dwordx4 %s, v1, %s, s%d offen offset:%d' % (vr(LX + 4 * kap, 4), sr(SW, 4), sA, 1024 * kap)); vm.issue('x')
    a('s_mul_i32 s%d, s%d, %d' % (sWS, sSL, 7 * 32768))
    a('s_lshl_b32 s%d, s%d, 13' % (s_w13, sW))
    a('s_add_u32 s%d, s%d, s%d' % (sWS, sWS, s_w13))
    a('s_add_u32 s%d, s%d, %d' % (sWS, sWS, WP_OFF))
    def wissue(i):
        for hq in range(2):
            a('s_add_u32 m0, s%d, %d' % (s_w13, SLOT[i] + 4096 * hq))
            a('s_add_u32 s%d, s%d, %d' % (sA, sWS, 32768 * i + 4096 * hq))
            for q in range(4):
                a('buffer_load_dwordx4 v1, %s, s%d offen offset:%d lds' % (sr(SW, 4), sA, 1024 * q)); vm.issue(('w', i))
    vm.wait(('z', 0)); a('s_barrier')
    common_setup()
    a('s_cmp_ge_u32 s%d, 8' % sSL)
    a('s_cselect_b32 s%d, s%d, s%d' % (sA, sGM, sG))
    a('s_cselect_b64 vcc, -1, 0')
    a('v_cndmask_b32 v4, v4, v5, vcc')
    a('v_cndmask_b32 v7, v7, v8, vcc')
    a('s_lshl_b32 s%d, s%d, 15' % (sA, sA))
    a('s_and_b32 s%d, s%d, 7' % (sB, sSL))
    a('s_lshl_b32 s%d, s%d, 12' % (sB, sB))
    a('s_add_u32 s%d, s%d, s%d' % (sA, sA, sB))
    a('v_add_u32 v9, s%d, v9' % sA)
    vm.wait(('z', 1)); a('s_barrier')
    a('v_cmp_eq_u32 vcc, 0, v3')
    emit_dmat(a, LD, 4, 6, 12, 7)
    vm.wait(('z', 2)); a('s_barrier')
    wissue(0)
    emit_ident(a, LPI, 2, 3, 12)
    a('v_add_u32 v8, s%d, v2' % sSL)
    a('v_cmp_ne_u32 vcc, 0, v8')
    a('v_cndmask_b32 v8, 0, -1, vcc')
    vm.wait(('z', 3)); a('s_barrier')
    wissue(1)
    for ks in range(4):
        for q in range(2):
            a('ds_read_b64_tr_b16 %s, v9 offset:%d' % (vr(LAF + 4 * ks + 2 * q, 2), ks * 1024 + q * 256))
    wissue(2)
    a('s_waitcnt lgkmcnt(0)')
    for i in range(16): a('v_and_b32 v%d, v8, v%d' % (LAF + i, LAF + i))
    for ks in range(4):
        a('v_mfma_f32_32x32x16_f16 %s, %s, %s, %s' % (vr(LACC, 16), vr(LAF + 4 * ks, 4), vr(LD + 4 * ks, 4), vr(LACC, 16) if ks else '0'))
    vm.wait('x')
    for kap in range(2):
        a('v_mfma_f32_32x32x16_bf16 %s, %s, %s, %s' % (vr(LACC, 16), vr(LPI + 4 * kap, 4), vr(LX + 4 * kap, 4), vr(LACC, 16)))
    a('s_lshl_b32 s%d, s%d, 5' % (sA, sSL))
    a('s_sub_u32 s%d, 768, s%d' % (sB, sA))
    a('s_cmp_ge_u32 s%d, 8' % sSL)
    a('s_cselect_b32 s%d, s%d, s%d' % (sA, sB, sA))
    a('s_cselect_b32 s%d, -1, 1' % sB)
    a('s_cselect_b64 vcc, -1, 0')
    a('s_cselect_b32 s%d, 4, 0' % sC)
    a('s_lshl_b32 s%d, s%d, 7' % (sB, sB))
    a('s_sub_u32 s%d, s%d, s%d' % (sA, sA, sC))
    a('s_lshl_b32 s%d, s%d, 7' % (sA, sA))
    a('s_lshl_b32 s%d, s%d, 16' % (sC, sPP))
    a('s_add_u32 s%d, s%d, s%d' % (sA, sA, sC))
    a('s_add_u32 s%d, s%d, %d' % (sA, sA, HB_OFF))
    a('v_xor_b32 v10, 1, v3')
    a('v_cndmask_b32 v10, v3, v10, vcc')
    a('v_lshlrev_b32 v10, 9, v10')
    a('v_lshl_add_u32 v10, v2, 2, v10')
    a('s_cmp_eq_u32 s%d, 8' % sSL)
    a('s_cselect_b32 s%d, 0, 32768' % sC)
    a('v_mov_b32 v11, s%d' % sC)
    a('v_mov_b32 v12, 32768')
    a('v_cmp_eq_u32 vcc, 0, v3')
    a('v_cndmask_b32 v11, v12, v11, vcc')
    a('v_add_u32 v11, v11, v10')
    a('s_sub_u32 s%d, s%d, 32768' % (sC, sA))
    vm.wait(('w', 0)); a('s_barrier')
    st.mark()
    wissue_tmp = sA
    a('s_mov_b32 s30, s%d' % sA)
    wissue(3); wissue(4)
    a('s_mul_i32 s31, s%d, 5' % sB)
    for r in range(16):
        if r == 0:
            a('buffer_store_dword v%d, v11, %s, s%d offen' % (LACC, sr(SW, 4), sC))
        else:
            a('s_add_u32 s30, s30, s%d' % (sB if r & 3 else 31))
            a('buffer_store_dword v%d, v10, %s, s30 offen' % (LACC + r, sr(SW, 4)))
        vm.issue('h')
    for i in range(1, 7):
        vm.wait(('w', i)); a('s_barrier')
        if i in (2, 3): wissue(i + 3)
    st.mark()
    st.flush(SW, sW8)
    a.label('%s_end' % name)
    a('s_endpgm')
    return a.text(), descriptor(name, 256, 256), (name, 256, 512, LDS)

s_w13 = 28
ACT_FLAGS = 'sc1'

def gen_k4(name, stamps):
    a = Asm()
    LDS = 131072
    SW, SD, SO = 8, 12, 16
    sW, sG0, sDT, sA, sB, sC, sA0, sA1, sWD, sLB = 3, 20, 21, 22, 23, 24, 25, 26, 27, 28
    a.kernel_begin(name)
    st = Stamps(a, stamps, 2)
    st.mark()
    a('s_load_dwordx4 s[4:7], s[0:1], 64')
    a('s_load_dwordx2 s[30:31], s[0:1], 88')
    a('s_cmp_ge_u32 s2, 256')
    a('s_cbranch_scc1 %s_end' % name)
    a('v_lshrrev_b32 v2, 6, v0')
    a('v_mov_b32 v15, v0')
    a('v_and_b32 v0, 63, v0')
    a('v_readfirstlane_b32 s%d, v2' % sW)
    a('v_lshlrev_b32 v1, 4, v0')
    a('s_and_b32 s%d, s2, 6' % sA)
    a('s_lshl_b32 s%d, s%d, 2' % (sA, sA))
    a('s_bfe_u32 s%d, s2, 0x30003' % sB)
    a('s_add_u32 s%d, s%d, s%d' % (sG0, sA, sB))
    a('s_lshl_b32 s%d, s%d, 1' % (sG0, sG0))
    a('s_and_b32 s%d, s2, 1' % sA)
    a('s_lshl_b32 s%d, s%d, 2' % (sA, sA))
    a('s_lshr_b32 s%d, s2, 6' % sB)
    a('s_add_u32 s%d, s%d, s%d' % (sDT, sA, sB))
    a('s_and_b32 s%d, s%d, 1' % (sA, sW))
    a('s_add_u32 s%d, s%d, s%d' % (sB, sG0, sA))
    a('s_xor_b32 s%d, s%d, 1' % (sC, sB))
    a('s_mul_i32 s29, s%d, 28' % sW)
    a('s_mul_i32 s%d, s%d, 112' % (sA0, sB))
    a('s_mul_i32 s%d, s%d, 112' % (sA1, sC))
    for r in (sA0, sA1):
        a('s_add_u32 s%d, s%d, s29' % (r, r))
        a('s_lshl_b32 s%d, s%d, 10' % (r, r))
        a('s_add_u32 s%d, s%d, %d' % (r, r, ACT_OFF))
    a('s_mul_i32 s%d, s%d, %d' % (sWD, sW, 28 * 16384))
    a('s_lshl_b32 s%d, s%d, 7' % (sA, sDT))
    a('s_add_u32 s%d, s%d, s%d' % (sWD, sWD, sA))
    a('s_lshl_b32 s%d, s%d, 15' % (sLB, sW))
    a('v_and_b32 v2, 31, v0')
    a('v_lshrrev_b32 v3, 5, v0')
    a('v_bfe_u32 v4, v0, 4, 1')
    a('v_bfe_u32 v5, v0, 2, 2')
    a('v_and_b32 v6, 3, v0')
    a('v_lshlrev_b32 v7, 12, v3')
    a('v_lshl_add_u32 v7, v5, 10, v7')
    a('v_lshl_add_u32 v7, v4, 6, v7')
    a('v_lshl_add_u32 v7, v6, 4, v7')
    a('s_waitcnt lgkmcnt(0)')
    a.srd(SW, 30, WS_BYTES)
    a.srd(SD, 4, 1792 * 1024)
    ACC, AF, HR, BR = 16, 80, 104, 128
    NB, PD, NL = 14, 12, 16
    vm = VM(a); lg = LG(a)
    def issue(f):
        if f >= 28: return
        for tg, sreg in ((0, sA0), (1, sA1)):
            a('buffer_load_dwordx4 %s, v1, %s, s%d offen offset:%d' % (vr(BR + 8 * (f % NB) + 4 * tg, 4), sr(SW, 4), sreg, (f & 3) * 1024))
            vm.issue(f)
        for n in range(2):
            a('s_add_u32 m0, s%d, %d' % (sLB, (f % NL) * 2048 + n * 1024))
            a('s_add_u32 s%d, s%d, %d' % (sA, sWD, f * 16384 + n * 8192))
            a('buffer_load_dwordx4 v7, %s, s%d offen lds' % (sr(SD, 4), sA))
            vm.issue(f)
        if f & 3 == 3:
            a('s_add_u32 s%d, s%d, 4096' % (sA0, sA0))
            a('s_add_u32 s%d, s%d, 4096' % (sA1, sA1))
    for f in range(PD): issue(f)
    a.srd(SO, 6, 2048 * 1024)
    a('s_lshr_b32 s%d, s%d, 1' % (sA, sW))
    a('s_lshl_b32 s%d, s%d, 8' % (sC, sA))
    a('s_add_u32 s%d, s%d, s%d' % (sC, sC, sLB))
    a('v_lshlrev_b32 v8, 9, v3')
    a('v_lshl_add_u32 v8, v5, 6, v8')
    a('v_lshl_add_u32 v8, v4, 5, v8')
    a('v_lshl_add_u32 v8, v6, 3, v8')
    a('v_add_u32 v8, s%d, v8' % sC)
    a('v_xor_b32 v9, 256, v8')
    a('s_lshl_b32 s%d, s%d, 16' % (sC, sB))
    a('s_lshl_b32 s29, s%d, 13' % sDT)
    a('s_add_u32 s%d, s%d, s29' % (sC, sC))
    a('s_lshl_b32 s29, s%d, 12' % sA)
    a('s_add_u32 s%d, s%d, s29' % (sC, sC))
    a('s_add_u32 s32, s%d, %d' % (sC, HB_OFF))
    a('v_lshlrev_b32 v10, 9, v3')
    a('v_lshl_add_u32 v10, v2, 2, v10')
    def trread(f):
        if f >= 28: return
        vm.wait(f)
        for db in range(2):
            for n in range(2):
                a('ds_read_b64_tr_b16 %s, v%d offset:%d' % (vr(AF + 8 * (f % 3) + 4 * db + 2 * n, 2), 8 + db, (f % NL) * 2048 + n * 1024))
                lg.issue(f)
    st.mark()
    if stamps: a('s_waitcnt lgkmcnt(0)')
    trread(0)
    st.mark()
    if stamps: a('s_waitcnt lgkmcnt(0)')
    for f in range(28):
        issue(f + PD)
        if f + PD == 28:
            for r in range(16):
                a('buffer_load_dword v%d, v10, %s, s32 offen offset:%d' % (HR + r, sr(SW, 4), (8 * (r >> 2) + (r & 3)) * 128)); vm.issue('h')
        trread(f + 1)
        lg.wait(f)
        for db in range(2):
            for tg in range(2):
                acc = vr(ACC + 32 * db + 16 * tg, 16)
                a('v_mfma_f32_32x32x16_bf16 %s, %s, %s, %s' % (acc, vr(AF + 8 * (f % 3) + 4 * db, 4), vr(BR + 8 * (f % NB) + 4 * tg, 4), acc if f else '0'))
    st.mark()
    PW = 64 * 272
    a('s_mul_i32 s%d, s%d, %d' % (sC, sW, PW))
    a('s_and_b32 s%d, s%d, 1' % (sB, sW))
    a('s_lshr_b32 s%d, s%d, 1' % (sA, sW))
    a('v_mul_u32_u24 v11, 272, v2')
    a('v_lshl_add_u32 v11, v3, 4, v11')
    a('v_add_u32 v11, s%d, v11' % sC)
    for db in range(2):
        for tg in range(2):
            a('s_xor_b32 s29, s%d, %d' % (sB, tg))
            a('s_mul_i32 s29, s29, %d' % (32 * 272))
            a('s_xor_b32 s33, s%d, %d' % (sA, db))
            a('s_lshl_b32 s33, s33, 7')
            a('s_add_u32 s29, s29, s33')
            a('v_add_u32 v%d, s29, v11' % (4 + 2 * db + tg))
    vm.wait('h')
    a('s_barrier')
    for db, tg in ((0, 1), (1, 0), (1, 1), (0, 0)):
        acc = ACC + 32 * db + 16 * tg
        if (db, tg) == (0, 0):
            for r in range(16): a('v_add_f32 v%d, v%d, v%d' % (acc + r, acc + r, HR + r))
        for q in range(4):
            a('ds_write_b128 v%d, %s offset:%d' % (4 + 2 * db + tg, vr(acc + 4 * q, 4), 32 * q))
    a('v_lshrrev_b32 v12, 3, v15')
    a('v_and_b32 v13, 7, v15')
    a('v_mul_u32_u24 v14, 272, v12')
    a('v_lshl_add_u32 v14, v13, 5, v14')
    a('v_lshlrev_b32 v12, 16, v12')
    a('v_lshl_add_u32 v12, v13, 4, v12')
    a('s_lshl_b32 s%d, s%d, 10' % (sA, sG0))
    a('s_lshl_b32 s%d, s%d, 7' % (sB, sDT))
    a('s_add_u32 s%d, s%d, s%d' % (sA, sA, sB))
    a('s_waitcnt lgkmcnt(0)')
    a('s_barrier')
    for ps in range(2):
        for w in range(4):
            for q in range(2):
                a('ds_read_b128 %s, v14 offset:%d' % (vr(128 + 32 * ps + 8 * w + 4 * q, 4), w * PW + ps * 32 * 272 + 16 * q))
    for ps in range(2):
        a('s_waitcnt lgkmcnt(%d)' % (8 - 8 * ps))
        b = 128 + 32 * ps
        for i in range(8):
            a('v_add_f32 v%d, v%d, v%d' % (b + i, b + i, b + 8 + i))
            a('v_add_f32 v%d, v%d, v%d' % (b + 16 + i, b + 16 + i, b + 24 + i))
        for i in range(8):
            a('v_add_f32 v%d, v%d, v%d' % (b + i, b + i, b + 16 + i))
        for n in range(4):
            a('v_cvt_pk_bf16_f32 v%d, v%d, v%d' % (b + 8 + n, b + 2 * n, b + 2 * n + 1))
        a('buffer_store_dwordx4 %s, v12, %s, s%d offen offset:%d' % (vr(b + 8, 4), sr(SO, 4), sA, 1024 * ps))
    st.mark()
    st.flush(SW, sW)
    a.label('%s_end' % name)
    a('s_endpgm')
    return a.text(), descriptor(name, 256, 256), (name, 256, 256, LDS)

def build(path, stamps, verbose=False, extra=None):
    header = ''.join(l for l in open('sequential_preLN__spectral_fnet__swiglu_ffn__prompt.s.ref') if l.startswith(';') and 'launch' not in l and 'grid=' not in l)
    body, descs, launches = '', [], []
    for g, nm in ((gen_k1, 'fnet_dft_a_kernel'), (gen_k23, 'fnet_dft_b_glu_kernel'), (gen_k4, 'fnet_down_kernel')):
        t, d, l = g(nm, stamps)
        t, n = hazard.fix(t, verbose)
        body += t + '\n'; descs.append(d); launches.append(l)
    if extra: body, descs, launches = extra(body, descs, launches)
    open(path, 'w').write(build_file(launches, body, descs, header))

if __name__ == '__main__':
    build('v1_dbg.s', True, '-v' in sys.argv)
    build('v1.s', False)
```

```python
import gen1
from asmlib import *
def rw(name, rd_kb, wr_kb, base, argoff=88, nbytes=268435456):
    a = Asm()
    a.kernel_begin(name)
    if rd_kb or wr_kb:
        a('s_load_dwordx2 s[4:5], s[0:1], %d' % argoff)
        a('s_cmp_ge_u32 s2, 256')
        a('s_cbranch_scc1 %s_end' % name)
        a('v_lshlrev_b32 v1, 4, v0')
        a('s_mul_i32 s6, s2, %d' % (max(rd_kb, wr_kb) * 1024))
        a('s_add_u32 s6, s6, %d' % base)
        a('s_waitcnt lgkmcnt(0)')
        a.srd(8, 4, nbytes)
        for i in range(rd_kb // 4):
            a('buffer_load_dwordx4 %s, v1, s[8:11], s6 offen' % vr(8 + 4 * i, 4))
            a('s_add_u32 s6, s6, 4096')
        for i in range(wr_kb // 4):
            a('buffer_store_dwordx4 v[8:11], v1, s[8:11], s6 offen')
            a('s_add_u32 s6, s6, 4096')
        a('s_waitcnt vmcnt(0)')
        a.label('%s_end' % name)
    a('s_endpgm')
    return a.text(), descriptor(name, 64, 64), (name, 256, 256, 0)
def mk(k, n, front=False):
    def extra(body, descs, launches):
        t, d, l = k
        return body + t, descs + [d], ([l] * n + launches if front else launches + [l] * n)
    return extra
gen1.build('c_e1.s', False, extra=mk(rw('e_kernel', 0, 0, 0), 1))
gen1.build('c_e5.s', False, extra=mk(rw('e_kernel', 0, 0, 0), 5))
gen1.build('c_r32.s', False, extra=mk(rw('e_kernel', 32, 0, 0, 8, 8 << 20), 1))
gen1.build('c_w32lo.s', False, extra=mk(rw('e_kernel', 0, 32, 32 << 20), 1, True))
gen1.build('c_w32hi.s', False, extra=mk(rw('e_kernel', 0, 32, 240 << 20), 1, True))
```

```python
import gen1
from asmlib import *
def rw(name, rd_kb, wr_kb, base, argoff=88, nbytes=268435456, fl=''):
    a = Asm()
    a.kernel_begin(name)
    if rd_kb or wr_kb:
        a('s_load_dwordx2 s[4:5], s[0:1], %d' % argoff)
        a('s_cmp_ge_u32 s2, 256')
        a('s_cbranch_scc1 %s_end' % name)
        a('v_lshlrev_b32 v1, 4, v0')
        a('s_mul_i32 s6, s2, %d' % (max(rd_kb, wr_kb) * 1024))
        a('s_add_u32 s6, s6, %d' % base)
        a('s_waitcnt lgkmcnt(0)')
        a.srd(8, 4, nbytes)
        for i in range(rd_kb // 4):
            a('buffer_load_dwordx4 %s, v1, s[8:11], s6 offen' % vr(8 + 4 * i, 4))
            a('s_add_u32 s6, s6, 4096')
        for i in range(wr_kb // 4):
            a('buffer_store_dwordx4 v[8:11], v1, s[8:11], s6 offen ' + fl)
            a('s_add_u32 s6, s6, 4096')
        a('s_waitcnt vmcnt(0)')
        a.label('%s_end' % name)
    a('s_endpgm')
    return a.text(), descriptor(name, 64, 64), (name, 256, 256, 0)
def mk(k, n, front=False):
    def extra(body, descs, launches):
        t, d, l = k
        return body + t, descs + [d], ([l] * n + launches if front else launches + [l] * n)
    return extra

gen1.build('c0.s', False, extra=mk(rw('e_kernel', 0, 4, 32 << 20), 1))
gen1.build('c1.s', False, extra=mk(rw('e_kernel', 0, 32, 32 << 20), 1))
gen1.build('c2.s', False, extra=mk(rw('e_kernel', 0, 32, 32 << 20, fl='sc1'), 1))
gen1.build('c3.s', False, extra=mk(rw('e_kernel', 0, 0, 0), 1, True))
gen1.build('c4.s', False, extra=mk(rw('e_kernel', 32, 0, 32 << 20), 1))
gen1.build('c5.s', False, extra=mk(rw('e_kernel', 4, 0, 0, 8, 8 << 20), 1))
```

```python
import sys, struct
from asmlib import *
import hazard

WS_BYTES = 268435456
Z_OFF, XP_OFF, WP_OFF = 0, 1 << 20, 3 << 20
ZC_OFF, MX_OFF = 7 << 20, (7 << 20) + 4096
ACT_OFF, HB_OFF = 8 << 20, 16 << 20
STAMP_OFF = 128 << 20
OOB = 0x20000000

def fl(x):
    return '0x%08x' % struct.unpack('<I', struct.pack('<f', x))[0]

class VM:
    def __init__(self, a): self.a = a; self.q = []
    def issue(self, tag): self.q.append(tag)
    def wait(self, tag):
        idx = [i for i, t in enumerate(self.q) if t == tag]
        if not idx: return
        n = len(self.q) - 1 - idx[-1]
        assert n <= 62
        self.a('s_waitcnt vmcnt(%d)' % n)
        self.q = self.q[idx[-1] + 1:]

class LG(VM):
    def wait(self, tag):
        idx = [i for i, t in enumerate(self.q) if t == tag]
        if not idx: return
        n = len(self.q) - 1 - idx[-1]
        self.a('s_waitcnt lgkmcnt(%d)' % min(n, 14))
        self.q = self.q[idx[-1] + 1:] if n <= 14 else self.q[-14:]

class Stamps:
    def __init__(self, a, on, slot): self.a = a; self.on = on; self.slot = slot; self.n = 0
    def mark(self):
        if self.on:
            self.a('%s s[%d:%d]' % ('s_memtime' if self.on == 2 else 's_memrealtime', 64 + 2 * self.n, 65 + 2 * self.n)); self.n += 1
    def flush(self, srd, wave_s, n=None):
        if not self.on: return
        a = self.a
        a('s_waitcnt vmcnt(0)')
        self.mark()
        a('s_waitcnt lgkmcnt(0)')
        a('s_lshl_b32 s62, s2, 3')
        a('s_add_u32 s62, s62, s%d' % wave_s)
        a('s_lshl_b32 s62, s62, 6')
        a('s_add_u32 s62, s62, %d' % (STAMP_OFF + self.slot * 131072))
        a('s_mov_b64 exec, 1')
        a('v_mov_b32 v1, 0')
        for i in range(self.n):
            a('v_mov_b32 v2, s%d' % (64 + 2 * i))
            a('buffer_store_dword v2, v1, %s, s62 offen offset:%d' % (sr(srd, 4), 4 * i))

def gen_k1(name, stamps):
    a = Asm()
    XROW = 1056
    L_WST = 64 * XROW
    L_EX = L_WST + 16384
    L_R = L_EX + 8192
    L_PART = L_R + 256
    LDS = L_PART + 128
    SX, SG, SU, SW = 8, 12, 16, 20
    sW8, sP, sJ, sPS, sT0, sT1, sT2, sLAM, sPHI = 3, 24, 25, 26, 27, 28, 29, 30, 31
    a.kernel_begin(name)
    st = Stamps(a, stamps, 0)
    st.mark()
    a('s_load_dwordx2 s[4:5], s[0:1], 0')
    a('s_load_dwordx4 s[32:35], s[0:1], 48')
    a('s_load_dwordx2 s[6:7], s[0:1], 88')
    a('s_cmp_ge_u32 s2, 256')
    a('s_cbranch_scc1 %s_end' % name)
    a('v_lshrrev_b32 v2, 6, v0')
    a('v_and_b32 v0, 63, v0')
    a('v_readfirstlane_b32 s%d, v2' % sW8)
    a('v_lshlrev_b32 v1, 4, v0')
    a('s_and_b32 s%d, s2, 31' % sP)
    a('s_lshr_b32 s%d, s2, 5' % sJ)
    a('s_sub_u32 s%d, 64, s%d' % (sT0, sP))
    a('s_cmp_eq_u32 s%d, 0' % sP)
    a('s_cselect_b32 s36, 32, s%d' % sT0)
    a('s_cselect_b32 s%d, 0, 1.0' % sLAM)
    a('s_cselect_b32 s37, 0, %s' % fl(-0.25))
    a('s_cmp_ge_u32 s%d, 4' % sW8)
    a('s_cselect_b32 s%d, s36, s%d' % (sT0, sP))
    a('s_and_b32 s%d, s%d, 3' % (sT1, sW8))
    a('s_lshl_b32 s%d, s%d, 9' % (sT1, sT1))
    a('s_add_u32 s%d, s%d, s%d' % (sT0, sT0, sT1))
    a('s_lshl_b32 s%d, s%d, 10' % (sT0, sT0))
    a('s_mul_i32 s%d, s%d, %d' % (sT1, sW8, 8 * XROW))
    a('s_waitcnt lgkmcnt(0)')
    a.srd(SX, 4, 2048 * 1024)
    for n in range(8):
        a('s_mov_b32 m0, s%d' % sT1)
        a('s_add_u32 s%d, s%d, %d' % (sT1, sT1, XROW))
        a('buffer_load_dwordx4 v1, %s, s%d offen lds' % (sr(SX, 4), sT0))
        a('s_add_u32 s%d, s%d, 65536' % (sT0, sT0))
    a.srd(SW, 6, WS_BYTES)
    a('v_and_b32 v2, 15, v0')
    a('v_lshrrev_b32 v3, 4, v0')
    a('s_bitcmp1_b32 s%d, 1' % sW8)
    a('s_cselect_b32 s%d, s36, s%d' % (sPS, sP))
    a('s_cselect_b32 s%d, s37, 0' % sPHI)
    a('s_cmp_ge_u32 s%d, 4' % sW8)
    a('s_cbranch_scc1 %s_helper' % name)

    WA, WB = 128, 192
    TC, TS, TN = 104, 112, 120
    ACC = 88
    XF = 32
    a('s_and_b32 s%d, s%d, 1' % (sT0, sW8))
    a('s_lshl_b32 s%d, s%d, 4' % (sT0, sT0))
    a('s_lshl_b32 s%d, s%d, 5' % (sT1, sJ))
    a('s_add_u32 s%d, s%d, s%d' % (sT0, sT0, sT1))
    a('v_add_u32 v4, s%d, v2' % sT0)
    a('v_mov_b32 v5, 0x100')
    a('v_cmp_eq_u32 vcc, 0, v4')
    a('v_cndmask_b32 v4, v4, v5, vcc')
    a('v_cvt_f32_u32 v5, v4')
    a('v_mul_f32 v5, %s, v5' % fl(1 / 512))
    a('v_cvt_f32_u32 v6, v3')
    a('v_mul_f32 v6, 0x41000000, v6')
    a('v_mul_f32 v6, v6, v5')
    for ks in range(4):
        for n in range(4):
            a('v_fmamk_f32 v8, v5, %s, v6' % fl(32 * ks + 2 * n))
            a('v_fmamk_f32 v9, v5, %s, v6' % fl(32 * ks + 2 * n + 1))
            a('v_cos_f32 v10, v8')
            a('v_cos_f32 v11, v9')
            a('v_sin_f32_e64 v12, -v8')
            a('v_sin_f32_e64 v13, -v9')
            a('v_cvt_pk_bf16_f32 v%d, v10, v11' % (WA + 4 * ks + n))
            a('v_cvt_pk_bf16_f32 v%d, v12, v13' % (WB + 4 * ks + n))
    a('v_and_b32 v8, 1, v4')
    a('v_cmp_eq_u32 vcc, 1, v8')
    a('s_mov_b32 s%d, 0x80008000' % sT0)
    a('v_mul_lo_u32 v9, v8, s%d' % sT0)
    a('v_bfe_u32 v10, v4, 1, 1')
    a('v_mul_lo_u32 v10, v10, s%d' % sT0)
    a('v_xor_b32 v11, v9, v10')
    for i in range(16):
        a('v_cndmask_b32 v12, v%d, v%d, vcc' % (WA + i, WB + i))
        a('v_cndmask_b32 v13, v%d, v%d, vcc' % (WB + i, WA + i))
        a('v_xor_b32 v%d, v9, v%d' % (WA + 32 + i, WA + i))
        a('v_xor_b32 v%d, v9, v%d' % (WB + 32 + i, WB + i))
        a('v_xor_b32 v%d, v10, v12' % (WA + 16 + i))
        a('v_xor_b32 v%d, v11, v13' % (WB + 16 + i))
        a('v_xor_b32 v%d, v11, v12' % (WA + 48 + i))
        a('v_xor_b32 v%d, v10, v13' % (WB + 48 + i))
    a('v_lshlrev_b32 v8, 8, v3')
    a('v_add_u32 v8, s%d, v8' % sPS)
    a('v_cvt_f32_u32 v8, v8')
    a('v_cvt_f32_u32 v9, v2')
    a('v_mov_b32 v16, s%d' % sPHI)
    for tb in range(2):
        a('v_add_f32 v10, %s, v9' % fl(16.0 * tb))
        a('v_mul_f32 v10, %s, v10' % fl(1 / 2048))
        a('v_fma_f32 v11, v10, v8, v16')
        for n in range(4):
            s1 = [(0, 1), (2, 3), (16, 17), (18, 19)][n]
            a('v_fmamk_f32 v12, v10, %s, v11' % fl(64.0 * s1[0]))
            a('v_fmamk_f32 v13, v10, %s, v11' % fl(64.0 * s1[1]))
            a('v_cos_f32 v14, v12')
            a('v_cos_f32 v15, v13')
            a('v_sin_f32 v12, v12')
            a('v_sin_f32 v13, v13')
            a('v_cvt_pk_f16_f32 v%d, v14, v15' % (TC + 4 * tb + n))
            a('v_cvt_pk_f16_f32 v%d, v12, v13' % (TS + 4 * tb + n))
            a('v_cvt_pk_f16_f32 v%d, -v12, -v13' % (TN + 4 * tb + n))
    a('s_lshr_b32 s%d, s%d, 1' % (sT0, sW8))
    a('s_mul_i32 s%d, s%d, %d' % (sT1, sT0, 32 * XROW))
    a('v_mul_u32_u24 v8, %d, v2' % XROW)
    a('v_lshl_add_u32 v8, v3, 4, v8')
    a('v_add_u32 v8, s%d, v8' % sT1)
    a('s_lshl_b32 s%d, s%d, 7' % (sT1, sT0))
    a('s_add_u32 s%d, s%d, %d' % (sT1, sT1, L_R))
    a('v_lshl_add_u32 v9, v3, 4, s%d' % sT1)
    a('s_lshl_b32 s%d, s%d, 11' % (sT1, sW8))
    a('s_add_u32 s%d, s%d, %d' % (sT2, sT1, L_EX))
    a('v_add_u32 v10, s%d, v1' % sT2)
    a('s_xor_b32 s%d, s%d, 4096' % (sT1, sT1))
    a('s_add_u32 s%d, s%d, %d' % (sT2, sT1, L_EX))
    a('v_add_u32 v11, s%d, v1' % sT2)
    a('v_lshlrev_b32 v12, 15, v2')
    a('v_lshl_add_u32 v12, v3, 3, v12')
    a('s_lshl_b32 s%d, s%d, 12' % (sT1, sJ))
    a('s_lshl_b32 s%d, s%d, 7' % (sT2, sP))
    a('s_add_u32 s%d, s%d, s%d' % (sT1, sT1, sT2))
    a('s_lshl_b32 s%d, s%d, 5' % (sT2, sW8))
    a('s_add_u32 s38, s%d, s%d' % (sT1, sT2))
    a('s_add_u32 s38, s38, %d' % Z_OFF)
    a('s_add_u32 s39, s38, %d' % (16 * 32768))
    st.mark()
    a('s_waitcnt vmcnt(0)')
    a('s_barrier')
    st.mark()
    lg = LG(a)
    if stamps: a('s_waitcnt lgkmcnt(0)')
    PD = 7
    def rd(ks):
        for rb in range(2):
            a('ds_read_b128 %s, v8 offset:%d' % (vr(XF + 8 * (ks % PD) + 4 * rb, 4), rb * 16 * XROW + ks * 64))
            lg.issue(('x', ks, rb))
    for ks in range(PD - 1): rd(ks)
    for ks in range(16):
        if ks + PD - 1 < 16: rd(ks + PD - 1)
        for rb in range(2):
            lg.wait(('x', ks, rb))
            for part, W in enumerate((WA, WB)):
                acc = vr(ACC + 8 * part + 4 * rb, 4)
                a('v_mfma_f32_16x16x32_bf16 %s, %s, %s, %s' % (acc, vr(XF + 8 * (ks % PD) + 4 * rb, 4), vr(W + 4 * ks, 4), acc if ks else '0'))
    a('s_barrier')
    a('ds_read_b128 v[16:19], v9')
    a('ds_read_b128 v[20:23], v9 offset:64')
    a('s_waitcnt lgkmcnt(0)')
    for part in range(2):
        for i in range(8):
            a('v_mul_f32 v%d, v%d, v%d' % (ACC + 8 * part + i, ACC + 8 * part + i, 16 + i))
        for n in range(4):
            a('v_cvt_pk_f16_f32 v%d, v%d, v%d' % (24 + 4 * part + n, ACC + 8 * part + 2 * n, ACC + 8 * part + 2 * n + 1))
    KP, SD = 40, 32
    for tb in range(2):
        a('v_mfma_f32_16x16x32_f16 %s, v[24:27], %s, 0' % (vr(SD + 4 * tb, 4), vr(TN + 4 * tb, 4)))
    for tb in range(2):
        a('v_mfma_f32_16x16x32_f16 %s, v[28:31], %s, %s' % (vr(SD + 4 * tb, 4), vr(TC + 4 * tb, 4), vr(SD + 4 * tb, 4)))
    for tb in range(2):
        a('v_mfma_f32_16x16x32_f16 %s, v[24:27], %s, 0' % (vr(KP + 4 * tb, 4), vr(TC + 4 * tb, 4)))
    for tb in range(2):
        a('v_mfma_f32_16x16x32_f16 %s, v[28:31], %s, %s' % (vr(KP + 4 * tb, 4), vr(TS + 4 * tb, 4), vr(KP + 4 * tb, 4)))
    a('ds_write_b128 v10, %s' % vr(SD, 4))
    a('ds_write_b128 v10, %s offset:1024' % vr(SD + 4, 4))
    a('s_waitcnt lgkmcnt(0)')
    a('s_barrier')
    a('ds_read_b128 v[48:51], v11')
    a('ds_read_b128 v[52:55], v11 offset:1024')
    a('s_waitcnt lgkmcnt(0)')
    for i in range(8):
        a('v_fma_f32 v%d, v%d, s%d, v%d' % (KP + i, 48 + i, sLAM, KP + i))
    for n in range(4):
        a('v_cvt_pk_f16_f32 v%d, v%d, v%d' % (48 + n, KP + 2 * n, KP + 2 * n + 1))
    a('buffer_store_dwordx2 v[48:49], v12, %s, s38 offen' % sr(SW, 4))
    a('buffer_store_dwordx2 v[50:51], v12, %s, s39 offen' % sr(SW, 4))
    st.mark()
    n_main = st.n
    st.flush(SW, sW8)
    a('s_endpgm')

    a.label('%s_helper' % name)
    st.n = 1
    vm = VM(a)
    for _ in range(8): vm.issue('x')
    sHW, sKS, sD0, sSG, sWO = 40, 41, 42, 43, 44
    a.srd(SG, 32, 512 * 3584)
    a.srd(SU, 34, 512 * 3584)
    a('s_and_b32 s%d, s%d, 3' % (sHW, sW8))
    a('s_and_b32 s%d, s2, 7' % sT0)
    a('s_lshl_b32 s%d, s%d, 2' % (sT0, sT0))
    a('s_add_u32 s%d, s%d, s%d' % (sKS, sT0, sHW))
    a('s_lshl_b32 s%d, s%d, 4' % (sT0, sKS))
    a('s_sub_u32 s%d, 768, s%d' % (sT1, sT0))
    a('s_cmp_ge_u32 s%d, 16' % sKS)
    a('s_cselect_b32 s%d, s%d, s%d' % (sD0, sT1, sT0))
    a('s_cselect_b32 s%d, -1, 1' % sSG)
    a('s_lshr_b32 s%d, s2, 3' % sT0)
    a('s_lshl_b32 s%d, s%d, 7' % (sT1, sT0))
    a('s_lshl_b32 s%d, s%d, 17' % (sWO, sT0))
    a('s_lshl_b32 s%d, s%d, 10' % (sT2, sKS))
    a('s_add_u32 s%d, s%d, s%d' % (sWO, sWO, sT2))
    a('s_add_u32 s%d, s%d, %d' % (sWO, sWO, WP_OFF))
    a('s_cmp_ge_u32 s2, 224')
    a('s_cselect_b32 s%d, %d, s%d' % (sT1, OOB, sT1))
    a('s_cselect_b32 s%d, %d, s%d' % (sWO, OOB, sWO))
    a('v_lshrrev_b32 v4, 3, v0')
    a('v_and_b32 v5, 7, v0')
    a('v_lshlrev_b32 v5, 4, v5')
    a('v_mov_b32 v6, s%d' % sD0)
    a('v_mad_i32_i24 v6, v4, s%d, v6' % sSG)
    a('s_lshl_b32 s%d, s%d, 3' % (sT2, sSG))
    a('v_add_u32 v7, s%d, v6' % sT2)
    a('v_mov_b32 v8, 0x100')
    a('v_cmp_eq_u32 vcc, 0x200, v6')
    a('v_cndmask_b32 v6, v6, v8, vcc')
    a('s_movk_i32 s%d, 3584' % sT2)
    a('v_mad_u32_u24 v6, v6, s%d, v5' % sT2)
    a('v_mad_u32_u24 v7, v7, s%d, v5' % sT2)
    a('s_lshl_b32 s%d, s%d, 12' % (sT2, sHW))
    a('s_add_u32 s45, s%d, %d' % (sT2, L_WST))
    for mat, S_ in enumerate((SG, SU)):
        for n in range(2):
            a('s_add_u32 m0, s45, %d' % (mat * 2048 + n * 1024))
            a('buffer_load_dwordx4 v%d, %s, s%d offen lds' % (6 + n, sr(S_, 4), sT1))
            vm.issue('w')
    a('s_and_b32 s%d, s%d, 1' % (sT0, sHW))
    a('s_lshl_b32 s%d, s%d, 10' % (sT0, sT0))
    a('s_add_u32 s%d, s%d, s%d' % (sT0, sT0, sPS))
    a('v_lshl_add_u32 v8, v2, 6, s%d' % sT0)
    a('s_lshl_b32 s%d, s%d, 2' % (sT0, sJ))
    a('v_add_u32 v9, s%d, v3' % sT0)
    a('v_mul_u32_u24 v8, v8, v9')
    a('v_cvt_f32_u32 v8, v8')
    a('v_mov_b32 v9, s%d' % sPHI)
    a('v_fmamk_f32 v8, v8, %s, v9' % fl(1 / 2048))
    a('v_cos_f32 v10, v8')
    a('v_sin_f32 v11, v8')
    a('v_mul_f32 v11, s%d, v11' % sLAM)
    a('s_mul_i32 s%d, s%d, %d' % (sT0, sHW, 16 * XROW))
    a('v_mul_u32_u24 v12, %d, v2' % XROW)
    a('v_add_u32 v13, s%d, v12' % sT0)
    a('v_lshl_add_u32 v12, v3, 4, v13')
    a('v_mov_b32 v14, 0')
    a('v_mov_b32 v15, 0')
    a('v_mov_b32 v16, 0')
    a('v_mov_b32 v17, 0')
    a('v_mov_b32 v18, 0x3f803f80')
    st.mark()
    vm.wait('x')
    a('s_barrier')
    st.mark()
    if stamps: a('s_waitcnt lgkmcnt(0)')
    lg = LG(a)
    a('ds_read_b32 v19, v13'); lg.issue('x0')
    for ks in range(14):
        a('ds_read_b128 %s, v12 offset:%d' % (vr(64 + 4 * ks, 4), ks * 64)); lg.issue(ks)
    for ks in range(16):
        lg.wait(ks)
        if ks + 14 < 16:
            a('ds_read_b128 %s, v12 offset:%d' % (vr(64 + 4 * (ks + 14), 4), (ks + 14) * 64)); lg.issue(ks + 14)
        for n in range(4):
            r = 64 + 4 * ks + n
            a('v_dot2c_f32_bf16 v%d, v%d, v%d' % (14 + (n & 1), r, r))
            a('v_dot2c_f32_bf16 v%d, v%d, v18' % (16 + (n & 1), r))
    a('v_add_f32 v14, v14, v15')
    a('v_add_f32 v16, v16, v17')
    for op in ('v_permlane32_swap_b32', 'v_permlane16_swap_b32'):
        a('v_mov_b32 v15, v14')
        a('v_mov_b32 v17, v16')
        a('%s v14, v15' % op)
        a('%s v16, v17' % op)
        a('v_add_f32 v14, v14, v15')
        a('v_add_f32 v16, v16, v17')
    a('v_mul_f32 v16, %s, v16' % fl(-1 / 512))
    a('v_mul_f32 v14, %s, v14' % fl(1 / 512))
    a('v_fma_f32 v14, -v16, v16, v14')
    a('v_max_f32 v14, 0, v14')
    a('v_add_f32 v14, %s, v14' % fl(1e-5))
    a('v_rsq_f32 v14, v14')
    a('v_lshlrev_b32 v19, 16, v19')
    a('v_add_f32 v19, v19, v16')
    a('s_lshl_b32 s%d, s%d, 6' % (sT0, sHW))
    a('s_add_u32 s%d, s%d, %d' % (sT0, sT0, L_R))
    a('v_lshl_add_u32 v20, v2, 2, s%d' % sT0)
    a('ds_write_b32 v20, v14')
    a('v_mul_f32 v19, v19, v14')
    a('v_mul_f32 v10, v10, v19')
    a('v_mul_f32 v11, v11, v19')
    for rot in (8, 4, 2, 1):
        a('v_add_f32_dpp v10, v10, v10 row_ror:%d row_mask:0xf bank_mask:0xf' % rot)
        a('v_add_f32_dpp v11, v11, v11 row_ror:%d row_mask:0xf bank_mask:0xf' % rot)
    a('v_sub_f32 v10, 0, v10')
    a('s_lshl_b32 s%d, s%d, 5' % (sT0, sHW))
    a('s_lshr_b32 s%d, s%d, 1' % (sT1, sHW))
    a('s_lshl_b32 s%d, s%d, 2' % (sT1, sT1))
    a('s_add_u32 s%d, s%d, s%d' % (sT0, sT0, sT1))
    a('s_add_u32 s%d, s%d, %d' % (sT0, sT0, L_PART))
    a('v_lshl_add_u32 v20, v3, 3, s%d' % sT0)
    a('v_xor_b32 v21, 4, v20')
    a('ds_write_b32 v20, v10')
    a('ds_write_b32 v21, v11')
    a('s_waitcnt lgkmcnt(0)')
    a('s_barrier')
    st.mark()
    if stamps: a('s_waitcnt lgkmcnt(0)')
    a('v_and_b32 v22, 31, v0')
    a('v_lshrrev_b32 v23, 5, v0')
    a('s_lshr_b32 s%d, s%d, 1' % (sT0, sHW))
    a('s_mul_i32 s%d, s%d, %d' % (sT0, sT0, 32 * XROW))
    a('v_mul_u32_u24 v22, %d, v22' % XROW)
    a('v_add_u32 v22, s%d, v22' % sT0)
    a('s_and_b32 s%d, s%d, 1' % (sT0, sHW))
    a('s_lshl_b32 s%d, s%d, 1' % (sT0, sT0))
    a('s_lshl_b32 s%d, s%d, 2' % (sT1, sJ))
    a('s_add_u32 s%d, s%d, s%d' % (sT0, sT0, sT1))
    a('s_lshl_b32 s%d, s%d, 5' % (sT1, sPS))
    a('s_add_u32 s%d, s%d, s%d' % (sT1, sT1, sT0))
    a('s_lshl_b32 s%d, s%d, 10' % (sT1, sT1))
    a('s_add_u32 s46, s%d, %d' % (sT1, XP_OFF))
    a('s_lshl_b32 s%d, s%d, 5' % (sT0, sT0))
    a('v_lshl_add_u32 v23, v23, 4, s%d' % sT0)
    a('s_cmp_ge_u32 s%d, 4' % sJ)
    a('s_cbranch_scc1 %s_xr' % name)
    a('v_add_u32 v24, v22, v23')
    a('ds_read_b128 v[32:35], v24')
    a('ds_read_b128 v[36:39], v24 offset:32')
    a('s_waitcnt lgkmcnt(0)')
    a('s_branch %s_xs' % name)
    a.label('%s_xr' % name)
    a('v_sub_u32 v23, 1536, v23')
    a('v_add_u32 v24, v22, v23')
    a('v_subrev_u32 v24, 48, v24')
    a('v_mov_b32 v25, 0x200')
    a('v_cmp_eq_u32 vcc, 0x400, v23')
    a('v_cndmask_b32 v25, v23, v25, vcc')
    a('v_add_u32 v25, v22, v25')
    a('ds_read_b128 v[40:43], v24 offset:32')
    a('ds_read_b32 v44, v25')
    a('ds_read_b128 v[48:51], v24')
    a('ds_read_b32 v52, v24 offset:16')
    a('s_mov_b32 s%d, 0xffff' % sT0)
    a('s_waitcnt lgkmcnt(0)')
    for f in range(2):
        for n in range(4):
            a('v_bfi_b32 v%d, s%d, v%d, v%d' % (32 + 4 * f + n, sT0, 40 + 8 * f + 4 - n, 40 + 8 * f + 3 - n))
    a.label('%s_xs' % name)
    a('buffer_store_dwordx4 v[32:35], v1, %s, s46 offen' % sr(SW, 4)); vm.issue('s')
    a('buffer_store_dwordx4 v[36:39], v1, %s, s46 offen offset:1024' % sr(SW, 4)); vm.issue('s')
    a('s_barrier')
    a('s_lshl_b32 s%d, s%d, 7' % (sT0, sPS))
    a('s_and_b32 s%d, s%d, 1' % (sT1, sHW))
    a('s_lshl_b32 s%d, s%d, 6' % (sT1, sT1))
    a('s_add_u32 s%d, s%d, s%d' % (sT0, sT0, sT1))
    a('s_add_u32 s%d, s%d, %d' % (sT0, sT0, MX_OFF))
    a('s_cmp_eq_u32 s%d, 0' % sJ)
    a('s_cselect_b32 s%d, s%d, %d' % (sT0, sT0, OOB))
    a('v_lshlrev_b32 v26, 2, v2')
    a('v_and_b32 v27, 3, v0')
    a('v_lshlrev_b32 v28, 3, v27')
    a('v_add_u32 v28, %d, v28' % L_PART)
    for w in range(4):
        a('ds_read_b64 %s, v28 offset:%d' % (vr(40 + 2 * w, 2), 32 * w))
    a('s_mov_b64 exec, 0xffff')
    a('buffer_store_dword v16, v26, %s, s%d offen' % (sr(SW, 4), sT0)); vm.issue('s')
    a('s_mov_b64 exec, -1')
    a('s_lshl_b32 s%d, s%d, 9' % (sT0, sJ))
    a('s_lshl_b32 s%d, s%d, 2' % (sT1, sP))
    a('s_add_u32 s%d, s%d, s%d' % (sT0, sT0, sT1))
    a('s_add_u32 s%d, s%d, %d' % (sT0, sT0, ZC_OFF))
    a('s_cmp_eq_u32 s%d, 0' % sHW)
    a('s_cselect_b32 s%d, s%d, %d' % (sT0, sT0, OOB))
    a('v_lshlrev_b32 v27, 7, v27')
    a('s_waitcnt lgkmcnt(0)')
    a('v_add_f32 v40, v40, v42')
    a('v_add_f32 v41, v41, v43')
    a('v_add_f32 v44, v44, v46')
    a('v_add_f32 v45, v45, v47')
    a('v_add_f32 v40, v40, v44')
    a('v_add_f32 v41, v41, v45')
    a('v_cvt_pk_f16_f32 v40, v40, v41')
    a('s_mov_b64 exec, 0xf')
    a('buffer_store_dword v40, v27, %s, s%d offen' % (sr(SW, 4), sT0)); vm.issue('s')
    a('s_mov_b64 exec, -1')
    a('v_lshrrev_b32 v22, 5, v0')
    a('v_bfe_u32 v23, v0, 4, 1')
    a('v_bfe_u32 v24, v0, 2, 2')
    a('v_and_b32 v25, 3, v0')
    a('v_lshlrev_b32 v22, 9, v22')
    a('v_lshl_add_u32 v22, v23, 11, v22')
    a('v_lshl_add_u32 v22, v24, 7, v22')
    a('v_lshl_add_u32 v22, v25, 3, v22')
    a('v_add_u32 v22, s45, v22')
    vm.wait('w')
    st.mark()
    if stamps: a('s_waitcnt lgkmcnt(0)')
    for f in range(4):
        for n in range(2):
            a('ds_read_b64_tr_b16 %s, v22 offset:%d' % (vr(64 + 4 * f + 2 * n, 2), n * 1024 + f * 32))
    for f in range(4):
        a('s_waitcnt lgkmcnt(%d)' % (6 - 2 * f))
        a('buffer_store_dwordx4 %s, v1, %s, s%d offen' % (vr(64 + 4 * f, 4), sr(SW, 4), sWO))
        if f < 3: a('s_add_u32 s%d, s%d, 32768' % (sWO, sWO))
    st.mark()
    st.flush(SW, sW8)
    a.label('%s_end' % name)
    a('s_endpgm')
    return a.text(), descriptor(name, 256, 256), (name, 256, 512, LDS)


def emit_dmat(a, D, vT2f, vH, tmp, vSign):
    a('v_mul_f32 v%d, v%d, v%d' % (tmp, vT2f, vH))
    for ks in range(4):
        for n in range(4):
            a('v_fmamk_f32 v%d, v%d, %s, v%d' % (tmp + 1, vT2f, fl(8.0 * ks + n), tmp))
            a('v_cos_f32 v%d, v%d' % (tmp + 2, tmp + 1))
            a('v_sin_f32 v%d, v%d' % (tmp + 3, tmp + 1))
            if ks == 0 and n == 0:
                a('v_cndmask_b32 v%d, v%d, v%d, vcc' % (tmp + 3, tmp + 3, vSign))
            a('v_cvt_pk_f16_f32 v%d, v%d, v%d' % (D + 4 * ks + n, tmp + 2, tmp + 3))

def emit_ident(a, PI, vM, vHi, tmp):
    a('v_lshlrev_b32 v%d, 3, v%d' % (tmp, vHi))
    a('v_sub_u32 v%d, v%d, v%d' % (tmp, vM, tmp))
    a('v_and_b32 v%d, 1, v%d' % (tmp + 1, tmp))
    a('v_lshlrev_b32 v%d, 4, v%d' % (tmp + 1, tmp + 1))
    a('v_mov_b32 v%d, 0x3f80' % (tmp + 2))
    a('v_lshlrev_b32 v%d, v%d, v%d' % (tmp + 1, tmp + 1, tmp + 2))
    a('v_ashrrev_i32 v%d, 1, v%d' % (tmp, tmp))
    for kap in range(2):
        for n in range(4):
            a('v_cmp_eq_u32 vcc, %d, v%d' % (8 * kap + n, tmp))
            a('v_cndmask_b32 v%d, 0, v%d, vcc' % (PI + 4 * kap + n, tmp + 1))

def gen_k23(name, stamps):
    a = Asm()
    LDS = 163840
    SW = 8
    sW8, sW, sTAU, sSL, sT1, sPAR, sPP, sG, sGM, sA, sB, sC = 3, 12, 13, 14, 15, 16, 17, 18, 19, 20, 21, 22
    sT1G0, sT1G1 = 23, 24
    SLOT = [65536, 98304, 131072, 0, 32768, 65536, 98304]
    a.kernel_begin(name)
    st = Stamps(a, stamps, 1)
    st.mark()
    a('s_load_dwordx2 s[4:5], s[0:1], 88')
    a('s_cmp_ge_u32 s2, 256')
    a('s_cbranch_scc1 %s_end' % name)
    a('v_lshrrev_b32 v2, 6, v0')
    a('v_and_b32 v0, 63, v0')
    a('v_readfirstlane_b32 s%d, v2' % sW8)
    a('v_lshlrev_b32 v1, 4, v0')
    a('s_and_b32 s%d, s2, 6' % sA)
    a('s_lshl_b32 s%d, s%d, 1' % (sA, sA))
    a('s_bfe_u32 s%d, s2, 0x20003' % sB)
    a('s_add_u32 s%d, s%d, s%d' % (sTAU, sA, sB))
    a('s_and_b32 s%d, s2, 1' % sA)
    a('s_lshl_b32 s%d, s%d, 3' % (sA, sA))
    a('s_lshr_b32 s%d, s2, 5' % sB)
    a('s_add_u32 s%d, s%d, s%d' % (sSL, sA, sB))
    a('s_and_b32 s%d, s%d, 3' % (sW, sW8))
    a('s_lshr_b32 s%d, s%d, 1' % (sG, sW))
    a('s_and_b32 s%d, s%d, 1' % (sPAR, sW))
    a('s_sub_u32 s%d, 32, s%d' % (sA, sTAU))
    a('s_xor_b32 s%d, s%d, 1' % (sB, sG))
    a('s_cmp_eq_u32 s%d, 0' % sTAU)
    a('s_cselect_b32 s%d, 16, s%d' % (sT1G1, sA))
    a('s_cselect_b32 s%d, s%d, s%d' % (sGM, sG, sB))
    a('s_cmp_eq_u32 s%d, 0' % sG)
    a('s_cselect_b32 s%d, s%d, s%d' % (sT1, sTAU, sT1G1))
    a('s_lshl_b32 s%d, s%d, 5' % (sA, sPAR))
    a('s_add_u32 s%d, s%d, s%d' % (sPP, sT1, sA))
    a('v_and_b32 v2, 31, v0')
    a('v_lshrrev_b32 v3, 5, v0')
    a('s_waitcnt lgkmcnt(0)')
    a.srd(SW, 4, WS_BYTES)
    a('s_cmp_ge_u32 s%d, 4' % sW8)
    a('s_cbranch_scc1 %s_loader' % name)

    def common_setup():
        a('v_lshl_add_u32 v4, v2, 1, s%d' % sPAR)
        a('s_cmp_eq_u32 s%d, 0' % sT1)
        a('s_cselect_b32 s%d, 64, 63' % sA)
        a('v_sub_u32 v5, s%d, v4' % sA)
        a('v_and_b32 v5, 63, v5')
        a('v_lshlrev_b32 v7, 31, v4')
        a('v_or_b32 v7, 1.0, v7')
        a('v_lshlrev_b32 v8, 31, v5')
        a('v_or_b32 v8, 1.0, v8')
        a('v_cvt_f32_u32 v4, v4')
        a('v_cvt_f32_u32 v5, v5')
        a('v_mul_f32 v4, %s, v4' % fl(1 / 64))
        a('v_mul_f32 v5, %s, v5' % fl(1 / 64))
        a('v_cvt_f32_u32 v6, v3')
        a('v_mul_f32 v6, 4.0, v6')
        a('v_bfe_u32 v9, v0, 2, 2')
        a('v_lshlrev_b32 v9, 6, v9')
        a('v_lshl_add_u32 v9, v3, 9, v9')
        a('v_bfe_u32 v10, v0, 4, 1')
        a('v_lshl_add_u32 v9, v10, 5, v9')
        a('v_and_b32 v10, 3, v0')
        a('v_lshl_add_u32 v9, v10, 3, v9')

    XH, DL, DR, PI, CM, ACC, AF = 128, 16, 32, 48, 56, 72, 104
    NAF = 6
    vm = VM(a)
    a('s_lshl_b32 s%d, s%d, 7' % (sA, sT1))
    a('s_add_u32 s%d, s%d, %d' % (sA, sA, ZC_OFF))
    a('v_lshlrev_b32 v10, 4, v3')
    for ks in range(4):
        a('buffer_load_dwordx4 %s, v10, %s, s%d offen offset:%d' % (vr(AF + 4 * ks, 4), sr(SW, 4), sA, 32 * ks)); vm.issue('zc')
    a('s_lshl_b32 s%d, s%d, 7' % (sA, sPP))
    a('s_add_u32 s%d, s%d, %d' % (sA, sA, MX_OFF))
    a('v_lshlrev_b32 v10, 2, v2')
    a('buffer_load_dword v11, v10, %s, s%d offen' % (sr(SW, 4), sA)); vm.issue('zc')
    a('s_lshl_b32 s%d, s%d, 15' % (sA, sPP))
    a('s_add_u32 s%d, s%d, %d' % (sA, sA, XP_OFF))
    a('s_add_u32 s%d, s%d, 16384' % (sB, sA))
    order = []
    for b in range(8): order += [b, 8 + b]
    for b in range(8):
        for half, sreg in ((0, sA), (1, sB)):
            beta = b + 8 * half
            for kap in range(2):
                a('buffer_load_dwordx4 %s, v1, %s, s%d offen offset:%d' % (vr(XH + 8 * beta + 4 * kap, 4), sr(SW, 4), sreg, (b & 1) * 2048 + kap * 1024))
                vm.issue(('x', beta))
        if b & 1:
            a('s_add_u32 s%d, s%d, 4096' % (sA, sA))
            a('s_add_u32 s%d, s%d, 4096' % (sB, sB))
    common_setup()
    a('v_cmp_eq_u32 vcc, 0, v3')
    emit_dmat(a, DL, 4, 6, 12, 7)
    emit_dmat(a, DR, 5, 6, 12, 8)
    emit_ident(a, PI, 2, 3, 12)
    a('v_cmp_ne_u32 vcc, 0, v2')
    a('v_cndmask_b32 v8, 0, -1, vcc')
    a('s_lshl_b32 s%d, s%d, 15' % (sA, sG))
    a('s_lshl_b32 s%d, s%d, 15' % (sB, sGM))
    a('v_add_u32 v10, s%d, v9' % sB)
    a('v_add_u32 v9, s%d, v9' % sA)
    a('v_mov_b32 v6, 0')
    a('v_mov_b32 v7, 0')
    a('v_add_u32 v4, 65536, v1')
    a('v_add_u32 v5, 131072, v1')
    a('s_mul_i32 s%d, s%d, 112' % (sA, sPP))
    a('s_mul_i32 s%d, s%d, 7' % (sB, sSL))
    a('s_add_u32 s%d, s%d, s%d' % (sA, sA, sB))
    a('s_lshl_b32 s%d, s%d, 10' % (sA, sA))
    a('s_add_u32 s%d, s%d, %d' % (sC, sA, ACT_OFF))
    st.mark()
    vm.wait('zc')
    for i in range(16): a('v_mov_b32 v%d, v11' % (CM + i))
    for ks in range(4):
        a('v_mfma_f32_32x32x16_f16 %s, %s, %s, %s' % (vr(CM, 16), vr(AF + 4 * ks, 4), vr(DL + 4 * ks, 4), vr(CM, 16)))
    a('s_barrier')
    st.mark()
    if stamps: a('s_waitcnt lgkmcnt(0)')
    lg = LG(a)
    frags = [(n, ks) for n in range(16) for ks in range(4)]
    state = {'rd': 0}
    def zread():
        f = state['rd']
        if f >= len(frags): return
        n, ks = frags[f]
        if ks == 0 and n in (4, 8, 12): a('s_barrier')
        beta = order[n]
        base = 9 if beta < 8 else 10
        reg = AF + 4 * (f % NAF)
        for q in range(2):
            a('ds_read_b64_tr_b16 %s, v%d offset:%d' % (vr(reg + 2 * q, 2), base, (beta & 7) * 4096 + ks * 1024 + q * 256))
            lg.issue(('z', f))
        state['rd'] += 1
    def post(n):
        beta = order[n]; acc = ACC + 16 * (n & 1); ops = []
        for i in range(8):
            ops.append('v_cvt_pk_bf16_f32 v%d, v%d, v%d' % (XH + 8 * beta + i, acc + 2 * i, acc + 2 * i + 1))
        dots = ['v_dot2c_f32_bf16 v%d, v%d, v%d' % (6 + (i & 1), XH + 8 * beta + i, XH + 8 * beta + i) for i in range(8)]
        return ops[:4] + ops[4:] + dots
    for _ in range(NAF - 1): zread()
    for n in range(16):
        beta = order[n]; acc = vr(ACC + 16 * (n & 1), 16); D = DL if beta < 8 else DR
        pend = post(n - 1) if n else []
        for ks in range(4):
            f = 4 * n + ks
            lg.wait(('z', f))
            reg = AF + 4 * (f % NAF)
            if n == 0:
                for i in range(4): a('v_and_b32 v%d, v8, v%d' % (reg + i, reg + i))
            a('v_mfma_f32_32x32x16_f16 %s, %s, %s, %s' % (acc, vr(reg, 4), vr(D + 4 * ks, 4), acc if ks else vr(CM, 16)))
            zread()
            if ks >= 2:
                for o in pend[:4]: a(o)
                pend = pend[4:]
        vm.wait(('x', beta))
        for kap in range(2):
            a('v_mfma_f32_32x32x16_bf16 %s, %s, %s, %s' % (acc, vr(PI + 4 * kap, 4), vr(XH + 8 * beta + 4 * kap, 4), acc))
            for o in pend[:4]: a(o)
            pend = pend[4:]
    a('s_barrier')
    st.mark()
    if stamps: a('s_waitcnt lgkmcnt(0)')
    WF, NWF = 16, 8
    TMP, OUT = 104, 124
    lg = LG(a)
    wst = {'rd': 0}
    def wread():
        f = wst['rd']
        if f >= 224: return
        i, ks = divmod(f, 32)
        if ks == 0 and i > 0: a('s_barrier')
        base = {0: 1, 1: 4, 2: 5}[SLOT[i] >> 16]
        a('ds_read_b128 %s, v%d offset:%d' % (vr(WF + 4 * (f % NWF), 4), base, (SLOT[i] & 65535) + ks * 1024))
        lg.issue(('w', f))
        wst['rd'] += 1
    for _ in range(NWF - 1): wread()
    for o in post(15): a(o)
    stats = ['v_add_f32 v6, v6, v7', 'v_mov_b32 v7, v6', 'v_permlane32_swap_b32 v6, v7', 'v_add_f32 v6, v6, v7',
             'v_mov_b32 v7, %s' % fl(1e-5), 'v_fmamk_f32 v6, v6, %s, v7' % fl(1 / 512), 'v_rsq_f32 v7, v6',
             'v_mul_f32 v7, %s, v7' % fl(-1.4426950408889634)]
    def epi(i):
        acc = ACC + 16 * (i & 1); ops = []
        for hf in range(2):
            R = range(4 * hf, 4 * hf + 4)
            ops += ['v_mul_f32 v%d, v7, v%d' % (TMP + r, acc + r) for r in R]
            ops += ['v_exp_f32 v%d, v%d' % (TMP + r, TMP + r) for r in R]
            ops += ['v_mul_f32 v%d, v%d, v%d' % (TMP + 8 + r, acc + r, acc + 8 + r) for r in R]
            ops += ['v_fma_f32 v%d, v%d, v6, v6' % (TMP + r, TMP + r) for r in R]
            ops += ['v_rcp_f32 v%d, v%d' % (TMP + r, TMP + r) for r in R]
            ops += ['v_mul_f32 v%d, v%d, v%d' % (TMP + r, TMP + r, TMP + 8 + r) for r in R]
            ops += ['v_cvt_pk_bf16_f32 v%d, v%d, v%d' % (OUT + r // 2, TMP + r, TMP + r + 1) for r in R if r % 2 == 0]
        ops.append('buffer_store_dwordx4 %s, v1, %s, s%d offen %s' % (vr(OUT, 4), sr(SW, 4), sC, ACT_FLAGS))
        ops.append('s_add_u32 s%d, s%d, 1024' % (sC, sC))
        return ops
    for i in range(7):
        acc = vr(ACC + 16 * (i & 1), 16)
        pend = epi(i - 1) if i else list(stats)
        for ks in range(32):
            f = 32 * i + ks
            lg.wait(('w', f))
            a('v_mfma_f32_32x32x16_bf16 %s, %s, %s, %s' % (acc, vr(WF + 4 * (f % NWF), 4), vr(XH + 4 * ks, 4), acc if ks else '0'))
            wread()
            if ks >= 3:
                for o in pend[:2]: a(o)
                pend = pend[2:]
        assert not pend
    st.mark()
    for o in epi(6): a(o)
    st.mark()
    st.flush(SW, sW8)
    a('s_endpgm')

    a.label('%s_loader' % name)
    st.n = 1
    vm = VM(a)
    sZS, sZD, sWS = 25, 26, 27
    a('s_lshl_b32 s%d, s%d, 15' % (sA, sT1))
    a('s_lshl_b32 s%d, s%d, 11' % (sB, sPAR))
    a('s_add_u32 s%d, s%d, s%d' % (sZS, sA, sB))
    a('s_add_u32 s%d, s%d, %d' % (sZS, sZS, Z_OFF))
    a('s_lshl_b32 s%d, s%d, 15' % (sA, sG))
    a('s_add_u32 s%d, s%d, s%d' % (sZD, sA, sB))
    for b in range(8):
        a('s_add_u32 m0, s%d, %d' % (sZD, 4096 * b))
        for q in range(2):
            a('buffer_load_dwordx4 v1, %s, s%d offen offset:%d lds' % (sr(SW, 4), sZS, 1024 * q)); vm.issue(('z', b >> 1))
        a('s_add_u32 s%d, s%d, 4096' % (sZS, sZS))
    LX, LD, LPI, LAF, LACC = 16, 24, 40, 48, 64
    a('s_lshl_b32 s%d, s%d, 15' % (sA, sPP))
    a('s_lshl_b32 s%d, s%d, 11' % (sB, sSL))
    a('s_add_u32 s%d, s%d, s%d' % (sA, sA, sB))
    a('s_add_u32 s%d, s%d, %d' % (sA, sA, XP_OFF))
    for kap in range(2):
        a('buffer_load_dwordx4 %s, v1, %s, s%d offen offset:%d' % (vr(LX + 4 * kap, 4), sr(SW, 4), sA, 1024 * kap)); vm.issue('x')
    a('s_mul_i32 s%d, s%d, %d' % (sWS, sSL, 7 * 32768))
    a('s_lshl_b32 s%d, s%d, 13' % (s_w13, sW))
    a('s_add_u32 s%d, s%d, s%d' % (sWS, sWS, s_w13))
    a('s_add_u32 s%d, s%d, %d' % (sWS, sWS, WP_OFF))
    def wissue(i):
        for hq in range(2):
            a('s_add_u32 m0, s%d, %d' % (s_w13, SLOT[i] + 4096 * hq))
            a('s_add_u32 s%d, s%d, %d' % (sA, sWS, 32768 * i + 4096 * hq))
            for q in range(4):
                a('buffer_load_dwordx4 v1, %s, s%d offen offset:%d lds' % (sr(SW, 4), sA, 1024 * q)); vm.issue(('w', i))
    vm.wait(('z', 0)); a('s_barrier')
    common_setup()
    a('s_cmp_ge_u32 s%d, 8' % sSL)
    a('s_cselect_b32 s%d, s%d, s%d' % (sA, sGM, sG))
    a('s_cselect_b64 vcc, -1, 0')
    a('v_cndmask_b32 v4, v4, v5, vcc')
    a('v_cndmask_b32 v7, v7, v8, vcc')
    a('s_lshl_b32 s%d, s%d, 15' % (sA, sA))
    a('s_and_b32 s%d, s%d, 7' % (sB, sSL))
    a('s_lshl_b32 s%d, s%d, 12' % (sB, sB))
    a('s_add_u32 s%d, s%d, s%d' % (sA, sA, sB))
    a('v_add_u32 v9, s%d, v9' % sA)
    vm.wait(('z', 1)); a('s_barrier')
    a('v_cmp_eq_u32 vcc, 0, v3')
    emit_dmat(a, LD, 4, 6, 12, 7)
    vm.wait(('z', 2)); a('s_barrier')
    wissue(0)
    emit_ident(a, LPI, 2, 3, 12)
    a('v_add_u32 v8, s%d, v2' % sSL)
    a('v_cmp_ne_u32 vcc, 0, v8')
    a('v_cndmask_b32 v8, 0, -1, vcc')
    vm.wait(('z', 3)); a('s_barrier')
    wissue(1)
    for ks in range(4):
        for q in range(2):
            a('ds_read_b64_tr_b16 %s, v9 offset:%d' % (vr(LAF + 4 * ks + 2 * q, 2), ks * 1024 + q * 256))
    wissue(2)
    a('s_waitcnt lgkmcnt(0)')
    for i in range(16): a('v_and_b32 v%d, v8, v%d' % (LAF + i, LAF + i))
    for ks in range(4):
        a('v_mfma_f32_32x32x16_f16 %s, %s, %s, %s' % (vr(LACC, 16), vr(LAF + 4 * ks, 4), vr(LD + 4 * ks, 4), vr(LACC, 16) if ks else '0'))
    vm.wait('x')
    for kap in range(2):
        a('v_mfma_f32_32x32x16_bf16 %s, %s, %s, %s' % (vr(LACC, 16), vr(LPI + 4 * kap, 4), vr(LX + 4 * kap, 4), vr(LACC, 16)))
    a('s_lshl_b32 s%d, s%d, 5' % (sA, sSL))
    a('s_sub_u32 s%d, 768, s%d' % (sB, sA))
    a('s_cmp_ge_u32 s%d, 8' % sSL)
    a('s_cselect_b32 s%d, s%d, s%d' % (sA, sB, sA))
    a('s_cselect_b32 s%d, -1, 1' % sB)
    a('s_cselect_b64 vcc, -1, 0')
    a('s_cselect_b32 s%d, 4, 0' % sC)
    a('s_lshl_b32 s%d, s%d, 7' % (sB, sB))
    a('s_sub_u32 s%d, s%d, s%d' % (sA, sA, sC))
    a('s_lshl_b32 s%d, s%d, 7' % (sA, sA))
    a('s_lshl_b32 s%d, s%d, 16' % (sC, sPP))
    a('s_add_u32 s%d, s%d, s%d' % (sA, sA, sC))
    a('s_add_u32 s%d, s%d, %d' % (sA, sA, HB_OFF))
    a('v_xor_b32 v10, 1, v3')
    a('v_cndmask_b32 v10, v3, v10, vcc')
    a('v_lshlrev_b32 v10, 9, v10')
    a('v_lshl_add_u32 v10, v2, 2, v10')
    a('s_cmp_eq_u32 s%d, 8' % sSL)
    a('s_cselect_b32 s%d, 0, 32768' % sC)
    a('v_mov_b32 v11, s%d' % sC)
    a('v_mov_b32 v12, 32768')
    a('v_cmp_eq_u32 vcc, 0, v3')
    a('v_cndmask_b32 v11, v12, v11, vcc')
    a('v_add_u32 v11, v11, v10')
    a('s_sub_u32 s%d, s%d, 32768' % (sC, sA))
    vm.wait(('w', 0)); a('s_barrier')
    st.mark()
    wissue_tmp = sA
    a('s_mov_b32 s30, s%d' % sA)
    wissue(3); wissue(4)
    a('s_mul_i32 s31, s%d, 5' % sB)
    for r in range(16):
        if r == 0:
            a('buffer_store_dword v%d, v11, %s, s%d offen' % (LACC, sr(SW, 4), sC))
        else:
            a('s_add_u32 s30, s30, s%d' % (sB if r & 3 else 31))
            a('buffer_store_dword v%d, v10, %s, s30 offen' % (LACC + r, sr(SW, 4)))
        vm.issue('h')
    for i in range(1, 7):
        vm.wait(('w', i)); a('s_barrier')
        if i in (2, 3): wissue(i + 3)
    st.mark()
    st.flush(SW, sW8)
    a.label('%s_end' % name)
    a('s_endpgm')
    return a.text(), descriptor(name, 256, 256), (name, 256, 512, LDS)

s_w13 = 28
ACT_FLAGS = 'sc1'

def gen_k4(name, stamps):
    a = Asm()
    LDS = 131072
    SW, SD, SO = 8, 12, 16
    sW, sG0, sDT, sA, sB, sC, sA0, sA1, sWD, sLB = 3, 20, 21, 22, 23, 24, 25, 26, 27, 28
    a.kernel_begin(name)
    st = Stamps(a, stamps, 2)
    st.mark()
    a('s_load_dwordx4 s[4:7], s[0:1], 64')
    a('s_load_dwordx2 s[30:31], s[0:1], 88')
    a('s_cmp_ge_u32 s2, 256')
    a('s_cbranch_scc1 %s_end' % name)
    a('v_lshrrev_b32 v2, 6, v0')
    a('v_mov_b32 v15, v0')
    a('v_and_b32 v0, 63, v0')
    a('v_readfirstlane_b32 s%d, v2' % sW)
    a('v_lshlrev_b32 v1, 4, v0')
    a('s_and_b32 s%d, s2, 6' % sA)
    a('s_lshl_b32 s%d, s%d, 2' % (sA, sA))
    a('s_bfe_u32 s%d, s2, 0x30003' % sB)
    a('s_add_u32 s%d, s%d, s%d' % (sG0, sA, sB))
    a('s_lshl_b32 s%d, s%d, 1' % (sG0, sG0))
    a('s_and_b32 s%d, s2, 1' % sA)
    a('s_lshl_b32 s%d, s%d, 2' % (sA, sA))
    a('s_lshr_b32 s%d, s2, 6' % sB)
    a('s_add_u32 s%d, s%d, s%d' % (sDT, sA, sB))
    a('s_and_b32 s%d, s%d, 1' % (sA, sW))
    a('s_add_u32 s%d, s%d, s%d' % (sB, sG0, sA))
    a('s_xor_b32 s%d, s%d, 1' % (sC, sB))
    a('s_mul_i32 s29, s%d, 28' % sW)
    a('s_mul_i32 s%d, s%d, 112' % (sA0, sB))
    a('s_mul_i32 s%d, s%d, 112' % (sA1, sC))
    for r in (sA0, sA1):
        a('s_add_u32 s%d, s%d, s29' % (r, r))
        a('s_lshl_b32 s%d, s%d, 10' % (r, r))
        a('s_add_u32 s%d, s%d, %d' % (r, r, ACT_OFF))
    a('s_mul_i32 s%d, s%d, %d' % (sWD, sW, 28 * 16384))
    a('s_lshl_b32 s%d, s%d, 7' % (sA, sDT))
    a('s_add_u32 s%d, s%d, s%d' % (sWD, sWD, sA))
    a('s_lshl_b32 s%d, s%d, 15' % (sLB, sW))
    a('v_and_b32 v2, 31, v0')
    a('v_lshrrev_b32 v3, 5, v0')
    a('v_bfe_u32 v4, v0, 4, 1')
    a('v_bfe_u32 v5, v0, 2, 2')
    a('v_and_b32 v6, 3, v0')
    a('v_lshlrev_b32 v7, 12, v3')
    a('v_lshl_add_u32 v7, v5, 10, v7')
    a('v_lshl_add_u32 v7, v4, 6, v7')
    a('v_lshl_add_u32 v7, v6, 4, v7')
    a('s_waitcnt lgkmcnt(0)')
    a.srd(SW, 30, WS_BYTES)
    a.srd(SD, 4, 1792 * 1024)
    ACC, AF, HR, BR = 16, 80, 104, 128
    NB, PD, NL = 14, 12, 16
    vm = VM(a); lg = LG(a)
    def issue(f):
        if f >= 28: return
        for tg, sreg in ((0, sA0), (1, sA1)):
            a('buffer_load_dwordx4 %s, v1, %s, s%d offen offset:%d' % (vr(BR + 8 * (f % NB) + 4 * tg, 4), sr(SW, 4), sreg, (f & 3) * 1024))
            vm.issue(f)
        for n in range(2):
            a('s_add_u32 m0, s%d, %d' % (sLB, (f % NL) * 2048 + n * 1024))
            a('s_add_u32 s%d, s%d, %d' % (sA, sWD, f * 16384 + n * 8192))
            a('buffer_load_dwordx4 v7, %s, s%d offen lds' % (sr(SD, 4), sA))
            vm.issue(f)
        if f & 3 == 3:
            a('s_add_u32 s%d, s%d, 4096' % (sA0, sA0))
            a('s_add_u32 s%d, s%d, 4096' % (sA1, sA1))
    for f in range(PD): issue(f)
    a.srd(SO, 6, 2048 * 1024)
    a('s_lshr_b32 s%d, s%d, 1' % (sA, sW))
    a('s_lshl_b32 s%d, s%d, 8' % (sC, sA))
    a('s_add_u32 s%d, s%d, s%d' % (sC, sC, sLB))
    a('v_lshlrev_b32 v8, 9, v3')
    a('v_lshl_add_u32 v8, v5, 6, v8')
    a('v_lshl_add_u32 v8, v4, 5, v8')
    a('v_lshl_add_u32 v8, v6, 3, v8')
    a('v_add_u32 v8, s%d, v8' % sC)
    a('v_xor_b32 v9, 256, v8')
    a('s_lshl_b32 s%d, s%d, 16' % (sC, sB))
    a('s_lshl_b32 s29, s%d, 13' % sDT)
    a('s_add_u32 s%d, s%d, s29' % (sC, sC))
    a('s_lshl_b32 s29, s%d, 12' % sA)
    a('s_add_u32 s%d, s%d, s29' % (sC, sC))
    a('s_add_u32 s32, s%d, %d' % (sC, HB_OFF))
    a('v_lshlrev_b32 v10, 9, v3')
    a('v_lshl_add_u32 v10, v2, 2, v10')
    def trread(f):
        if f >= 28: return
        vm.wait(f)
        for db in range(2):
            for n in range(2):
                a('ds_read_b64_tr_b16 %s, v%d offset:%d' % (vr(AF + 8 * (f % 3) + 4 * db + 2 * n, 2), 8 + db, (f % NL) * 2048 + n * 1024))
                lg.issue(f)
    st.mark()
    if stamps: a('s_waitcnt lgkmcnt(0)')
    trread(0)
    st.mark()
    if stamps: a('s_waitcnt lgkmcnt(0)')
    for f in range(28):
        issue(f + PD)
        if f + PD == 28:
            for r in range(16):
                a('buffer_load_dword v%d, v10, %s, s32 offen offset:%d' % (HR + r, sr(SW, 4), (8 * (r >> 2) + (r & 3)) * 128)); vm.issue('h')
        trread(f + 1)
        lg.wait(f)
        for db in range(2):
            for tg in range(2):
                acc = vr(ACC + 32 * db + 16 * tg, 16)
                a('v_mfma_f32_32x32x16_bf16 %s, %s, %s, %s' % (acc, vr(AF + 8 * (f % 3) + 4 * db, 4), vr(BR + 8 * (f % NB) + 4 * tg, 4), acc if f else '0'))
    st.mark()
    PW = 64 * 272
    a('s_mul_i32 s%d, s%d, %d' % (sC, sW, PW))
    a('s_and_b32 s%d, s%d, 1' % (sB, sW))
    a('s_lshr_b32 s%d, s%d, 1' % (sA, sW))
    a('v_mul_u32_u24 v11, 272, v2')
    a('v_lshl_add_u32 v11, v3, 4, v11')
    a('v_add_u32 v11, s%d, v11' % sC)
    for db in range(2):
        for tg in range(2):
            a('s_xor_b32 s29, s%d, %d' % (sB, tg))
            a('s_mul_i32 s29, s29, %d' % (32 * 272))
            a('s_xor_b32 s33, s%d, %d' % (sA, db))
            a('s_lshl_b32 s33, s33, 7')
            a('s_add_u32 s29, s29, s33')
            a('v_add_u32 v%d, s29, v11' % (4 + 2 * db + tg))
    vm.wait('h')
    a('s_barrier')
    for db, tg in ((0, 1), (1, 0), (1, 1), (0, 0)):
        acc = ACC + 32 * db + 16 * tg
        if (db, tg) == (0, 0):
            for r in range(16): a('v_add_f32 v%d, v%d, v%d' % (acc + r, acc + r, HR + r))
        for q in range(4):
            a('ds_write_b128 v%d, %s offset:%d' % (4 + 2 * db + tg, vr(acc + 4 * q, 4), 32 * q))
    a('v_lshrrev_b32 v12, 3, v15')
    a('v_and_b32 v13, 7, v15')
    a('v_mul_u32_u24 v14, 272, v12')
    a('v_lshl_add_u32 v14, v13, 5, v14')
    a('v_lshlrev_b32 v12, 16, v12')
    a('v_lshl_add_u32 v12, v13, 4, v12')
    a('s_lshl_b32 s%d, s%d, 10' % (sA, sG0))
    a('s_lshl_b32 s%d, s%d, 7' % (sB, sDT))
    a('s_add_u32 s%d, s%d, s%d' % (sA, sA, sB))
    a('s_waitcnt lgkmcnt(0)')
    a('s_barrier')
    for ps in range(2):
        for w in range(4):
            for q in range(2):
                a('ds_read_b128 %s, v14 offset:%d' % (vr(128 + 32 * ps + 8 * w + 4 * q, 4), w * PW + ps * 32 * 272 + 16 * q))
    for ps in range(2):
        a('s_waitcnt lgkmcnt(%d)' % (8 - 8 * ps))
        b = 128 + 32 * ps
        for i in range(8):
            a('v_add_f32 v%d, v%d, v%d' % (b + i, b + i, b + 8 + i))
            a('v_add_f32 v%d, v%d, v%d' % (b + 16 + i, b + 16 + i, b + 24 + i))
        for i in range(8):
            a('v_add_f32 v%d, v%d, v%d' % (b + i, b + i, b + 16 + i))
        for n in range(4):
            a('v_cvt_pk_bf16_f32 v%d, v%d, v%d' % (b + 8 + n, b + 2 * n, b + 2 * n + 1))
        a('buffer_store_dwordx4 %s, v12, %s, s%d offen offset:%d' % (vr(b + 8, 4), sr(SO, 4), sA, 1024 * ps))
    st.mark()
    st.flush(SW, sW)
    a.label('%s_end' % name)
    a('s_endpgm')
    return a.text(), descriptor(name, 256, 256), (name, 256, 256, LDS)

def build(path, stamps, verbose=False, extra=None):
    header = ''.join(l for l in open('sequential_preLN__spectral_fnet__swiglu_ffn__prompt.s.ref') if l.startswith(';') and 'launch' not in l and 'grid=' not in l)
    body, descs, launches = '', [], []
    for g, nm in ((gen_k1, 'fnet_dft_a_kernel'), (gen_k23, 'fnet_dft_b_glu_kernel'), (gen_k4, 'fnet_down_kernel')):
        t, d, l = g(nm, stamps)
        t, n = hazard.fix(t, verbose)
        body += t + '\n'; descs.append(d); launches.append(l)
    if extra: body, descs, launches = extra(body, descs, launches)
    open(path, 'w').write(build_file(launches, body, descs, header))

if __name__ == '__main__':
    build('v1_dbg.s', True, '-v' in sys.argv)
    build('v1.s', False)
```

```python
import sys, struct
from asmlib import *
import hazard
from gen1 import VM, LG, Stamps, fl, emit_dmat

WS_BYTES = 268435456
Z_OFF = 0
WP_OFF = 1 << 20
WD_OFF = WP_OFF + 112 * 32768
ZC_OFF = WD_OFF + 8 * 229376
MX_OFF = ZC_OFF + 4096
FLAG_OFF = MX_OFF + 16384
NFLAG = 4
ACT_OFF = 8 << 20
STAMP_OFF = 128 << 20
OOB = 0x20000000
OPT = dict(st_w='sc1', st_z='', pf_self=True, pf_next=True)

def gen_k1(name, stamps, next_kernel=None, next_bytes=0):
    a = Asm()
    L_WST = 65536
    L_EX = L_WST + 32768
    L_R = L_EX + 8192
    LDS = L_R + 512
    SX, SG, SD, SW = 8, 12, 16, 20
    sW8, sP, sJ, sPS, sT0, sT1, sT2, sLAM, sPHI, sPB, sPHB = 3, 24, 25, 26, 27, 28, 29, 30, 31, 40, 41
    a.kernel_begin(name)
    st = Stamps(a, stamps, 0)
    st.mark()
    a('s_load_dwordx2 s[4:5], s[0:1], 0')
    a('s_load_dwordx4 s[32:35], s[0:1], 48')
    a('s_load_dwordx2 s[36:37], s[0:1], 64')
    a('s_load_dwordx2 s[6:7], s[0:1], 88')
    a('s_cmp_ge_u32 s2, 256')
    a('s_cbranch_scc1 %s_end' % name)
    a('v_lshrrev_b32 v2, 6, v0')
    if OPT['pf_self']:
        a('s_getpc_b64 s[42:43]')
        a('v_lshlrev_b32 v4, 4, v0')
        a('v_mov_b32 v5, s43')
        a('v_min_u32 v4, %s_end - %s - 64, v4' % (name, name))
        a('v_add_co_u32 v4, vcc, s42, v4')
        a('v_addc_co_u32 v5, vcc, 0, v5, vcc')
        a('global_load_dword v255, v[4:5], off')
    a('v_and_b32 v0, 63, v0')
    a('v_readfirstlane_b32 s%d, v2' % sW8)
    a('v_lshlrev_b32 v1, 4, v0')
    a('s_and_b32 s%d, s2, 6' % sT0)
    a('s_lshl_b32 s%d, s%d, 1' % (sT0, sT0))
    a('s_bfe_u32 s%d, s2, 0x20003' % sT1)
    a('s_add_u32 s%d, s%d, s%d' % (sT0, sT0, sT1))
    a('s_sub_u32 s%d, 32, s%d' % (sT1, sT0))
    a('s_cmp_eq_u32 s%d, 0' % sT0)
    a('s_cselect_b32 s%d, 16, s%d' % (sT1, sT1))
    a('s_bitcmp1_b32 s2, 5')
    a('s_cselect_b32 s%d, s%d, s%d' % (sP, sT1, sT0))
    a('s_and_b32 s%d, s2, 1' % sT0)
    a('s_lshl_b32 s%d, s%d, 2' % (sT0, sT0))
    a('s_lshr_b32 s%d, s2, 6' % sT1)
    a('s_add_u32 s%d, s%d, s%d' % (sJ, sT0, sT1))
    a('s_sub_u32 s%d, 64, s%d' % (sT0, sP))
    a('s_cmp_eq_u32 s%d, 0' % sP)
    a('s_cselect_b32 s%d, 32, s%d' % (sPB, sT0))
    a('s_cselect_b32 s%d, 0, 1.0' % sLAM)
    a('s_cselect_b32 s%d, 0, %s' % (sPHB, fl(-0.25)))
    a('s_bitcmp1_b32 s%d, 1' % sW8)
    a('s_cselect_b32 s%d, s%d, s%d' % (sPS, sPB, sP))
    a('s_cselect_b32 s%d, s%d, 0' % (sPHI, sPHB))
    a('v_and_b32 v2, 15, v0')
    a('v_lshrrev_b32 v3, 4, v0')
    a('s_cmp_lt_u32 s%d, 4' % sW8)
    a('s_cbranch_scc1 %s_main' % name)

    vm = VM(a)
    if OPT['pf_self']: vm.issue('pf')
    sHW, sXS, sXD, sWO1, sWO2, sST = 44, 45, 46, 47, 48, 49
    a('s_and_b32 s%d, s%d, 3' % (sHW, sW8))
    a('v_lshrrev_b32 v4, 3, v0')
    a('v_and_b32 v5, 7, v0')
    a('v_lshrrev_b32 v6, 1, v4')
    a('v_xor_b32 v6, v5, v6')
    a('v_lshlrev_b32 v6, 4, v6')
    a('v_lshl_add_u32 v6, v4, 16, v6')
    a('v_xor_b32 v7, 0x80040, v6')
    a('s_and_b32 s%d, s%d, 1' % (sT0, sHW))
    a('s_lshl_b32 s%d, s%d, 10' % (sT0, sT0))
    a('s_add_u32 s%d, s%d, s%d' % (sT0, sT0, sPS))
    a('s_lshl_b32 s%d, s%d, 10' % (sXS, sT0))
    a('s_lshl_b32 s%d, s%d, 11' % (sXD, sHW))
    a('s_waitcnt lgkmcnt(0)')
    a.srd(SX, 4, 2048 * 1024)
    for c in range(8):
        for q in range(2):
            a('s_add_u32 m0, s%d, %d' % (sXD, c * (8192 - 128) + q * 1024))
            a('buffer_load_dwordx4 v%d, %s, s%d offen offset:%d lds' % (6 + q, sr(SX, 4), sXS, c * 128))
            vm.issue(('x', c >> 1))
    a.srd(SW, 6, WS_BYTES)
    a('s_bitcmp1_b32 s%d, 0' % sHW)
    a('s_cselect_b32 s%d, s34, s32' % SG)
    a('s_cselect_b32 s%d, s35, s33' % (SG + 1))
    a('s_and_b32 s%d, s%d, 0xffff' % (SG + 1, SG + 1))
    a('s_mov_b32 s%d, %d' % (SG + 2, 512 * 3584))
    a('s_mov_b32 s%d, 0x20000' % (SG + 3))
    a('s_and_b32 s%d, s2, 7' % sT0)
    a('s_lshl_b32 s%d, s%d, 2' % (sT0, sT0))
    a('s_add_u32 s%d, s%d, s%d' % (sT0, sT0, sHW))
    a('s_lshl_b32 s%d, s%d, 10' % (sWO1, sT0))
    a('s_lshr_b32 s%d, s%d, 1' % (sT0, sT0))
    a('s_lshl_b32 s%d, s%d, 5' % (sT0, sT0))
    a('s_sub_u32 s%d, 768, s%d' % (sT1, sT0))
    a('s_cmp_ge_u32 s%d, 256' % sT0)
    a('s_cselect_b32 s%d, s%d, s%d' % (sT0, sT1, sT0))
    a('s_cselect_b32 s%d, -1, 1' % sT1)
    a('v_mov_b32 v8, s%d' % sT0)
    a('v_mad_i32_i24 v8, v4, s%d, v8' % sT1)
    a('s_mul_i32 s50, s%d, %d' % (sT1, 8 * 3584))
    a('s_movk_i32 s%d, 3584' % sT2)
    a('v_lshlrev_b32 v5, 4, v5')
    a('v_mad_u32_u24 v9, v8, s%d, v5' % sT2)
    a('v_cmp_eq_u32 vcc, 0x200, v8')
    a('v_subrev_u32 v8, %d, v9' % (256 * 3584))
    a('v_cndmask_b32 v8, v9, v8, vcc')
    a('v_add_u32 v9, s50, v9')
    a('v_add_u32 v10, s50, v9')
    a('v_add_u32 v11, s50, v10')
    a('s_lshr_b32 s%d, s2, 3' % sT0)
    a('s_lshl_b32 s%d, s%d, 7' % (sT1, sT0))
    a('s_lshl_b32 s%d, s%d, 17' % (sT0, sT0))
    a('s_add_u32 s%d, s%d, s%d' % (sWO1, sWO1, sT0))
    a('s_add_u32 s%d, s%d, %d' % (sWO1, sWO1, WP_OFF))
    a('s_cmp_ge_u32 s2, 224')
    a('s_cselect_b32 s%d, %d, s%d' % (sT1, OOB, sT1))
    a('s_cselect_b32 s%d, %d, s%d' % (sWO1, OOB, sWO1))
    a('s_lshl_b32 s%d, s%d, 13' % (sST, sHW))
    a('s_add_u32 s%d, s%d, %d' % (sST, sST, L_WST))
    for n in range(4):
        a('s_add_u32 m0, s%d, %d' % (sST, n * 1024))
        a('buffer_load_dwordx4 v%d, %s, s%d offen lds' % (8 + n, sr(SG, 4), sT1))
        vm.issue('w1')
    a.srd(SD, 36, 1792 * 1024)
    a('s_sub_u32 s%d, 255, s2' % sT0)
    a('s_lshl_b32 s%d, s%d, 1' % (sT0, sT0))
    a('s_and_b32 s%d, s%d, 1' % (sT1, sHW))
    a('s_add_u32 s%d, s%d, s%d' % (sT0, sT0, sT1))
    a('s_cmp_ge_u32 s%d, 2' % sHW)
    a('s_cselect_b32 s%d, s%d, 448' % (sT0, sT0))
    a('s_and_b32 s%d, s%d, 7' % (sT1, sT0))
    a('s_lshr_b32 s%d, s%d, 3' % (sT2, sT0))
    a('s_mul_i32 s%d, s%d, 229376' % (sWO2, sT1))
    a('s_lshl_b32 s50, s%d, 12' % sT2)
    a('s_add_u32 s%d, s%d, s50' % (sWO2, sWO2))
    a('s_add_u32 s%d, s%d, %d' % (sWO2, sWO2, WD_OFF))
    a('s_and_b32 s50, s%d, 7' % sT2)
    a('s_mul_i32 s50, s50, 14')
    a('s_lshr_b32 s%d, s%d, 3' % (sT2, sT2))
    a('s_add_u32 s50, s50, s%d' % sT2)
    a('s_lshl_b32 s50, s50, 14')
    a('s_lshl_b32 s%d, s%d, 7' % (sT1, sT1))
    a('s_add_u32 s50, s50, s%d' % sT1)
    a('s_cmp_ge_u32 s%d, 448' % sT0)
    a('s_cselect_b32 s50, %d, s50' % OOB)
    a('s_cselect_b32 s%d, %d, s%d' % (sWO2, OOB, sWO2))
    a('v_lshl_add_u32 v12, v4, 10, v5')
    for n in range(4):
        a('s_add_u32 m0, s%d, %d' % (sST, 4096 + n * 1024))
        a('s_add_u32 s51, s50, %d' % ((n & 1) * 8192 + (n >> 1) * 7 * 16384))
        a('buffer_load_dwordx4 v12, %s, s51 offen lds' % sr(SD, 4))
        vm.issue('w2')
    a('v_lshrrev_b32 v13, 1, v2')
    a('v_lshlrev_b32 v14, 7, v2')
    a('v_add_u32 v14, s%d, v14' % sXD)
    a('v_lshl_add_u32 v16, v13, 4, v14')
    a('v_xor_b32 v13, v3, v13')
    a('v_lshl_add_u32 v14, v13, 4, v14')
    a('v_xor_b32 v15, 64, v14')
    for i in range(4): a('v_mov_b32 v%d, 0x3f803f80' % (20 + i))
    a('v_mov_b32 v17, 0')
    a('v_mov_b32 v18, 0')
    st.mark()
    GQ, GS, HF = 24, 28, 32
    for sgi in range(4):
        vm.wait(('x', sgi))
        a('s_barrier')
        for q in range(4):
            c = 2 * sgi + (q >> 1)
            a('ds_read_b128 %s, v%d offset:%d' % (vr(HF + 16 * (sgi & 1) + 4 * q, 4), 14 + (q & 1), c * 8192))
        if sgi == 0: a('ds_read_u16_d16_hi v17, v16')
        if sgi == 2: a('ds_read_u16_d16_hi v18, v16 offset:32768')
        ex = 1 if sgi in (0, 2) else 0
        for q in range(4):
            a('s_waitcnt lgkmcnt(%d)' % (3 - q + ex))
            f = vr(HF + 16 * (sgi & 1) + 4 * q, 4)
            first = sgi == 0 and q == 0
            a('v_mfma_f32_16x16x32_bf16 %s, %s, %s, %s' % (vr(GQ, 4), f, f, '0' if first else vr(GQ, 4)))
            a('v_mfma_f32_16x16x32_bf16 %s, %s, v[20:23], %s' % (vr(GS, 4), f, '0' if first else vr(GS, 4)))
    a('v_and_b32 v13, 1, v0')
    a('v_cmp_eq_u32 vcc, 1, v13')
    a('v_and_b32 v13, 2, v0')
    a('v_cmp_eq_u32 s[52:53], 2, v13')
    a('v_lshrrev_b32 v13, 2, v2')
    a('v_cmp_eq_u32 s[54:55], v13, v3')
    a('s_lshl_b32 s%d, s%d, 6' % (sT0, sHW))
    a('s_add_u32 s%d, s%d, %d' % (sT0, sT0, L_R))
    a('v_lshl_add_u32 v19, v2, 2, s%d' % sT0)
    for G in (GQ, GS):
        a('v_cndmask_b32 v%d, v%d, v%d, vcc' % (G, G, G + 1))
        a('v_cndmask_b32 v%d, v%d, v%d, vcc' % (G + 2, G + 2, G + 3))
        a('v_cndmask_b32 v%d, v%d, v%d, s[52:53]' % (G, G, G + 2))
    a('v_mul_f32 v%d, %s, v%d' % (GS, fl(-1 / 512), GS))
    a('v_mul_f32 v%d, %s, v%d' % (GQ, fl(1 / 512), GQ))
    a('v_fma_f32 v%d, -v%d, v%d, v%d' % (GQ, GS, GS, GQ))
    a('v_max_f32 v%d, 0, v%d' % (GQ, GQ))
    a('v_add_f32 v%d, %s, v%d' % (GQ, fl(1e-5), GQ))
    a('v_rsq_f32 v%d, v%d' % (GQ, GQ))
    a('s_waitcnt lgkmcnt(0)')
    a('v_add_f32 v17, v17, v%d' % GS)
    a('v_mul_f32 v17, v17, v%d' % GQ)
    a('s_mov_b64 exec, s[54:55]')
    a('ds_write_b32 v19, v%d' % GQ)
    a('ds_write_b32 v19, v17 offset:256')
    a('s_mov_b64 exec, -1')
    a('s_waitcnt lgkmcnt(0)')
    a('s_barrier')
    st.mark()
    if stamps: a('s_waitcnt lgkmcnt(0)')
    a('v_bfe_u32 v32, v0, 2, 2')
    a('v_and_b32 v33, 3, v0')
    a('v_lshlrev_b32 v32, 7, v32')
    a('v_add_u32 v32, s%d, v32' % sST)
    a('v_lshl_add_u32 v35, v3, 9, v32')
    a('v_lshl_add_u32 v35, v33, 4, v35')
    a('v_lshl_add_u32 v32, v33, 3, v32')
    a('v_and_b32 v33, 1, v3')
    a('v_lshl_add_u32 v32, v33, 11, v32')
    a('v_lshrrev_b32 v33, 1, v3')
    a('v_lshl_add_u32 v32, v33, 9, v32')
    vm.wait('w1')
    for f in range(4):
        for n in range(2):
            a('ds_read_b64_tr_b16 %s, v32 offset:%d' % (vr(64 + 4 * f + 2 * n, 2), n * 1024 + f * 32))
    for f in range(4):
        a('s_waitcnt lgkmcnt(%d)' % (6 - 2 * f))
        a('buffer_store_dwordx4 %s, v1, %s, s%d offen %s' % (vr(64 + 4 * f, 4), sr(SW, 4), sWO1, OPT['st_w'])); vm.issue('s')
        if f < 3: a('s_add_u32 s%d, s%d, 32768' % (sWO1, sWO1))
    a('s_barrier')
    a('s_cmp_lt_u32 s%d, 2' % sHW)
    a('s_cbranch_scc1 %s_h01' % name)
    vm.wait('w2')
    for f in range(4):
        for n in range(2):
            a('ds_read_b64_tr_b16 %s, v35 offset:%d' % (vr(80 + 4 * f + 2 * n, 2), 4096 + n * 2048 + (f >> 1) * 64 + (f & 1) * 8))
    for f in range(4):
        a('s_waitcnt lgkmcnt(%d)' % (6 - 2 * f))
        a('buffer_store_dwordx4 %s, v1, %s, s%d offen offset:%d %s' % (vr(80 + 4 * f, 4), sr(SW, 4), sWO2, 1024 * f, OPT['st_w']))
    a('s_branch %s_hmx' % name)
    a.label('%s_h01' % name)
    a('s_cmp_eq_u32 s%d, 0' % sHW)
    a('s_cbranch_scc1 %s_h0' % name)
    for i in range(4): a('v_mov_b32 v%d, 0' % (40 + i))
    a('s_mul_i32 s%d, s2, %d' % (sT0, NFLAG * 512))
    a('s_add_u32 s%d, s%d, %d' % (sT0, sT0, FLAG_OFF))
    for i in range(NFLAG // 2):
        a('buffer_store_dwordx4 v[40:43], v1, %s, s%d offen offset:%d' % (sr(SW, 4), sT0, 1024 * i))
    if next_kernel and OPT['pf_next']:
        a('s_getpc_b64 s[42:43]')
        a.label('%s_pc' % name)
        a('s_add_u32 s42, s42, %s - %s_pc' % (next_kernel, name))
        a('s_addc_u32 s43, s43, 0')
        a('s_lshr_b32 s%d, s2, 3' % sT0)
        a('s_lshl_b32 s%d, s%d, 10' % (sT0, sT0))
        a('v_add_u32 v44, s%d, v1' % sT0)
        a('v_min_u32 v44, %s_end - %s, v44' % (next_kernel, next_kernel))
        a('v_mov_b32 v45, s43')
        a('v_add_co_u32 v44, vcc, s42, v44')
        a('v_addc_co_u32 v45, vcc, 0, v45, vcc')
        a('global_load_dword v46, v[44:45], off')
    a('s_branch %s_hmx' % name)
    a.label('%s_h0' % name)
    a('v_lshlrev_b32 v40, 2, v2')
    a('v_add_u32 v40, %d, v40' % (L_R + 256))
    for q in range(4): a('ds_read_b32 v%d, v40 offset:%d' % (44 + q, 64 * q))
    a('s_lshl_b32 s%d, s%d, 2' % (sT0, sJ))
    a('v_add_u32 v41, s%d, v3' % sT0)
    a('v_cvt_f32_u32 v42, v41')
    a('v_mul_f32 v42, %s, v42' % fl(1 / 2048))
    for sg, (sres, sph) in enumerate(((sP, None), (sPB, sPHB))):
        a('v_lshl_add_u32 v43, v2, 6, s%d' % sres)
        a('v_cvt_f32_u32 v43, v43')
        if sph: a('v_fma_f32 v43, v43, v42, s%d' % sph)
        else: a('v_mul_f32 v43, v43, v42')
        a('v_fmamk_f32 v48, v42, %s, v43' % fl(1024.0))
        a('v_cos_f32 v%d, v43' % (50 + 4 * sg))
        a('v_cos_f32 v%d, v48' % (51 + 4 * sg))
        a('v_sin_f32 v%d, v43' % (52 + 4 * sg))
        a('v_sin_f32 v%d, v48' % (53 + 4 * sg))
    a('s_waitcnt lgkmcnt(0)')
    a('v_mul_f32 v58, v56, v46')
    a('v_mul_f32 v59, v52, v44')
    a('v_fmac_f32 v58, v57, v47')
    a('v_fmac_f32 v59, v53, v45')
    a('v_mul_f32 v58, s%d, v58' % sLAM)
    a('v_mul_f32 v59, s%d, v59' % sLAM)
    a('v_fma_f32 v58, -v50, v44, v58')
    a('v_fma_f32 v59, -v54, v46, v59')
    a('v_fma_f32 v58, -v51, v45, v58')
    a('v_fma_f32 v59, -v55, v47, v59')
    for rot in (8, 4, 2, 1):
        a('v_add_f32_dpp v58, v58, v58 row_ror:%d row_mask:0xf bank_mask:0xf' % rot)
        a('v_add_f32_dpp v59, v59, v59 row_ror:%d row_mask:0xf bank_mask:0xf' % rot)
    a('v_cvt_pk_f16_f32 v58, v58, v59')
    a('v_lshlrev_b32 v41, 7, v41')
    a('s_lshl_b32 s%d, s%d, 2' % (sT0, sP))
    a('s_add_u32 s%d, s%d, %d' % (sT0, sT0, ZC_OFF))
    a('s_mov_b32 exec_lo, 0x10001')
    a('s_mov_b32 exec_hi, 0x10001')
    a('buffer_store_dword v58, v41, %s, s%d offen' % (sr(SW, 4), sT0))
    a('s_mov_b64 exec, -1')
    a.label('%s_hmx' % name)
    a('s_lshl_b32 s%d, s%d, 8' % (sT0, sPS))
    a('s_and_b32 s%d, s%d, 1' % (sT1, sHW))
    a('s_lshl_b32 s%d, s%d, 7' % (sT1, sT1))
    a('s_add_u32 s%d, s%d, s%d' % (sT0, sT0, sT1))
    a('s_add_u32 s%d, s%d, %d' % (sT0, sT0, MX_OFF))
    a('s_cmp_eq_u32 s%d, 0' % sJ)
    a('s_cselect_b32 s%d, s%d, %d' % (sT0, sT0, OOB))
    a('v_lshlrev_b32 v19, 3, v2')
    a('v_mov_b32 v%d, v18' % (GS + 1))
    a('s_mov_b64 exec, s[54:55]')
    a('buffer_store_dwordx2 %s, v19, %s, s%d offen' % (vr(GS, 2), sr(SW, 4), sT0))
    a('s_mov_b64 exec, -1')
    st.mark()
    st.flush(SW, sW8)
    a('s_endpgm')

    a.label('%s_main' % name)
    st.n = 1
    WA, WB = 128, 160
    TC, TS, TN = 104, 112, 120
    ACC = 192
    XF = 32
    a('s_and_b32 s%d, s%d, 1' % (sT0, sW8))
    a('s_lshl_b32 s%d, s%d, 4' % (sT0, sT0))
    a('s_lshl_b32 s%d, s%d, 5' % (sT1, sJ))
    a('s_add_u32 s%d, s%d, s%d' % (sT0, sT0, sT1))
    a('v_add_u32 v4, s%d, v2' % sT0)
    a('v_mov_b32 v5, 0x100')
    a('v_cmp_eq_u32 vcc, 0, v4')
    a('v_cvt_f32_u32 v6, v3')
    a('v_mul_f32 v6, 0x41000000, v6')
    a('v_cndmask_b32 v4, v4, v5, vcc')
    a('v_cvt_f32_u32 v5, v4')
    a('v_mul_f32 v5, %s, v5' % fl(1 / 512))
    a('v_mul_f32 v6, v6, v5')
    a('v_and_b32 v8, 1, v4')
    a('v_cmp_eq_u32 vcc, 1, v8')
    a('s_mov_b32 s%d, 0x80008000' % sT0)
    a('v_lshlrev_b32 v7, 31, v4')
    a('v_or_b32 v7, 1.0, v7')
    a('v_mul_lo_u32 v16, v8, s%d' % sT0)
    a('v_bfe_u32 v17, v4, 1, 1')
    a('v_mul_lo_u32 v17, v17, s%d' % sT0)
    a('v_xor_b32 v16, v16, v17')
    for ks in range(4):
        for n in range(4):
            i = 4 * ks + n
            a('v_fmamk_f32 v8, v5, %s, v6' % fl(32 * ks + 2 * n))
            a('v_add_f32 v9, v8, v5')
            a('v_cos_f32 v10, v8')
            a('v_cos_f32 v11, v9')
            a('v_sin_f32_e64 v12, -v8')
            a('v_sin_f32_e64 v13, -v9')
            a('v_cvt_pk_bf16_f32 v%d, v10, v11' % (WA + i))
            a('v_cvt_pk_bf16_f32 v%d, v12, v13' % (WB + i))
            a('v_cndmask_b32 v12, v%d, v%d, vcc' % (WA + i, WB + i))
            a('v_cndmask_b32 v13, v%d, v%d, vcc' % (WB + i, WA + i))
            a('v_xor_b32 v%d, v17, v12' % (WA + 16 + i))
            a('v_xor_b32 v%d, v16, v13' % (WB + 16 + i))
    a('s_lshr_b32 s%d, s%d, 1' % (sT0, sW8))
    a('s_lshl_b32 s%d, s%d, 12' % (sT1, sT0))
    a('v_lshrrev_b32 v8, 1, v2')
    a('v_xor_b32 v8, v3, v8')
    a('v_lshlrev_b32 v8, 4, v8')
    a('v_lshl_add_u32 v8, v2, 7, v8')
    a('v_add_u32 v18, s%d, v8' % sT1)
    a('v_xor_b32 v19, 64, v18')
    a('s_lshl_b32 s%d, s%d, 7' % (sT1, sT0))
    a('s_add_u32 s%d, s%d, %d' % (sT1, sT1, L_R))
    a('v_lshl_add_u32 v20, v3, 4, s%d' % sT1)
    a('s_lshl_b32 s%d, s%d, 11' % (sT1, sW8))
    a('s_add_u32 s%d, s%d, %d' % (sT2, sT1, L_EX))
    a('v_add_u32 v21, s%d, v1' % sT2)
    a('v_xor_b32 v22, 4096, v21')
    a('v_lshlrev_b32 v23, 15, v2')
    a('v_lshl_add_u32 v23, v3, 3, v23')
    a('s_lshl_b32 s%d, s%d, 12' % (sT1, sJ))
    a('s_lshl_b32 s%d, s%d, 7' % (sT2, sP))
    a('s_add_u32 s%d, s%d, s%d' % (sT1, sT1, sT2))
    a('s_lshl_b32 s%d, s%d, 5' % (sT2, sW8))
    a('s_add_u32 s38, s%d, s%d' % (sT1, sT2))
    a('s_add_u32 s38, s38, %d' % Z_OFF)
    a('s_add_u32 s39, s38, %d' % (16 * 32768))
    a('v_lshlrev_b32 v8, 8, v3')
    a('v_add_u32 v8, s%d, v8' % sPS)
    a('v_cvt_f32_u32 v8, v8')
    a('v_cvt_f32_u32 v9, v2')
    for tb in range(2):
        a('v_add_f32 v10, %s, v9' % fl(16.0 * tb))
        a('v_mul_f32 v10, %s, v10' % fl(1 / 2048))
        a('v_fma_f32 v11, v10, v8, s%d' % sPHI)
        for n in range(4):
            s1 = [(0, 1), (2, 3), (16, 17), (18, 19)][n]
            a('v_fmamk_f32 v12, v10, %s, v11' % fl(64.0 * s1[0]))
            a('v_fmamk_f32 v13, v10, %s, v11' % fl(64.0 * s1[1]))
            a('v_cos_f32 v14, v12')
            a('v_cos_f32 v15, v13')
            a('v_sin_f32 v12, v12')
            a('v_sin_f32 v13, v13')
            a('v_cvt_pk_f16_f32 v%d, v14, v15' % (TC + 4 * tb + n))
            a('v_cvt_pk_f16_f32 v%d, v12, v13' % (TS + 4 * tb + n))
            a('v_xor_b32 v%d, 0x80008000, v%d' % (TN + 4 * tb + n, TS + 4 * tb + n))
    a('s_waitcnt lgkmcnt(0)')
    a.srd(SW, 6, WS_BYTES)
    st.mark()
    if stamps: a('s_waitcnt lgkmcnt(0)')
    lg = LG(a)
    def rd(sgi):
        a('s_barrier')
        for ks in range(4 * sgi, 4 * sgi + 4):
            for rb in range(2):
                a('ds_read_b128 %s, v%d offset:%d' % (vr(XF + 8 * (ks % 8) + 4 * rb, 4), 18 + (ks & 1), (ks >> 1) * 8192 + rb * 2048))
                lg.issue(('x', ks, rb))
    rd(0)
    for ks in range(16):
        if ks % 4 == 2 and ks < 12: rd(ks // 4 + 1)
        for rb in range(2):
            lg.wait(('x', ks, rb))
            for part, W in enumerate((WA, WB)):
                acc = vr(ACC + 16 * (ks >> 3) + 8 * part + 4 * rb, 4)
                a('v_mfma_f32_16x16x32_bf16 %s, %s, %s, %s' % (acc, vr(XF + 8 * (ks % 8) + 4 * rb, 4), vr(W + 4 * (ks & 7), 4), acc if ks & 7 else '0'))
    st.mark()
    a('s_barrier')
    a('ds_read_b128 v[24:27], v20')
    a('ds_read_b128 v[28:31], v20 offset:64')
    for i in (0, 1, 2, 3, 8, 9, 10, 11, 4, 5, 6, 7, 12, 13, 14, 15):
        a('v_fmac_f32 v%d, v7, v%d' % (ACC + i, ACC + 16 + i))
    a('s_waitcnt lgkmcnt(0)')
    for part in range(2):
        for i in range(8):
            a('v_mul_f32 v%d, v%d, v%d' % (ACC + 8 * part + i, ACC + 8 * part + i, 24 + i))
        for n in range(4):
            a('v_cvt_pk_f16_f32 v%d, v%d, v%d' % (56 + 4 * part + n, ACC + 8 * part + 2 * n, ACC + 8 * part + 2 * n + 1))
        if part == 0:
            for tb in range(2):
                a('v_mfma_f32_16x16x32_f16 %s, v[56:59], %s, 0' % (vr(32 + 4 * tb, 4), vr(TN + 4 * tb, 4)))
            for tb in range(2):
                a('v_mfma_f32_16x16x32_f16 %s, v[56:59], %s, 0' % (vr(40 + 4 * tb, 4), vr(TC + 4 * tb, 4)))
    KP, SN = 40, 32
    for tb in range(2):
        a('v_mfma_f32_16x16x32_f16 %s, v[60:63], %s, %s' % (vr(SN + 4 * tb, 4), vr(TC + 4 * tb, 4), vr(SN + 4 * tb, 4)))
    for tb in range(2):
        a('v_mfma_f32_16x16x32_f16 %s, v[60:63], %s, %s' % (vr(KP + 4 * tb, 4), vr(TS + 4 * tb, 4), vr(KP + 4 * tb, 4)))
    a('ds_write_b128 v21, %s' % vr(SN, 4))
    a('ds_write_b128 v21, %s offset:1024' % vr(SN + 4, 4))
    a('s_waitcnt lgkmcnt(0)')
    a('s_barrier')
    a('ds_read_b128 v[48:51], v22')
    a('ds_read_b128 v[52:55], v22 offset:1024')
    for tb in range(2):
        a('s_waitcnt lgkmcnt(%d)' % (1 - tb))
        for i in range(4 * tb, 4 * tb + 4):
            a('v_fma_f32 v%d, v%d, s%d, v%d' % (KP + i, 48 + i, sLAM, KP + i))
        for n in range(2 * tb, 2 * tb + 2):
            a('v_cvt_pk_f16_f32 v%d, v%d, v%d' % (64 + n, KP + 2 * n, KP + 2 * n + 1))
        a('buffer_store_dwordx2 %s, v23, %s, s%d offen %s' % (vr(64 + 2 * tb, 2), sr(SW, 4), 38 + tb, OPT['st_z']))
    st.mark()
    st.flush(SW, sW8)
    a.label('%s_end' % name)
    a('s_endpgm')
    return a.text(), descriptor(name, 256, 256), (name, 256, 512, LDS)

def gen_empty(name, slot):
    a = Asm()
    a.kernel_begin(name)
    st = Stamps(a, True, slot)
    st.mark()
    a('s_load_dwordx2 s[4:5], s[0:1], 88')
    a('s_cmp_ge_u32 s2, 256')
    a('s_cbranch_scc1 %s_end' % name)
    a('v_lshrrev_b32 v2, 6, v0')
    a('s_nop 0')
    a('v_readfirstlane_b32 s3, v2')
    a('s_waitcnt lgkmcnt(0)')
    a.srd(8, 4, WS_BYTES)
    st.flush(8, 3)
    a.label('%s_end' % name)
    a('s_endpgm')
    return a.text(), descriptor(name, 256, 256), (name, 256, 512, 163840)

if __name__ == '__main__':
    for tag, o in (('a', {}), ('b', dict(pf_self=False, pf_next=False)), ('c', dict(st_w='')), ('d', dict(st_z='sc1'))):
        save = dict(OPT); OPT.update(o)
        t, d, l = gen_k1('k1_kernel', True, 'k2_kernel')
        t, n = hazard.fix(t, '-v' in sys.argv and tag == 'a')
        t2, d2, l2 = gen_empty('k2_kernel', 1)
        open('k1v2%s.s' % tag, 'w').write(build_file([l, l2], t + '\n' + t2, [d, d2]))
        OPT.update(save)
```

```python
import sys, struct
from asmlib import *
import hazard
from gen1 import VM, LG, Stamps, fl

WS_BYTES = 268435456
Z_OFF = 0
WP_OFF = 1 << 20
WD_OFF = WP_OFF + 112 * 32768
ZC_OFF = WD_OFF + 8 * 229376
MX_OFF = ZC_OFF + 4096
FLAG_OFF = MX_OFF + 16384
NFLAG = 4
FG, FK = 8448, 128
ACT_OFF = 8 << 20
STAMP_OFF = 128 << 20
OOB = 0x20000000
OPT = dict(map=0, st_w='sc1', st_z='sc1', st_s='', pf_self=True, pf_next=True, burst=4, pre=1, prio=1, nlast=6, wbar=6)

def weave(a, valu, dma, pre, burst, after_pre):
    for o in valu[:pre]: a(o)
    valu = valu[pre:]
    after_pre()
    for g in dma[:burst]:
        for o in g: a(o)
    dma = dma[burst:]
    step = max(1, min(12, len(valu) // (len(dma) + 1)))
    for g in dma:
        for o in valu[:step]: a(o)
        valu = valu[step:]
        for o in g: a(o)
    for o in valu: a(o)

def gen_k1(name, stamps, next_kernel=None, nstub=0):
    a = Asm()
    L_WF = 0
    L_X = 16384
    L_WST = L_X + 65536
    L_EX = L_WST + 16384
    EXW = 32 * 144
    L_R = L_EX + 4 * EXW
    LDS = L_R + 1024
    SX, SG, SD, SW = 8, 12, 16, 20
    sW8, sP, sJ, sPS, sT0, sT1, sT2, sLAM, sPHI, sPB, sPHB = 3, 24, 25, 26, 27, 28, 29, 30, 31, 40, 41
    sTAU, sPHA, sSC, sROW, sSTEP = 57, 58, 59, 60, 61
    a.kernel_begin(name)
    st = Stamps(a, stamps, 0)
    st.mark()
    a('s_load_dwordx2 s[4:5], s[0:1], 0')
    a('s_load_dwordx4 s[32:35], s[0:1], 48')
    a('s_load_dwordx2 s[36:37], s[0:1], 64')
    a('s_load_dwordx2 s[6:7], s[0:1], 88')
    a('s_cmp_ge_u32 s2, 256')
    a('s_cbranch_scc1 %s_end' % name)
    a('v_lshrrev_b32 v2, 6, v0')
    if OPT['pf_self']:
        a('s_getpc_b64 s[42:43]')
        a('v_lshlrev_b32 v4, 7, v0')
        a('v_min_u32 v4, %s_end - %s - 64, v4' % (name, name))
        a('v_add_co_u32 v4, vcc, s42, v4')
        a('v_mov_b32 v5, s43')
        a('v_and_b32 v0, 63, v0')
        a('v_addc_co_u32 v5, vcc, 0, v5, vcc')
        a('global_load_dword v62, v[4:5], off')
    else:
        a('v_and_b32 v0, 63, v0')
    a('v_readfirstlane_b32 s%d, v2' % sW8)
    a('v_lshlrev_b32 v1, 4, v0')
    if OPT['map'] < 2:
        a('s_and_b32 s%d, s2, 6' % sT0)
        a('s_lshl_b32 s%d, s%d, 1' % (sT0, sT0))
        a('s_bfe_u32 s%d, s2, 0x20003' % sT1)
        a('s_add_u32 s%d, s%d, s%d' % (sTAU, sT0, sT1))
        a('s_and_b32 s%d, s2, 32' % sT0)
    else:
        a('s_and_b32 s%d, s2, 4' % sT0)
        a('s_lshl_b32 s%d, s%d, 1' % (sT0, sT0))
        a('s_bfe_u32 s%d, s2, 0x30003' % sT1)
        a('s_add_u32 s%d, s%d, s%d' % (sTAU, sT0, sT1))
        a('s_and_b32 s%d, s2, 64' % sT0)
        a('s_lshr_b32 s%d, s%d, 1' % (sT0, sT0))
    a('s_add_u32 s%d, s%d, s%d' % (sP, sT0, sTAU))
    a('s_cmp_eq_u32 s%d, 32' % sP)
    a('s_cselect_b32 s%d, 48, s%d' % (sP, sP))
    a('s_sub_u32 s%d, 64, s%d' % (sT0, sP))
    a('s_cmp_eq_u32 s%d, 0' % sP)
    a('s_cselect_b32 s%d, 32, s%d' % (sPB, sT0))
    a('s_bitcmp1_b32 s%d, 1' % sW8)
    a('s_cselect_b32 s%d, s%d, s%d' % (sPS, sPB, sP))
    a('s_and_b32 s%d, s2, %d' % (sT0, 1 if OPT['map'] < 2 else 3))
    a('s_lshl_b32 s%d, s%d, %d' % (sT0, sT0, 2 if OPT['map'] < 2 else 1))
    a('s_lshr_b32 s%d, s2, %d' % (sT1, 6 if OPT['map'] < 2 else 7))
    a('s_add_u32 s%d, s%d, s%d' % (sJ, sT0, sT1))
    a('v_and_b32 v2, 15, v0')
    a('v_lshrrev_b32 v3, 4, v0')
    a('v_lshrrev_b32 v4, 3, v0')
    a('v_and_b32 v5, 7, v0')
    PAR = ['s_cmp_eq_u32 s%d, 0' % sP, 's_cselect_b32 s%d, 0, 1.0' % sLAM, 's_cselect_b32 s%d, 0, %s' % (sPHB, fl(-0.25)),
           's_cmp_eq_u32 s%d, 48' % sP, 's_cselect_b32 s%d, %s, s%d' % (sPHB, fl(-0.125), sPHB), 's_cselect_b32 s%d, %s, 0' % (sPHA, fl(-0.125)),
           's_cselect_b32 s%d, %s, 1.0' % (sSC, fl(0.5 ** 0.5)),
           's_add_u32 s%d, s%d, s%d' % (sROW, sP, sTAU), 's_cmp_eq_u32 s%d, 48' % sP, 's_cselect_b32 s%d, 1, s%d' % (sROW, sROW),
           's_cmp_eq_u32 s%d, 0' % sTAU, 's_cselect_b32 s%d, 32, 1' % sSTEP]
    a('s_cmp_lt_u32 s%d, 4' % sW8)
    a('s_cbranch_scc1 %s_main' % name)
    a('s_lshl_b32 s%d, s%d, 5' % (sT0, sJ))
    a('v_lshl_add_u32 v8, v2, 1, s%d' % sT0)
    a('v_mov_b32 v9, 0x100')
    a('v_cmp_eq_u32 vcc, 0, v8')
    a('s_and_b32 s44, s%d, 3' % sW8)
    a('s_lshl_b32 s%d, s44, 5' % sT0)
    a('v_cndmask_b32 v9, v8, v9, vcc')
    a('v_or_b32 v8, 1, v8')
    a('v_lshl_add_u32 v10, v3, 3, s%d' % sT0)
    a('v_cvt_f32_u32 v10, v10')
    a('s_lshl_b32 s%d, s44, 12' % sT0)
    a('v_add_u32 v13, s%d, v1' % sT0)
    for cb in range(2):
        e = (9, 8)[cb]
        a('v_cvt_f32_u32 v%d, v%d' % (e, e))
        a('v_mul_f32 v%d, %s, v%d' % (e, fl(-1 / 512), e))
        a('v_mul_f32 v11, v10, v%d' % e)
        for n in range(4):
            a('v_add_f32 v12, v11, v%d' % e)
            a('v_cos_f32 v14, v11')
            a('v_sin_f32 v16, v11')
            a('v_cos_f32 v15, v12')
            a('v_sin_f32 v17, v12')
            a('v_add_f32 v11, v12, v%d' % e)
            a('v_cvt_pk_bf16_f32 v%d, v14, v15' % (32 + 8 * cb + n))
            a('v_cvt_pk_bf16_f32 v%d, v16, v17' % (36 + 8 * cb + n))
        for part in range(2):
            a('ds_write_b128 v13, %s offset:%d' % (vr(32 + 8 * cb + 4 * part, 4), L_WF + (2 * cb + part) * 1024))
    a('s_waitcnt lgkmcnt(0)')
    a('s_barrier')
    a('s_branch %s_mover' % name)
    a.label('%s_main' % name)

    if OPT['prio']: a('s_setprio 1')
    X, W = 128, 192
    AE, AO = 64, 80
    TK, TD = 112, 120
    GQ, GS, ONE = 20, 24, 28
    P = 32
    sXS = 45
    vm = VM(a)
    if OPT['pf_self']: vm.issue('pf')
    a('v_lshrrev_b32 v6, 1, v4')
    a('v_xor_b32 v6, v5, v6')
    a('v_lshlrev_b32 v6, 4, v6')
    a('v_lshl_add_u32 v6, v4, 16, v6')
    a('v_xor_b32 v17, 0x80040, v6')
    a('s_add_u32 s44, s%d, 1' % sW8)
    a('s_lshl_b32 s44, s44, 14')
    a('s_and_b32 s%d, s%d, 1' % (sT0, sW8))
    a('s_lshl_b32 s%d, s%d, 10' % (sT0, sT0))
    a('s_add_u32 s46, s%d, s%d' % (sT0, sPS))
    a('s_lshl_b32 s%d, s46, 10' % sXS)
    dma = []
    for i in range(16):
        c, q = i >> 1, i & 1
        dma.append(['s_add_u32 m0, s44, %d' % (c * (2048 - 128) + q * 1024), 's_nop 0',
                    'buffer_load_dwordx4 v%d, %s, s%d offen offset:%d lds' % ((6, 17)[q], sr(SX, 4), sXS, c * 128)])
        vm.issue(('x', c))
    lg = LG(a)
    wrd = []
    for i in range(16):
        wrd.append('ds_read_b128 %s, v1 offset:%d' % (vr(W + 4 * i, 4), i * 1024)); lg.issue(('w', i >> 2))
    nb = OPT['wbar']
    dma[nb - 1] = dma[nb - 1] + ['s_barrier']
    per = -(-16 // (17 - nb))
    for i in range(nb - 1, 16):
        dma[i] = dma[i] + wrd[:per]; wrd = wrd[per:]
    V = ['\n'.join(PAR + ['s_bitcmp1_b32 s%d, 1' % sW8, 's_cselect_b32 s%d, s%d, s%d' % (sPHI, sPHB, sPHA),
                          's_cmp_eq_u32 s%d, 0' % sP, 's_cselect_b32 s47, 0, -1']),
         'v_lshlrev_b32 v7, 31, v2', 'v_or_b32 v7, 1.0, v7',
         'v_lshl_add_u32 v8, v3, 8, s46', 'v_cvt_f32_u32 v8, v8', 'v_cvt_f32_u32 v10, v2']
    for tb in range(2):
        V += ['v_add_f32 v11, %s, v10' % fl(16.0 * tb), 'v_mul_f32 v11, %s, v11' % fl(1 / 2048), 'v_fma_f32 v12, v11, v8, s%d' % sPHI]
        for n in range(2):
            V += ['v_fmamk_f32 v13, v11, %s, v12' % fl(128.0 * n), 'v_fmamk_f32 v14, v11, %s, v12' % fl(128.0 * n + 64),
                  'v_cos_f32 v15, v13', 'v_cos_f32 v16, v14', 'v_sin_f32 v13, v13', 'v_sin_f32 v14, v14',
                  'v_cvt_pk_f16_f32 v%d, v15, v16' % (TK + 4 * tb + n), 'v_cvt_pk_f16_f32 v%d, v13, v14' % (TK + 4 * tb + 2 + n),
                  'v_cvt_pk_f16_f32 v%d, -v13, -v14' % (TD + 4 * tb + n), 'v_and_b32 v%d, s47, v%d' % (TD + 4 * tb + 2 + n, TK + 4 * tb + n),
                  'v_and_b32 v%d, s47, v%d' % (TD + 4 * tb + n, TD + 4 * tb + n)]
    V += ['v_mov_b32 v%d, 0x3f803f80' % (ONE + i) for i in range(4)]
    V += ['v_lshrrev_b32 v18, 1, v2', 'v_xor_b32 v18, v3, v18', 'v_lshlrev_b32 v18, 4, v18', 'v_lshl_add_u32 v18, v2, 7, v18',
          'v_add_u32 v18, s44, v18', 'v_xor_b32 v19, 64, v18',
          's_lshl_b32 s%d, s%d, 6' % (sT0, sW8), 's_add_u32 s%d, s%d, %d' % (sT0, sT0, L_R),
          'v_lshl_add_u32 v8, v2, 2, s%d' % sT0,
          'v_mul_u32_u24 v9, 80, v3',
          's_mul_i32 s%d, s%d, %d' % (sT0, sW8, EXW), 's_lshr_b32 s%d, s%d, 1' % (sT1, sW8), 's_lshl_b32 s%d, s%d, 6' % (sT1, sT1),
          's_add_u32 s%d, s%d, %d' % (sT0, sT0, L_EX), 'v_mul_u32_u24 v10, 144, v2', 'v_lshl_add_u32 v10, v3, 4, v10',
          'v_add_u32 v10, s%d, v10' % sT0, 's_xor_b32 s%d, s%d, 64' % (sT2, sT1), 'v_add_u32 v11, s%d, v10' % sT2, 'v_add_u32 v10, s%d, v10' % sT1,
          'v_and_b32 v12, 1, v0', 'v_cmp_eq_u32 s[50:51], 1, v12', 'v_and_b32 v12, 2, v0', 'v_cmp_eq_u32 s[52:53], 2, v12',
          'v_lshrrev_b32 v12, 2, v2', 'v_cmp_eq_u32 s[54:55], v12, v3',
          's_lshl_b32 s%d, s%d, 3' % (sT0, sW8), 'v_add_u32 v12, s%d, v4' % sT0, 'v_mul_u32_u24 v13, 144, v12',
          'v_lshl_add_u32 v13, v5, 4, v13', 'v_add_u32 v13, %d, v13' % L_EX,
          'v_lshlrev_b32 v12, 15, v12', 'v_and_b32 v14, 3, v0', 'v_lshl_add_u32 v12, v14, 4, v12',
          'v_lshrrev_b32 v14, 2, v5', 's_lshl_b32 s%d, s%d, 6' % (sT0, sSTEP), 'v_mad_u32_u24 v12, v14, s%d, v12' % sT0,
          's_lshl_b32 s%d, s%d, 12' % (sT1, sJ), 's_lshl_b32 s%d, s%d, 6' % (sT2, sROW), 's_add_u32 s38, s%d, s%d' % (sT1, sT2),
          's_add_u32 s38, s38, %d' % Z_OFF,
          's_mov_b32 s%d, s6' % SW, 's_and_b32 s%d, s7, 0xffff' % (SW + 1), 's_mov_b32 s%d, 0x%x' % (SW + 2, WS_BYTES), 's_mov_b32 s%d, 0x20000' % (SW + 3)]
    def after_pre():
        a('s_waitcnt lgkmcnt(0)')
        st.mark()
        a.srd(SX, 4, 2048 * 1024)
    weave(a, V, dma, OPT['pre'], OPT['burst'], after_pre)
    T = []
    def fill(n):
        for o in T[:n]: a(o)
        del T[:n]
    st.mark()
    seen = set()
    def main_mfma(ks, nf):
        q, kb = ks >> 2, ks & 3
        lg.wait(('w', kb))
        for cb in range(2):
            for part in range(2):
                r0 = AE + 8 * (q & 1) + 4 * part if cb == 0 else AO + 8 * q + 4 * part
                acc = vr(r0, 4)
                a('v_mfma_f32_16x16x32_bf16 %s, %s, %s, %s' % (acc, vr(X + 4 * ks, 4), vr(W + 16 * kb + 8 * cb + 4 * part, 4), acc if r0 in seen else '0'))
                seen.add(r0)
                fill(nf)
    def stat_mfma(ks):
        lg.wait(ks)
        f = vr(X + 4 * ks, 4)
        for G, B in ((GQ, f), (GS, vr(ONE, 4))):
            a('v_mfma_f32_16x16x32_bf16 %s, %s, %s, %s' % (vr(G, 4), f, B, vr(G, 4) if G in seen else '0'))
            seen.add(G)
    def rd(c):
        if c >= 8: return
        vm.wait(('x', c))
        for ks in (2 * c, 2 * c + 1):
            a('ds_read_b128 %s, v%d offset:%d' % (vr(X + 4 * ks, 4), 18 + (ks & 1), c * 2048)); lg.issue(ks)
    if stamps: a('s_waitcnt lgkmcnt(0)')
    rd(0)
    st.mark()
    if stamps: a('s_waitcnt lgkmcnt(0)')
    NL = OPT['nlast']
    mains = list(range(16))
    for c in range(8):
        stat_mfma(2 * c)
        rd(c + 1)
        stat_mfma(2 * c + 1)
        if c < 7:
            want = min(2 * c + 2, ((16 - NL) * (c + 1) + 6) // 7)
            while 16 - len(mains) < want: main_mfma(mains.pop(0), 0)
    st.mark()
    if stamps: a('s_waitcnt lgkmcnt(0)')
    a('s_mov_b64 exec, 0xffff')
    a('ds_write2st64_b32 v8, v%d, v%d offset0:1 offset1:3' % (X, X + 32))
    a('s_mov_b64 exec, -1')
    main_mfma(mains.pop(0), 0)
    for G in (GQ, GS):
        T += ['v_cndmask_b32 v%d, v%d, v%d, s[50:51]' % (G, G, G + 1), 'v_cndmask_b32 v%d, v%d, v%d, s[50:51]' % (G + 2, G + 2, G + 3),
              'v_cndmask_b32 v%d, v%d, v%d, s[52:53]' % (G, G, G + 2)]
    T += ['v_mul_f32 v%d, %s, v%d' % (GS, fl(-1 / 512), GS), 'v_mul_f32 v%d, %s, v%d' % (GQ, fl(1 / 512), GQ),
          'v_fma_f32 v%d, -v%d, v%d, v%d' % (GQ, GS, GS, GQ), 'v_max_f32 v%d, 0, v%d' % (GQ, GQ),
          'v_add_f32 v%d, %s, v%d' % (GQ, fl(1e-5), GQ), 'v_rsq_f32 v%d, v%d' % (GQ, GQ), 's_nop 0', 'v_mul_f32 v%d, s%d, v%d' % (GQ, sSC, GQ)]
    T += ['ds_bpermute_b32 v%d, v9, v%d offset:%d' % (ONE + r, GQ, 4 * r) for r in range(4)]
    SR = 48

    E1 = ['v_fmac_f32 v%d, v7, v%d' % (AO + i, AO + 12 + i) for i in range(4)]
    E1 += ['v_fma_f32 v%d, -v7, v%d, v%d' % (AO + 4 + i, AO + 8 + i, AO + 4 + i) for i in range(4)]
    E2 = ['v_sub_f32 v%d, v%d, v%d' % (AO + i, AO + i, AO + 16 + i) for i in range(8)]
    E2 += ['s_waitcnt lgkmcnt(0)']
    E2 += ['v_mul_f32 v%d, v7, v%d' % (SR + i, ONE + i) for i in range(4)]
    E2 += ['v_mul_f32 v%d, v%d, v%d' % (AE + i, AE + i, ONE + (i & 3)) for i in range(8)]
    E2 += ['v_mul_f32 v%d, v%d, v%d' % (AO + i, AO + i, ONE + (i & 3)) for i in range(8)]
    T += E1
    assert mains[0] <= 13
    while mains:
        ks = mains.pop(0)
        if ks == 13: T += E2
        main_mfma(ks, 2)
    fill(len(T))
    a('s_mov_b64 exec, s[54:55]')
    a('ds_write2st64_b32 v8, v%d, v%d offset0:0 offset1:2' % (GQ, GS))
    a('s_mov_b64 exec, -1')
    st.mark()
    A2, OUT = P, X
    for i in range(8): a('v_fmac_f32 v%d, v%d, v%d' % (AE + i, SR + (i & 3), AE + 8 + i))
    for n in range(4): a('v_cvt_pk_f16_f32 v%d, v%d, v%d' % (A2 + n, AE + 2 * n, AE + 2 * n + 1))
    T += ['v_fma_f32 v%d, -v%d, v%d, v%d' % (AO + i, SR + i, AO + 28 + i, AO + i) for i in range(4)]
    T += ['v_fmac_f32 v%d, v%d, v%d' % (AO + 4 + i, SR + i, AO + 24 + i) for i in range(4)]
    T += ['v_cvt_pk_f16_f32 v%d, v%d, v%d' % (A2 + 4 + n, AO + 2 * n, AO + 2 * n + 1) for n in range(4)]
    fill(2)
    for cb in range(2):
        for kind, M in enumerate((TK, TD)):
            for tb in range(2):
                a('v_mfma_f32_16x16x32_f16 %s, %s, %s, 0' % (vr(OUT + 16 * kind + 8 * tb + 4 * cb, 4), vr(A2 + 4 * cb, 4), vr(M + 4 * tb, 4)))
                fill(4)
        fill(len(T))
    for kind in range(2):
        for tb in range(2):
            o = OUT + 16 * kind + 8 * tb; d = AE + 8 * kind + 4 * tb
            for r in range(4): a('v_cvt_pk_f16_f32 v%d, v%d, v%d' % (d + r, o + r, o + 4 + r))
            a('ds_write_b128 v%d, %s offset:%d' % (10 + kind, vr(d, 4), tb * 16 * 144))
    a('s_waitcnt lgkmcnt(0)')
    a('s_barrier')
    for w in range(4): a('ds_read_b128 %s, v13 offset:%d' % (vr(P + 4 * w, 4), w * EXW))
    a('s_waitcnt lgkmcnt(2)')
    for i in range(4): a('v_pk_add_f16 v%d, v%d, v%d' % (P + i, P + i, P + 4 + i))
    a('s_waitcnt lgkmcnt(0)')
    for i in range(4): a('v_pk_add_f16 v%d, v%d, v%d' % (P + 8 + i, P + 8 + i, P + 12 + i))
    for i in range(4): a('v_pk_add_f16 v%d, v%d, v%d' % (P + i, P + i, P + 8 + i))
    a('s_cmp_eq_u32 s%d, 0' % sTAU)
    a('s_cbranch_scc1 %s_zhalf' % name)
    a('buffer_store_dwordx4 %s, v12, %s, s38 offen %s' % (vr(P, 4), sr(SW, 4), OPT['st_z']))
    a('s_branch %s_zdone' % name)
    a.label('%s_zhalf' % name)
    a('buffer_store_dwordx4 %s, v12, %s, s38 offen' % (vr(P, 4), sr(SW, 4)))
    a.label('%s_zdone' % name)
    st.mark()
    st.flush(SW, sW8)
    a.label('%s_walk' % name)
    if nstub:
        a('s_mov_b64 exec, 0')
        for k in range(min(nstub, 8)):
            a('s_cmp_eq_u32 s%d, %d' % (sW8, k))
            a('s_cbranch_scc1 %s_stub%d' % (next_kernel, k))
    a.label('%s_fin' % name)
    a('s_endpgm')

    a.label('%s_mover' % name)
    st.n = 1
    vm = VM(a)
    sHW, sWO1, sWO2, sST = 44, 47, 48, 49
    a('s_and_b32 s%d, s2, 7' % sT0)
    a('s_lshl_b32 s%d, s%d, 2' % (sT0, sT0))
    a('s_add_u32 s%d, s%d, s%d' % (sT0, sT0, sHW))
    a('s_lshl_b32 s%d, s%d, 10' % (sWO1, sT0))
    a('s_lshr_b32 s%d, s%d, 1' % (sT0, sT0))
    a('s_lshl_b32 s%d, s%d, 5' % (sT0, sT0))
    a('s_sub_u32 s%d, 768, s%d' % (sT1, sT0))
    a('s_cmp_ge_u32 s%d, 256' % sT0)
    a('s_cselect_b32 s%d, s%d, s%d' % (sT0, sT1, sT0))
    a('s_cselect_b32 s%d, -1, 1' % sT1)
    a('v_mov_b32 v8, s%d' % sT0)
    a('v_mad_i32_i24 v8, v4, s%d, v8' % sT1)
    a('s_mul_i32 s50, s%d, %d' % (sT1, 8 * 3584))
    a('s_movk_i32 s%d, 3584' % sT2)
    a('v_lshlrev_b32 v5, 4, v5')
    a('v_mad_u32_u24 v9, v8, s%d, v5' % sT2)
    a('v_cmp_eq_u32 vcc, 0x200, v8')
    a('v_subrev_u32 v8, %d, v9' % (256 * 3584))
    a('v_lshlrev_b32 v12, 3, v2')
    a('v_lshl_add_u32 v12, v3, 12, v12')
    a('v_cndmask_b32 v8, v9, v8, vcc')
    a('v_add_u32 v9, s50, v9')
    a('v_add_u32 v10, s50, v9')
    a('v_add_u32 v11, s50, v10')
    a('s_lshr_b32 s%d, s2, 3' % sT0)
    a('s_lshl_b32 s56, s%d, 7' % sT0)
    a('s_lshl_b32 s%d, s%d, 17' % (sT0, sT0))
    a('s_add_u32 s%d, s%d, s%d' % (sWO1, sWO1, sT0))
    a('s_add_u32 s%d, s%d, %d' % (sWO1, sWO1, WP_OFF))
    a('s_cmp_ge_u32 s2, %d' % (0 if OPT.get('now') else 224))
    a('s_cselect_b32 s56, %d, s56' % OOB)
    a('s_cselect_b32 s%d, %d, s%d' % (sWO1, OOB, sWO1))
    a('s_lshl_b32 s%d, s%d, 12' % (sST, sHW))
    a('s_add_u32 s%d, s%d, %d' % (sST, sST, L_WST))
    a('s_sub_u32 s%d, 255, s2' % sT0)
    a('s_lshl_b32 s%d, s%d, 1' % (sT0, sT0))
    a('s_and_b32 s%d, s%d, 1' % (sT1, sHW))
    a('s_add_u32 s%d, s%d, s%d' % (sT0, sT0, sT1))
    a('s_and_b32 s%d, s%d, 7' % (sT1, sT0))
    a('s_lshr_b32 s%d, s%d, 3' % (sT2, sT0))
    a('s_mul_i32 s%d, s%d, 229376' % (sWO2, sT1))
    a('s_lshl_b32 s50, s%d, 12' % sT2)
    a('s_add_u32 s%d, s%d, s50' % (sWO2, sWO2))
    a('s_add_u32 s%d, s%d, %d' % (sWO2, sWO2, WD_OFF))
    a('s_cmp_ge_u32 s%d, 48' % sT2)
    a('s_cselect_b32 s51, 14, 7')
    a('s_cselect_b32 s54, 7, 1')
    a('s_and_b32 s50, s%d, 15' % sT2)
    a('s_mul_i32 s50, s50, s51')
    a('s_lshr_b32 s%d, s%d, 4' % (sT2, sT2))
    a('s_lshl_b32 s%d, s%d, 1' % (sT2, sT2))
    a('s_add_u32 s50, s50, s%d' % sT2)
    a('s_lshl_b32 s50, s50, 14')
    a('s_lshl_b32 s%d, s%d, 7' % (sT1, sT1))
    a('s_add_u32 s50, s50, s%d' % sT1)
    a('s_lshl_b32 s54, s54, 14')
    a('s_cmp_ge_u32 s%d, %d' % (sT0, 0 if OPT.get('now') else 448))
    a('s_cselect_b32 s50, %d, s50' % OOB)
    a('s_cselect_b32 s%d, %d, s%d' % (sWO2, OOB, sWO2))
    a('v_bfe_u32 v32, v0, 2, 2')
    a('v_and_b32 v33, 3, v0')
    a('v_lshlrev_b32 v32, 7, v32')
    a('v_add_u32 v32, s%d, v32' % sST)
    a('v_lshl_add_u32 v32, v33, 3, v32')
    a('v_lshl_add_u32 v32, v3, 9, v32')
    a('s_bitcmp1_b32 s%d, 0' % sHW)
    a('s_cselect_b32 s%d, s34, s32' % SG)
    a('s_cselect_b32 s%d, s35, s33' % (SG + 1))
    a('s_and_b32 s%d, s%d, 0xffff' % (SG + 1, SG + 1))
    a('s_mov_b32 s%d, %d' % (SG + 2, 512 * 3584))
    a('s_mov_b32 s%d, 0x20000' % (SG + 3))
    a.srd(SD, 36, 1792 * 1024)
    a.srd(SW, 6, WS_BYTES)
    for n in range(4):
        a('s_add_u32 m0, s%d, %d' % (sST, n * 1024))
        a('buffer_load_dwordx4 v%d, %s, s56 offen lds' % (8 + n, sr(SG, 4)))
    def w1_part(nafter):
        a('s_waitcnt vmcnt(%d)' % nafter)
        for f in range(4):
            for n in range(2):
                a('ds_read_b64_tr_b16 %s, v32 offset:%d' % (vr(64 + 4 * f + 2 * n, 2), n * 2048 + f * 32))
        for f in range(4):
            a('s_waitcnt lgkmcnt(%d)' % (6 - 2 * f))
            a('buffer_store_dwordx4 %s, v1, %s, s%d offen %s' % (vr(64 + 4 * f, 4), sr(SW, 4), sWO1, OPT['st_w']))
            if f < 3: a('s_add_u32 s%d, s%d, 32768' % (sWO1, sWO1))
    a('s_cmp_lt_u32 s%d, 2' % sHW)
    a('s_cbranch_scc1 %s_h01' % name)
    a('s_add_u32 s51, s50, s54')
    for jj in range(8):
        a('buffer_load_dwordx2 %s, v12, %s, s%d offen offset:%d' % (vr(96 + 2 * jj, 2), sr(SD, 4), 50 + (jj >> 2), (jj & 3) * 1024))
    a('s_mov_b32 s52, 0x05040100')
    a('s_mov_b32 s53, 0x07060302')
    st.mark()
    if stamps: a('s_waitcnt lgkmcnt(0)')
    w1_part(8)
    a('s_waitcnt vmcnt(4)')
    for db in range(4):
        for t in range(4):
            a('v_perm_b32 v%d, v%d, v%d, s%d' % (80 + 4 * db + t, 96 + 4 * t + 2 + (db >> 1), 96 + 4 * t + (db >> 1), 52 + (db & 1)))
        a('buffer_store_dwordx4 %s, v1, %s, s%d offen offset:%d %s' % (vr(80 + 4 * db, 4), sr(SW, 4), sWO2, 1024 * db, OPT['st_w']))
    st.mark()
    a('s_barrier')
    st.flush(SW, sW8)
    a('s_branch %s_walk' % name)
    a.label('%s_h01' % name)
    st.n = 1
    npf = 0
    for i in range(4): a('v_mov_b32 v%d, 0' % (40 + i))
    a('s_lshr_b32 s%d, s2, 2' % sT0)
    a('s_mul_i32 s%d, s%d, %d' % (sT0, sT0, FG))
    a('s_and_b32 s%d, s2, 3' % sT1)
    a('s_lshl_b32 s%d, s%d, 1' % (sT1, sT1))
    a('s_add_u32 s%d, s%d, s%d' % (sT1, sT1, sHW))
    a('s_lshl_b32 s%d, s%d, 10' % (sT1, sT1))
    a('s_add_u32 s%d, s%d, s%d' % (sT0, sT0, sT1))
    a('s_add_u32 s%d, s%d, %d' % (sT0, sT0, FLAG_OFF))
    a('buffer_store_dwordx4 v[40:43], v1, %s, s%d offen sc1' % (sr(SW, 4), sT0)); npf += 1
    if next_kernel and OPT['pf_next']:
        a('s_getpc_b64 s[42:43]')
        a.label('%s_pc' % name)
        a('s_add_u32 s42, s42, %s - %s_pc' % (next_kernel, name))
        a('s_addc_u32 s43, s43, 0')
        a('s_lshr_b32 s%d, s2, 3' % sT0)
        a('s_lshl_b32 s%d, s%d, 1' % (sT0, sT0))
        a('s_add_u32 s%d, s%d, s%d' % (sT0, sT0, sHW))
        a('s_lshl_b32 s%d, s%d, 10' % (sT0, sT0))
        a('v_add_u32 v44, s%d, v1' % sT0)
        a('v_min_u32 v44, %s_end - %s, v44' % (next_kernel, next_kernel))
        a('v_add_co_u32 v44, vcc, s42, v44')
        a('v_mov_b32 v45, s43')
        a('v_addc_co_u32 v45, vcc, 0, v45, vcc')
        a('global_load_dword v46, v[44:45], off'); npf += 1
    for o in PAR: a(o)
    a('s_lshl_b32 s%d, s%d, 2' % (sT0, sJ))
    a('v_add_u32 v41, s%d, v3' % sT0)
    a('v_cvt_f32_u32 v42, v41')
    a('v_mul_f32 v42, %s, v42' % fl(1 / 2048))
    for sg, (sres, sph) in enumerate(((sP, sPHA), (sPB, sPHB))):
        a('v_lshl_add_u32 v43, v2, 6, s%d' % sres)
        a('v_cvt_f32_u32 v43, v43')
        if sph: a('v_fma_f32 v43, v43, v42, s%d' % sph)
        else: a('v_mul_f32 v43, v43, v42')
        a('v_fmamk_f32 v48, v42, %s, v43' % fl(1024.0))
        a('v_cos_f32 v%d, v43' % (50 + 4 * sg))
        a('v_cos_f32 v%d, v48' % (51 + 4 * sg))
        a('v_sin_f32 v%d, v43' % (52 + 4 * sg))
        a('v_sin_f32 v%d, v48' % (53 + 4 * sg))
    a('v_lshlrev_b32 v40, 2, v2')
    a('v_add_u32 v40, %d, v40' % L_R)
    for q in range(4): a('v_add_u32 v%d, %d, v40' % (104 + q, 64 * q))
    a('v_lshlrev_b32 v47, 2, v0')
    a('v_add_u32 v47, %d, v47' % (L_R + 512))
    st.mark()
    if stamps: a('s_waitcnt lgkmcnt(0)')
    w1_part(npf)
    st.mark()
    a('s_cmp_eq_u32 s%d, 0' % sHW)
    a('s_cbranch_scc1 %s_h0' % name)
    a('v_mov_b32 v62, s%d' % sP)
    a('v_mov_b32 v63, s%d' % sPB)
    a('v_cmp_gt_u32 vcc, 32, v0')
    a('v_and_b32 v59, 31, v0')
    a('v_lshlrev_b32 v59, 3, v59')
    a('v_cndmask_b32 v62, v63, v62, vcc')
    a('v_lshl_add_u32 v59, v62, 8, v59')
    a('s_cmp_eq_u32 s%d, 0' % sJ)
    a('s_mov_b32 s%d, %d' % (sT0, MX_OFF))
    a('s_cselect_b32 s%d, s%d, %d' % (sT0, sT0, OOB))
    a('s_barrier')
    a('ds_read2st64_b32 v[60:61], v47 offset0:0 offset1:1')
    a('s_waitcnt lgkmcnt(0)')
    a('v_lshlrev_b32 v61, 16, v61')
    a('buffer_store_dwordx2 v[60:61], v59, %s, s%d offen %s' % (sr(SW, 4), sT0, OPT['st_s']))
    a('s_branch %s_hend' % name)
    a.label('%s_h0' % name)
    a('s_barrier')
    for q in range(4):
        a('ds_read_b32 v%d, v40 offset:%d' % (60 + q, 256 + 64 * q))
        a('ds_read2st64_b32 %s, v%d offset0:0 offset1:2' % (vr(96 + 2 * q, 2), 104 + q))
    a('s_waitcnt lgkmcnt(0)')
    for q in range(4):
        a('v_lshlrev_b32 v%d, 16, v%d' % (60 + q, 60 + q))
        a('v_add_f32 v%d, v%d, v%d' % (60 + q, 60 + q, 97 + 2 * q))
        a('v_mul_f32 v%d, v%d, v%d' % (60 + q, 60 + q, 96 + 2 * q))
    a('v_mul_f32 v58, v56, v62')
    a('v_mul_f32 v59, v52, v60')
    a('v_fmac_f32 v58, v57, v63')
    a('v_fmac_f32 v59, v53, v61')
    a('v_mul_f32 v58, s%d, v58' % sLAM)
    a('v_mul_f32 v59, s%d, v59' % sLAM)
    a('v_fma_f32 v58, -v50, v60, v58')
    a('v_fma_f32 v59, -v54, v62, v59')
    a('v_fma_f32 v58, -v51, v61, v58')
    a('v_fma_f32 v59, -v55, v63, v59')
    for rot in (8, 4, 2, 1):
        a('v_add_f32_dpp v58, v58, v58 row_ror:%d row_mask:0xf bank_mask:0xf' % rot)
        a('v_add_f32_dpp v59, v59, v59 row_ror:%d row_mask:0xf bank_mask:0xf' % rot)
    a('v_cvt_pk_f16_f32 v58, v58, v59')
    a('v_lshlrev_b32 v41, 7, v41')
    a('s_lshl_b32 s%d, s%d, 1' % (sT0, sROW))
    a('s_add_u32 s%d, s%d, %d' % (sT0, sT0, ZC_OFF))
    a('s_lshl_b32 s%d, s%d, 1' % (sT1, sSTEP))
    a('s_add_u32 s%d, s%d, s%d' % (sT1, sT1, sT0))
    a('s_mov_b32 exec_lo, 0x10001')
    a('s_mov_b32 exec_hi, 0x10001')
    a('buffer_store_short v58, v41, %s, s%d offen' % (sr(SW, 4), sT0))
    a('buffer_store_short_d16_hi v58, v41, %s, s%d offen' % (sr(SW, 4), sT1))
    a.label('%s_hend' % name)
    a('s_mov_b64 exec, -1')
    st.flush(SW, sW8)
    a('s_branch %s_walk' % name)
    a.label('%s_end' % name)
    a('s_endpgm')
    return a.text(), descriptor(name, 256, 256), (name, 256, 512, LDS)

if __name__ == '__main__':
    from gen2 import gen_empty
    K2 = [0, 1, 4, 5, 8, 9, 12, 13, 2, 3, 6, 7, 10, 11, 14, 15]
    for tag, o in (('a', dict()), ('b', dict(stamp=2)), ('c', dict(wbar=8)), ('d', dict(nlast=8, burst=8, wbar=8))):
        save = dict(OPT); OPT.update(o)
        t, d, l = gen_k1('k1_kernel', OPT.get('stamp', 1), 'k2_kernel')
        t, n = hazard.fix(t, '-v' in sys.argv and tag == 'a')
        t2, d2, l2 = gen_empty('k2_kernel', 1)
        open('k1v6%s.s' % tag, 'w').write(build_file([l, l2], t + '\n' + t2, [d, d2]))
        OPT.clear(); OPT.update(save)
```

```python
import sys
from asmlib import *
import hazard, align
from gen1 import VM, LG, Stamps, fl
import gen6 as K1
from gen6 import WS_BYTES, Z_OFF, WP_OFF, WD_OFF, ZC_OFF, MX_OFF, FLAG_OFF, ACT_OFF, STAMP_OFF, OOB

OPT = dict(pd=6, wpd=8, cap_pre=18, cap_p=[6, 5, 10, 5, 10, 5, 10, 8], cap_b=[14, 14, 13, 14, 13, 100], st_o='', spin=1 << 20, prio=1,
           espan=[0, 58.0, 60.0, 58.0, 60.0, 58.0, 30.0], fb=15, esplit=0, rot=1, dpf=10, pc=0, hb='B5', map=0, npre=8, bcut=12, pw=[2, 5, 5, 5, 4, 4, 4, 4],
           ord='Z00 X00 X01 Z10 X10 X11 Z20 X20 X21 Z30 X30 X31', npl=4, fop='buffer_store_dword')
U = 16384
ZU = [0, 1, 2, 3]
XU = {(0, 0): 4, (0, 1): 5, (1, 0): 6, (1, 1): 7, (2, 0): 8, (2, 1): 9, (3, 0): 4, (3, 1): 5}
WU = [(0, 6), (1, 7), (8, 2), (9, 4), (3, 5), (0, 6), (1, 7)]
DU = [(8, 2), (9, 4), (3, 5)]
PU = [0, 6, 1, 7]
FG, FK = K1.FG, K1.FK
GRP = 112 * 1024

def gen_kf(name, stamps):
    a = Asm()
    tail = Asm()
    LDS = 163840
    SW, SX, SO = 8, 12, 16
    sW8, sW, sTAU, sSL, sT1, sPAR, sPP, sG, sGM, sA, sB, sC = 3, 20, 21, 22, 23, 24, 25, 26, 27, 28, 29, 30
    sT1G1, sGT, sDT, sCNT = 31, 32, 33, 35
    a.kernel_begin(name)
    a.raw(';STUB')
    st = Stamps(a, stamps, 1)
    st.mark()
    a('s_load_dwordx2 s[4:5], s[0:1], 88')
    a('s_load_dwordx2 s[6:7], s[0:1], 0')
    a('s_load_dwordx2 s[38:39], s[0:1], 72')
    a('s_cmp_ge_u32 s2, 256')
    a('s_cbranch_scc1 %s_end' % name)
    a('v_lshrrev_b32 v2, 6, v0')
    a('v_and_b32 v0, 63, v0')
    a('v_readfirstlane_b32 s%d, v2' % sW8)
    a('v_lshlrev_b32 v1, 4, v0')
    if OPT['map'] < 2:
        a('s_and_b32 s%d, s2, 6' % sA)
        a('s_lshl_b32 s%d, s%d, 1' % (sA, sA))
        a('s_bfe_u32 s%d, s2, 0x20003' % sB)
        a('s_add_u32 s%d, s%d, s%d' % (sTAU, sA, sB))
        a('s_and_b32 s%d, s2, 1' % sGT)
        a('s_lshr_b32 s%d, s2, 5' % sDT)
        a('s_lshl_b32 s%d, s%d, 3' % (sA, sGT))
        a('s_add_u32 s%d, s%d, s%d' % (sSL, sA, sDT))
        if OPT['map'] == 1:
            a('s_lshl_b32 s%d, s%d, 2' % (sA, sGT))
            a('s_lshr_b32 s%d, s%d, 2' % (sGT, sDT))
            a('s_and_b32 s%d, s%d, 3' % (sDT, sDT))
            a('s_add_u32 s%d, s%d, s%d' % (sDT, sDT, sA))
    else:
        a('s_and_b32 s%d, s2, 4' % sA)
        a('s_lshl_b32 s%d, s%d, 1' % (sA, sA))
        a('s_bfe_u32 s%d, s2, 0x30003' % sB)
        a('s_add_u32 s%d, s%d, s%d' % (sTAU, sA, sB))
        a('s_and_b32 s%d, s2, 3' % sA)
        a('s_lshl_b32 s%d, s%d, 2' % (sA, sA))
        a('s_lshr_b32 s%d, s2, 6' % sB)
        a('s_add_u32 s%d, s%d, s%d' % (sSL, sA, sB))
        a('s_lshr_b32 s%d, s%d, 3' % (sGT, sSL))
        a('s_and_b32 s%d, s%d, 7' % (sDT, sSL))
    a('s_and_b32 s%d, s%d, 3' % (sW, sW8))
    a('s_lshr_b32 s%d, s%d, 1' % (sG, sW))
    a('s_and_b32 s%d, s%d, 1' % (sPAR, sW))
    a('s_sub_u32 s%d, 32, s%d' % (sA, sTAU))
    a('s_xor_b32 s%d, s%d, 1' % (sB, sG))
    a('s_cmp_eq_u32 s%d, 0' % sTAU)
    a('s_cselect_b32 s%d, 16, s%d' % (sT1G1, sA))
    a('s_cselect_b32 s%d, s%d, s%d' % (sGM, sG, sB))
    a('s_cmp_eq_u32 s%d, 0' % sG)
    a('s_cselect_b32 s%d, s%d, s%d' % (sT1, sTAU, sT1G1))
    a('s_lshl_b32 s%d, s%d, 5' % (sA, sPAR))
    a('s_add_u32 s%d, s%d, s%d' % (sPP, sT1, sA))
    a('s_mov_b32 s%d, 0' % sCNT)
    a('s_cmp_lt_u32 s%d, 4' % sW8)
    a('s_cbranch_scc1 %s_g1' % name)

    NPL = OPT['npl']
    def fpos(k): return (k // NPL) * 512 + (k % NPL) * 4
    sPV = 40
    def poll_ops(offs, kind):
        w = 16 // len(offs)
        return ['s_load_dword%s %s, s[%d:%d], 0x%x glc' % ('x%d' % w if w > 1 else '', sr(sPV + w * j, w), b, b + 1, o + kind * FK) for j, (b, o) in enumerate(offs)]
    def poll_fold():
        o = ['s_waitcnt lgkmcnt(0)']
        for step in (2, 4, 8):
            o += ['s_and_b64 s[%d:%d], s[%d:%d], s[%d:%d]' % (k, k + 1, k, k + 1, k + step, k + step + 1) for k in range(40, 56, 2 * step)]
        return o + ['s_and_b32 s40, s40, s41']
    def poll_issue(offs, kind):
        for o in poll_ops(offs, kind): a(o)
    def poll_check(offs, kind, who, slow_first=(), slow_last=(), fast=()):
        lab = '%s_%s_p%d' % (name, who, kind)
        for o in poll_fold(): a(o)
        a('s_cbranch_scc0 %s_slow' % lab)
        for o in fast: a(o)
        a.label('%s_ok' % lab)
        tail.label('%s_slow' % lab)
        tail.raw(';STUB')
        for o in slow_first: tail(o)
        tail.label('%s_spin' % lab)
        for o in poll_ops(offs, kind): tail(o)
        tail('s_add_u32 s%d, s%d, 1' % (sCNT, sCNT))
        tail('s_cmp_gt_u32 s%d, %d' % (sCNT, OPT['spin']))
        tail('s_cselect_b32 s57, 1, 0')
        for o in poll_fold(): tail(o)
        tail('s_or_b32 s40, s40, s57')
        tail('s_cbranch_scc0 %s_spin' % lab)
        for o in slow_last: tail(o)
        tail('s_branch %s_ok' % lab)

    vm = VM(a)
    sL0, sZS, sXS, sWS, sDS, sRS, sM, sN = 92, 93, 94, 95, 96, 97, 98, 99
    G2ACC, G2ST, G2W = 16, 80, 128
    a('v_lshrrev_b32 v4, 3, v0')
    a('v_and_b32 v5, 7, v0')
    a('v_lshrrev_b32 v6, 1, v4')
    a('v_xor_b32 v6, v5, v6')
    a('v_lshlrev_b32 v6, 4, v6')
    a('v_lshl_add_u32 v6, v4, 16, v6')
    a('v_xor_b32 v7, 64, v6')
    a('s_lshl_b32 s%d, s%d, 12' % (sL0, sW))
    a('s_lshl_b32 s%d, s%d, 10' % (sXS, sPP))
    a('s_lshl_b32 s%d, s%d, 15' % (sA, sT1))
    a('s_lshl_b32 s%d, s%d, 12' % (sB, sPAR))
    a('s_add_u32 s%d, s%d, s%d' % (sZS, sA, sB))
    a('v_and_b32 v8, 16, v0')
    a('v_lshlrev_b32 v8, 1, v8')
    a('v_xor_b32 v8, v8, v1')
    a('s_waitcnt lgkmcnt(0)')
    a.srd(SW, 4, WS_BYTES)
    a.srd(SX, 6, 2048 * 1024)
    bars = ['pre'] + ['P%d' % k for k in range(8)] + ['B%d' % i for i in range(6)]
    early = {('X', 3, 0): 'P2', ('X', 3, 1): 'P3', ('W', 0, 0): 'P3', ('W', 0, 1): 'P4', ('W', 1, 0): 'P5', ('W', 1, 1): 'P5',
             ('W', 2, 0): 'P6', ('W', 2, 1): 'P7', ('W', 3, 0): 'P7', ('W', 3, 1): 'B0', ('W', 4, 0): 'B0', ('W', 4, 1): 'B0',
             ('W', 5, 0): 'B1', ('W', 5, 1): 'B1', ('W', 6, 0): 'B2', ('W', 6, 1): 'B2',
             ('D', 0, 0): 'B3', ('D', 0, 1): 'B3', ('D', 1, 0): 'B4', ('D', 1, 1): 'B4', ('D', 2, 0): 'B5', ('D', 2, 1): 'B5'}
    items = [(c, int(i), int(h)) for c, i, h in OPT['ord'].split()]
    for i in range(7): items += [('W', i, 0), ('W', i, 1)]
    for r in range(3): items += [('D', r, 0), ('D', r, 1)]
    lq = [(it, q) for it in items for q in range(4)]
    rq = [(('R', s, 0), q) for s in range(8) for q in range(4)]
    need = {'P%d' % k: [('X', k >> 1, k & 1)] + ([] if k & 1 else [('Z', k >> 1, 0)]) for k in range(8)}
    need.update({'B%d' % i: [('W', i + 1, 0), ('W', i + 1, 1)] for i in range(6)})
    sV = 76 if not stamps else 0
    def step_off(dst, s, shift, base):
        a('s_xor_b32 s%d, s%d, %d' % (dst, sRS + 3, (s >> 2) * 16 + (s & 3)))
        a('s_lshl_b32 s%d, s%d, %d' % (dst, dst, shift))
        a('s_add_u32 s%d, s%d, s%d' % (dst, dst, base))
    def emit(it, q):
        k, i, h = it
        if k == 'R':
            if q == 0: step_off(sN, i, 12, sRS)
            a('buffer_load_dwordx4 %s, v1, %s, s%d offen offset:%d' % (vr(G2W + 16 * i + 4 * q, 4), sr(SW, 4), sN, 1024 * q))
        else:
            unit = {'Z': lambda: ZU[i], 'X': lambda: XU[i, h], 'W': lambda: WU[i][h], 'D': lambda: DU[i][h]}[k]()
            if q == 0: a('s_add_u32 m0, s%d, %d' % (sL0, unit * U))
            if k == 'X':
                a('s_add_u32 s%d, s%d, %d' % (sM, sXS, (128 * i if h == 0 else 896 - 128 * i) + q * (524288 - 1024)))
                a('buffer_load_dwordx4 v%d, %s, s%d offen offset:%d lds' % (6 + (q & 1), sr(SX, 4), sM, 1024 * q))
            else:
                if q == 0:
                    base, off = {'Z': (sZS, Z_OFF + 8192 * i), 'W': (sWS, WP_OFF + 32768 * i + 16384 * h), 'D': (sDS, WD_OFF + (32 + 8 * i + 4 * h) * 4096)}[k]
                    a('s_add_u32 s%d, s%d, %d' % (sM, base, off))
                a('buffer_load_dwordx4 v%d, %s, s%d offen offset:%d lds' % (8 if k == 'Z' else 1, sr(SW, 4), sM, 1024 * q))
        vm.issue(it)
    OF2 = [(58 + 2 * (j >> 1), (j & 1) * 32 * FG + fpos(k)) for j in range(4) for k in range(0, 4, min(4, NPL))]
    g2map = [G2ST, G2ST + 16, G2ST + 32, G2ST, G2W, G2ST + 16, G2W + 16, G2ST + 32]
    def g2load(s):
        if s >= 8: return []
        pre = 's_xor_b32 s%d, s%d, %d\ns_lshl_b32 s%d, s%d, 10\ns_add_u32 s%d, s%d, s56\n' % (sN, sRS + 3, (s >> 2) * 16 + (s & 3), sN, sN, sN, sN)
        return [((pre if j == 0 else '') + 'buffer_load_dwordx4 %s, v%d, %s, s%d offen sc1' % (vr(g2map[s] + 4 * j, 4), 12 + j, sr(SW, 4), sN), ('act', s, j)) for j in range(4)]
    head = [x for s in range(3) for x in g2load(s)]
    cnt = {}
    for bi, b in enumerate(bars):
        if b != 'pre':
            for it in need[b]:
                assert all(x[0] != it for x in lq), (b, it)
                vm.wait(it)
            if OPT.get('prost') and (b[0] == 'P' or b == 'B0'): st.mark()
            if OPT.get('bst') and b[0] == 'B': st.mark()
            a('s_barrier')
            if b in (('B5',) if OPT.get('g2st') else ('P0', 'B0', 'B5')) and not OPT.get('prost') and not OPT.get('bst'): st.mark()
        cap = OPT['cap_pre'] if b == 'pre' else OPT['cap_p'] if b[0] == 'P' else OPT['cap_b']
        if isinstance(cap, list): cap = cap[int(b[1])]
        if b == OPT['hb']: poll_issue(OF2, 0)
        nxt = need[bars[bi + 1]] if b != 'B5' else [('D', r, h) for r in range(3) for h in range(2)]
        while True:
            must = any(x[0] in nxt for x in lq) or (b == 'B5' and rq)
            if cap <= 0 and not must: break
            if lq and bars.index(early.get(lq[0][0], 'pre')) <= bi: emit(*lq.pop(0))
            elif rq: emit(*rq.pop(0))
            else: break
            cap -= 1; cnt[b] = cnt.get(b, 0) + 1
        if b == OPT['hb']: poll_check(OF2, 0, 'g2')
        while bi >= bars.index(OPT['hb']) and not rq and head and cap >= 4:
            for o, t in head[:4]: a(o); vm.issue(t)
            del head[:4]; cap -= 4; cnt[b] += 4
        if b == 'pre':
            a('s_mul_i32 s%d, s%d, %d' % (sWS, sSL, 7 * 32768))
            a('s_add_u32 s%d, s%d, s%d' % (sWS, sWS, sL0))
            a('s_mul_i32 s%d, s%d, 229376' % (sA, sDT))
            a('s_add_u32 s%d, s%d, s%d' % (sDS, sA, sL0))
            a('s_lshl_b32 s%d, s%d, 14' % (sB, sW))
            a('s_add_u32 s%d, s%d, s%d' % (sA, sA, sB))
            a('s_add_u32 s%d, s%d, %d' % (sRS, sA, WD_OFF))
            a('s_xor_b32 s%d, s%d, %s' % (sA, sDT, 's%d' % sTAU if OPT['rot'] == 2 else '0'))
            a('s_and_b32 s%d, s%d, %d' % (sRS + 3, sA, 3 if OPT['rot'] else 0))
        if b == 'B1':
            a('s_mul_i32 s%d, s%d, %d' % (sB, sW, fpos(4)))
            a('s_add_u32 s%d, s%d, %d' % (sB, sB, FLAG_OFF))
            for k, t in enumerate((sTAU, sT1G1)):
                a('s_mul_i32 s%d, s%d, %d' % (sA, t, FG))
                a('s_add_u32 s%d, s%d, s%d' % (sA, sA, sB))
                a('s_add_u32 s%d, s4, s%d' % (58 + 2 * k, sA))
                a('s_addc_u32 s%d, s5, 0' % (59 + 2 * k))
                a('s_mul_i32 s%d, s%d, %d' % (sA, t, GRP))
                a('v_add_u32 v%d, s%d, v1' % (12 + 2 * k, sA))
                a('v_add_u32 v%d, %d, v%d' % (13 + 2 * k, 32 * GRP, 12 + 2 * k))
            a('s_mul_i32 s%d, s%d, %d' % (sA, sGT, GRP // 2))
            a('s_add_u32 s%d, s%d, s%d' % (sA, sA, sL0))
            a('s_add_u32 s56, s%d, %d' % (sA, ACT_OFF))
            a('s_mul_i32 s%d, s%d, 6' % (sB, sPAR))
            a('s_add_u32 s%d, s%d, s%d' % (sA, sG, sB))
            a('s_lshl_b32 s%d, s%d, 14' % (sA, sA))
            a('v_add_u32 v10, s%d, v1' % sA)
    assert not rq and not lq
    if OPT.get('show'): print(cnt, 'head left', len(head))
    assert PU == [0, 6, 1, 7]
    vm.wait(('D', 2, 1))
    poll_issue(OF2, 1)
    if OPT.get('bst'): st.mark()
    a('s_barrier')
    for o, t in head: a(o); vm.issue(t)
    st.mark()
    if OPT['prio']: a('s_setprio 1')
    for s in range(8):
        pend = []
        if s == 1: poll_check(OF2, 1, 'g2')
        if 1 <= s <= 3: pend = g2load(2 * s + 1) + g2load(2 * s + 2)
        R = g2map[s]
        for tg in range(4):
            vm.wait(('act', s, tg))
            if OPT.get('g2st') and tg == 3: st.mark()
            for db in range(4):
                if pend and db % 2 == 0:
                    o, t = pend.pop(0)
                    a(o); vm.issue(t)
                acc = vr(G2ACC + 16 * tg + 4 * db, 4)
                a('v_mfma_f32_16x16x32_bf16 %s, %s, %s, %s' % (acc, vr(R + 4 * tg, 4), vr(G2W + 16 * s + 4 * db, 4), acc if s else '0'))
            if s == 7 and tg >= 2:
                for j in range(4): a('ds_write_b128 v10, %s offset:%d' % (vr(G2ACC + 16 * (tg - 2) + 4 * j, 4), 4096 * (tg - 2) + 1024 * j))
        assert not pend
    st.mark()
    for j in range(8, 16): a('ds_write_b128 v10, %s offset:%d' % (vr(G2ACC + 4 * j, 4), 1024 * j))
    a('s_waitcnt vmcnt(0) lgkmcnt(0)')
    a('s_barrier')
    st.mark()
    st.flush(SW, sW8)
    a('s_endpgm')

    a.raw('.p2align 12')
    a.label('%s_g1' % name)
    a.raw(';STUB')
    st.n = 1
    if OPT['prio']: a('s_setprio 2')
    XH, DR, PA, CM, vDON, ACC, RG, NR = 128, 16, 24, 32, 40, 56, 88, 10
    DL, PI = XH + 112, XH + 120
    vZ, vX, vVA, vDM, vMSK = 2, 6, 8, 10, 11
    T = ACC
    vN, vG = 12, 13
    vm = VM(a)
    a('v_and_b32 v%d, 15, v0' % vN)
    a('v_lshrrev_b32 v%d, 4, v0' % vG)
    a('v_lshlrev_b32 v%d, 3, v%d' % (T, vG))
    a('v_lshlrev_b32 v%d, 3, v%d' % (T + 1, vN))
    a('s_lshl_b32 s%d, s%d, 7' % (sA, sT1))
    a('s_add_u32 s%d, s%d, %d' % (sA, sA, ZC_OFF))
    a('s_lshl_b32 s%d, s%d, 8' % (sB, sPP))
    a('s_add_u32 s%d, s%d, %d' % (sB, sB, MX_OFF))
    a('s_cmp_eq_u32 s%d, 0' % sT1)
    a('s_cselect_b32 s%d, 64, 63' % sC)
    a('v_cvt_f32_u32 v%d, v%d' % (T + 2, vG))
    a('v_add_f32 v%d, v%d, v%d' % (T + 2, T + 2, T + 2))
    a('v_cmp_eq_u32 vcc, 0, v%d' % vG)
    def dmat(D, tb, mirror):
        a('v_lshl_add_u32 v%d, v%d, 1, s%d' % (T + 3, vN, sPAR))
        if tb: a('v_add_u32 v%d, 32, v%d' % (T + 3, T + 3))
        if mirror: a('v_sub_u32 v%d, s%d, v%d' % (T + 3, sC, T + 3))
        a('v_lshlrev_b32 v%d, 30, v%d' % (T + 4, T + 3))
        a('v_cvt_f32_u32 v%d, v%d' % (T + 3, T + 3))
        a('v_and_or_b32 v%d, v%d, s34, 1.0' % (T + 4, T + 4))
        a('v_mul_f32 v%d, %s, v%d' % (T + 3, fl(1 / 64), T + 3))
        a('v_mul_f32 v%d, v%d, v%d' % (T + 5, T + 3, T + 2))
        a('v_add_f32 v%d, v%d, v%d' % (T + 6, T + 5, T + 3))
        a('v_fmamk_f32 v%d, v%d, %s, v%d' % (T + 7, T + 3, fl(8.0), T + 5))
        a('v_fmamk_f32 v%d, v%d, %s, v%d' % (T + 8, T + 3, fl(8.0), T + 6))
        for t in range(4): a('v_sin_f32 v%d, v%d' % (T + 9 + t, T + 5 + t))
        for t in range(4): a('v_cos_f32 v%d, v%d' % (T + 5 + t, T + 5 + t))
        a('v_cndmask_b32 v%d, v%d, v%d, vcc' % (T + 9, T + 9, T + 4))
        for t in range(4): a('v_cvt_pk_f16_f32 v%d, v%d, v%d' % (D + 4 * tb + t, T + 5 + t, T + 9 + t))
    a('s_brev_b32 s34, 1')
    dmat(DL, 0, 0)
    a('s_waitcnt lgkmcnt(0)')
    a.srd(SW, 4, WS_BYTES)
    ZC = RG + 32
    for q in range(4):
        a('buffer_load_dwordx2 %s, v%d, %s, s%d offen offset:%d' % (vr(ZC + 2 * q, 2), T, sr(SW, 4), sA, 32 * q)); vm.issue('zc')
    for tb in range(2):
        a('buffer_load_dwordx2 %s, v%d, %s, s%d offen offset:%d' % (vr(44 + 2 * tb, 2), T + 1, sr(SW, 4), sB, 128 * tb)); vm.issue('zc')
    dmat(DL, 1, 0); dmat(DR, 0, 1); dmat(DR, 1, 1)
    a('v_mov_b32 v%d, 0x10000' % (T + 3))
    a('v_cndmask_b32 v%d, 0, v%d, vcc' % (vDM, T + 3))
    def onehot(dst, vIdx, sgn):
        a('v_lshlrev_b32 v%d, 4, v%d' % (T + 5, vIdx))
        a('v_mov_b32 v%d, 0x3f80' % (T + 6))
        a('v_lshlrev_b32 v%d, v%d, v%d' % (T + 5, T + 5, T + 6))
        a('v_ashrrev_i32 v%d, 1, v%d' % (T + 4, vIdx))
        for i in range(8): a('v_cmp_eq_u32 s[%d:%d], %d, v%d' % (40 + 2 * i, 41 + 2 * i, sgn * 8 * (i >> 2) + (i & 3), T + 4))
        for i in range(8): a('v_cndmask_b32 v%d, 0, v%d, s[%d:%d]' % (dst + i, T + 5, 40 + 2 * i, 41 + 2 * i))
    a('v_sub_u32 v%d, v%d, v%d' % (T + 3, vN, T))
    onehot(PI, T + 3, -1)
    a('v_add_u32 v%d, v%d, v%d' % (T + 3, vN, T))
    a('v_sub_u32 v%d, 32, v%d' % (T + 3, T + 3))
    onehot(PA, T + 3, 1)
    a('v_cmp_ne_u32 vcc, 0, v%d' % vN)
    a('v_lshrrev_b32 v%d, 2, v0' % (T + 3))
    a('v_lshlrev_b32 v%d, 6, v%d' % (T + 3, T + 3))
    a('v_cndmask_b32 v%d, 0, -1, vcc' % vMSK)
    a('v_and_b32 v%d, 3, v0' % (T + 4))
    a('v_lshl_add_u32 v%d, v%d, 3, v%d' % (T + 3, T + 4, T + 3))
    a('v_and_b32 v%d, 1, v%d' % (T + 4, vG))
    a('v_lshl_add_u32 v%d, v%d, 5, v%d' % (T + 3, T + 4, T + 3))
    a('s_lshl_b32 s%d, s%d, 13' % (sA, sG))
    a('v_add_u32 v%d, s%d, v%d' % (vZ, sA, T + 3))
    a('s_lshl_b32 s%d, s%d, 13' % (sA, sGM))
    a('v_add_u32 v%d, s%d, v%d' % (vZ + 2, sA, T + 3))
    a('s_mul_i32 s92, s%d, 0x80008000' % sPAR)
    a('s_or_b32 s92, s92, 0x3c003c00')
    a('s_and_b32 s%d, s%d, 1' % (sB, sC))
    a('s_mul_i32 s%d, s%d, 0x80008000' % (sB, sB))
    a('s_xor_b32 s93, s92, s%d' % sB)
    a('v_xor_b32 v%d, 32, v%d' % (vZ + 1, vZ))
    a('v_xor_b32 v%d, 32, v%d' % (vZ + 3, vZ + 2))
    a('v_lshrrev_b32 v%d, 1, v%d' % (T + 3, vN))
    a('v_xor_b32 v%d, v%d, v%d' % (T + 3, vG, T + 3))
    a('v_lshlrev_b32 v%d, 4, v%d' % (T + 3, T + 3))
    a('v_lshl_add_u32 v%d, v%d, 7, v%d' % (T + 3, vN, T + 3))
    a('s_lshl_b32 s%d, s%d, 12' % (sA, sW))
    a('s_add_u32 s%d, s%d, 65536' % (sA, sA))
    a('v_add_u32 v%d, s%d, v%d' % (vX, sA, T + 3))
    a('v_xor_b32 v%d, 64, v%d' % (vX + 1, vX))
    a('v_mov_b32 v%d, 0' % vVA)
    a('v_mov_b32 v%d, 0' % (vVA + 1))
    sAS, sFO, sOS, sAL, sPB = 36, 56, 58, 59, 60
    a('s_mul_i32 s%d, s%d, %d' % (sA, sPP, GRP))
    a('s_add_u32 s%d, s%d, %d' % (sA, sA, ACT_OFF))
    a('s_lshl_b32 s%d, s%d, 10' % (sB, sSL))
    a('s_add_u32 s%d, s%d, s%d' % (sAS, sA, sB))
    a('s_add_u32 s%d, s%d, %d' % (sAS + 1, sAS, GRP // 2))
    a('s_mul_i32 s%d, s%d, %d' % (sB, sGT, GRP // 2))
    a('s_add_u32 s%d, s%d, s%d' % (sAL, sA, sB))
    a('s_mul_i32 s%d, s%d, %d' % (sA, sPP, FG))
    a('s_add_u32 s%d, s%d, %d' % (sA, sA, FLAG_OFF))
    a('s_add_u32 s%d, s4, s%d' % (sPB, sA))
    a('s_addc_u32 s%d, s5, 0' % (sPB + 1))
    a('s_lshr_b32 s%d, s%d, %d' % (sB, sSL, NPL.bit_length() - 1))
    a('s_lshl_b32 s%d, s%d, 9' % (sB, sB))
    a('s_add_u32 s%d, s%d, s%d' % (sFO, sA, sB))
    a('s_and_b32 s%d, s%d, %d' % (sB, sSL, NPL - 1))
    a('s_lshl_b32 s%d, s%d, 2' % (sB, sB))
    a('s_add_u32 s%d, s%d, s%d' % (sFO, sFO, sB))
    st.mark()
    vm.wait('zc')
    for i in range(4): a('v_pk_fma_f16 v%d, v%d, s92, v%d' % (ZC + i, ZC + 4 + i, ZC + i))
    for tb in range(2):
        for i in range(4): a('v_mov_b32 v%d, v%d' % (CM + 4 * tb + i, 44 + 2 * tb))
    for tb in range(2):
        a('v_lshrrev_b32 v%d, 16, v%d' % (45 + 2 * tb, 45 + 2 * tb))
        a('v_mul_u32_u24 v%d, v%d, v%d' % (vDON + tb, 45 + 2 * tb, vDM))
    for tb in range(2):
        a('v_mfma_f32_16x16x32_f16 %s, %s, %s, %s' % (vr(CM + 4 * tb, 4), vr(ZC, 4), vr(DL + 4 * tb, 4), vr(CM + 4 * tb, 4)))
    if stamps: a('s_waitcnt lgkmcnt(0)')
    lg = LG(a)
    order = []
    for L in range(4): order += [2 * L, 2 * L + 1, 8 + 2 * L, 9 + 2 * L]
    S = {'rd': 0, 'win': 1}
    vB1, vB2 = 14, 15
    LO, HI, XS = (RG, RG + 8), (RG + 16, 48), (RG + 24, RG + 32)
    def slot(f): return RG + 4 * (0, 1, 4, 5, 6, 7, 2, 3, 8, 9)[f % NR]
    def pbar(k):
        if OPT.get('prost') == 1 and k: st.mark()
        a('s_barrier')
        if k == 0:
            st.mark()
            if stamps: a('s_waitcnt lgkmcnt(0)')
    def zrd(n, j):
        if n >= 16: return
        beta = order[n]; L = n >> 2; half = beta >> 3; u, hi = j >> 1, j & 1
        if n % 4 == 0 and j == 0: pbar(2 * L)
        for q in range(2):
            a('ds_read_b64_tr_b16 %s, v%d offset:%d' % (vr((HI if hi else LO)[n & 1] + 4 * u + 2 * q, 2), vZ + 2 * half + u,
                                                       ZU[L] * U + (beta & 1) * 4096 + hi * 2048 + q * 1024))
            lg.issue(('z', n, u))
    def xrd(n, tb):
        if n >= 16: return
        beta = order[n]; L = n >> 2; half = beta >> 3
        if n % 4 == 2 and tb == 0: pbar(2 * L + 1)
        u = XU[L, half]
        if u >> 2 != S['win']:
            for t in range(2): a('v_add_u32 v%d, %d, v%d' % (vX + t, ((u >> 2) - S['win']) * 65536 & 0xffffffff, vX + t))
            S['win'] = u >> 2
        a('ds_read_b128 %s, v%d offset:%d' % (vr(XS[n & 1] + 4 * tb, 4), vX + ((beta & 1) ^ half), (u & 3) * U + tb * 2048)); lg.issue(('x', n))
    def bfly(n):
        if n >= 16: return []
        return [('lw', ('z', n, 1))] + ['v_pk_fma_f16 v%d, v%d, s%d, v%d' % (LO[n & 1] + i, HI[n & 1] + i, 92 + (order[n] >> 3), LO[n & 1] + i) for i in range(8)]
    def putl(o):
        if isinstance(o, str): a(o)
        else: lg.wait(o[1])
    def rd():
        g = S['rd']
        if g >= 224: return
        S['rd'] += 1
        i, j = divmod(g, 32)
        u = WU[i][j >> 4]
        a('ds_read_b128 %s, v%d offset:%d' % (vr(slot(g), 4), (1, vB1, vB2)[u >> 2], (u & 3) * U + (j & 15) * 1024)); lg.issue(g)
    def post(n):
        beta = order[n]; acc = ACC + 16 * (n & 1); ops = []
        for tb in range(2):
            if beta >= 8: ops.append('v_add_f32 v%d, v%d, v%d' % (acc + 4 * tb, acc + 4 * tb, vDON + 2 * (beta & 1) + tb))
            for u in range(2):
                for t in range(2):
                    r = acc + 8 * u + 4 * tb + 2 * t
                    ops += ['v_fmac_f32 v%d, v%d, v%d' % (vVA + tb, r, r), 'v_cvt_pk_bf16_f32 v%d, v%d, v%d' % (XH + 8 * beta + 4 * tb + 2 * u + t, r, r + 1),
                            'v_fmac_f32 v%d, v%d, v%d' % (vVA + tb, r + 1, r + 1)]
        return ops
    a('v_add_u32 v%d, 65536, v1' % vB1)
    a('v_add_u32 v%d, 131072, v1' % vB2)
    for j in range(4): zrd(0, j)
    for tb in range(2): xrd(0, tb)
    for j in range(2): zrd(1, j)
    for o in bfly(0): putl(o)
    for j in range(2, 4): zrd(1, j)
    for i in range(4): a('v_and_b32 v%d, v%d, v%d' % (LO[0] + i, vMSK, LO[0] + i))
    for n in range(16):
        beta = order[n]; acc = ACC + 16 * (n & 1); half = beta >> 3
        pp_ = post(n - 1) if n else []
        cut = OPT['bcut'] if n else 0
        pend = pp_[:cut] + bfly(n + 1) + pp_[cut:]
        tot = len(pend)
        W8 = OPT['pw']
        for j in range(8):
            if j == 4: lg.wait(('x', n))
            if j < 4:
                u, tb = j >> 1, j & 1
                a('v_mfma_f32_16x16x32_f16 %s, %s, %s, %s' % (vr(acc + 8 * u + 4 * tb, 4), vr(LO[n & 1] + 4 * u, 4), vr((DR if half else DL) + 4 * tb, 4), vr(CM + 4 * tb, 4)))
            else:
                tb, u = (j - 4) >> 1, j & 1
                d = vr(acc + 8 * u + 4 * tb, 4)
                a('v_mfma_f32_16x16x32_bf16 %s, %s, %s, %s' % (d, vr((PA if half else PI) + 4 * u, 4), vr(XS[n & 1] + 4 * tb, 4), d))
            if j == 0:
                for tb in range(2): xrd(n + 1, tb)
            if j >= 4: zrd(n + 2, j - 4)
            if n == 15 and j == 4:
                if OPT.get('bst'): st.mark()
                a('s_barrier')
            if n == 15 and j >= 4:
                for _ in range(2):
                    if S['rd'] < OPT['wpd'] - 2: rd()
            k = -(-tot * sum(W8[:j + 1]) // sum(W8)) - (tot - len(pend))
            if n == 0 and j < 3: k = 0
            for o in pend[:k]: putl(o)
            pend = pend[k:]
            if j == 7 and half and beta < 15:
                for tb in range(2): a('v_mul_u32_u24 v%d, v%d, v%d' % (vDON + 2 * ((beta + 1) & 1) + tb, XS[n & 1] + 4 * tb, vDM))
        assert not pend
    if not OPT.get('bst'): st.mark()
    if stamps and not OPT.get('bst'): a('s_waitcnt lgkmcnt(0)')
    if OPT.get('prost'): st.on_save = st.on; st.on = 0
    TMP, OUT, vC1, vIR, vM, vFO, vONE, vL8 = 16, 48, 2, 4, 6, 7, 10, 11
    first = ['s_cmp_eq_u32 s%d, 0' % sGT, 's_cselect_b64 s[40:41], -1, 0', 'v_cmp_eq_u32 vcc, 0, v0'] + post(15)
    first += ['v_cndmask_b32 v%d, v%d, v%d, s[40:41]' % (vM, CM + 4, CM), 'v_mov_b32 v%d, %d' % (vFO, OOB)]
    for op in ('v_permlane32_swap_b32', 'v_permlane16_swap_b32'):
        first += ['v_mov_b32 v%d, v%d' % (vIR + tb, vVA + tb) for tb in range(2)]
        first += ['v_mov_b32 v%d, 1' % vONE if '32' in op[:13] else 'v_lshlrev_b32 v%d, 3, v0' % vL8]
        first += ['%s v%d, v%d' % (op, vIR + tb, vVA + tb) for tb in range(2)]
        first += ['v_add_f32 v%d, v%d, v%d' % (vVA + tb, vVA + tb, vIR + tb) for tb in range(2)]
    first += ['v_mov_b32 v%d, %s' % (vC1, fl(1e-5)), 'v_cndmask_b32 v%d, v%d, 0, vcc' % (vFO, vFO)]
    first += ['v_fmamk_f32 v%d, v%d, %s, v%d' % (vIR + tb, vVA + tb, fl(1 / 512), vC1) for tb in range(2)]
    first += ['v_rsq_f32 v%d, v%d' % (vC1 + tb, vIR + tb) for tb in range(2)]
    first += ['v_sub_f32 v%d, 0, v%d' % (vM, vM)]
    first += ['v_mul_f32 v%d, %s, v%d' % (vC1 + tb, fl(-1.4426950408889634), vC1 + tb) for tb in range(2)]
    def flag(kind): return OPT['fop'] + ' v%d, v%d, %s, s%d offen offset:%d sc1' % (vONE, vFO, sr(SW, 4), sFO, kind * FK)
    def store(i, tb):
        if i < 6:
            o = 'buffer_store_dwordx4 %s, v1, %s, s%d offen sc1' % (vr(OUT + 4 * tb, 4), sr(SW, 4), sAS + tb)
            return [('vm', o, ('st', i)), 's_add_u32 s%d, s%d, 16384' % (sAS + tb, sAS + tb)]
        return [('vm', 'buffer_store_dwordx2 %s, v%d, %s, s%d offen sc1' % (vr(OUT + 4 * tb, 2), vL8, sr(SW, 4), sAS + tb), ('st', i))]
    def epi(i):
        acc = ACC + 16 * (i & 1); ops = []
        for tb in range(2):
            R = range(4 * tb, 4 * tb + 4)
            ops += ['v_mul_f32 v%d, v%d, v%d' % (TMP + r, vC1 + tb, acc + r) for r in R]
            for r in R: ops += ['v_exp_f32 v%d, v%d' % (TMP + r, TMP + r), 'v_mul_f32 v%d, v%d, v%d' % (TMP + 8 + r, acc + r, acc + 8 + r)]
            ops += ['v_fma_f32 v%d, v%d, v%d, v%d' % (TMP + r, TMP + r, vIR + tb, vIR + tb) for r in R]
            ops += ['v_rcp_f32 v%d, v%d' % (TMP + r, TMP + r) for r in R]
            ops += ['v_mul_f32 v%d, v%d, v%d' % (TMP + r, TMP + r, TMP + 8 + r) for r in R]
            ops += ['v_cvt_pk_bf16_f32 v%d, v%d, v%d' % (OUT + 4 * tb + 2 * (i & 1) + t, TMP + 4 * tb + 2 * t, TMP + 4 * tb + 2 * t + 1) for t in range(2)]
            if i == 6: ops += store(i, tb)
        if i & 1: ops += store(i, 0) + store(i, 1)
        if i == 5:
            ops += ['s_lshl_b32 s%d, s%d, 9' % (sA, sSL)] + ['s_sub_u32 s%d, s%d, s%d' % (sAS + tb, sAS + tb, sA) for tb in range(2)]
        return ops
    def put(o):
        if isinstance(o, tuple): a(o[1]); vm.issue(o[2])
        else: a(o)
    cost = lambda o: 2 if isinstance(o, str) and o.startswith(('v_exp', 'v_rcp', 'v_rsq', 'v_perml')) else 1
    for i in range(7):
        pend = epi(i - 1) if i else first
        if OPT.get('blkst'): st.mark()
        total = sum(map(cost, pend)); done = 0; gap = 0
        for beta in range(16):
            f = 32 * i + 2 * beta
            lg.wait(f + 1)
            if OPT.get('bst') and ((i and beta == 0) or (i, beta) == (6, 15)): st.mark()
            if (1 <= i <= 5 and beta == 0) or (i, beta) == (6, 15): a('s_barrier')
            for mat, tb in ((0, 0), (0, 1), (1, 1), (1, 0)):
                acc = vr(ACC + 16 * (i & 1) + 8 * mat + 4 * tb, 4)
                a('v_mfma_f32_16x16x32_bf16 %s, %s, %s, %s' % (acc, vr(slot(f + mat), 4), vr(XH + 8 * beta + 4 * tb, 4), acc if beta else '0'))
                gap += 1
                if tb == mat: rd()
                lim = total * (gap - (3 if i else 0)) / (50.0 if i == 0 else OPT['espan'][i])
                while pend and done + cost(pend[0]) <= lim + 0.5:
                    done += cost(pend[0]); put(pend.pop(0))
            if beta == OPT['fb'] and i in (3, 5):
                vm.wait(('st', i - 2)); a(flag(i == 5)); vm.issue('fl')
        assert not pend
    st.mark()
    if OPT.get('blkst') or OPT.get('bst'): st.on_save = st.on; st.on = 0
    A45, A6, HC, A2, WR, NW = XH + 64, XH + 32, 16, 32, 56, 16
    SEL, PT = XH, XH + 64
    OF1 = [(sPB, fpos(k)) for k in range(0, 16, NPL)]
    E = epi(6)
    ne = OPT['esplit']
    for o in E[:ne]: put(o)
    vm.wait(('st', 5))
    a(flag(2)); vm.issue('fl')
    for o in E[ne:]: put(o)
    st.mark()
    a('s_lshl_b32 s%d, s%d, 4' % (sA, sDT))
    a('s_sub_u32 s%d, 176, s%d' % (sB, sA))
    a('s_cmp_ge_u32 s%d, 4' % sDT)
    a('s_cselect_b32 s%d, s%d, s%d' % (sA, sB, sA))
    a('s_cselect_b32 s92, -1, 1')
    a('s_cselect_b32 s93, 64, 0')
    a('s_add_u32 s%d, s%d, 16' % (sB, sA))
    a('s_cmp_eq_u32 s%d, 4' % sDT)
    a('s_cselect_b32 s%d, 64, s%d' % (sB, sB))
    a('s_lshl_b32 s%d, s%d, 2' % (sC, sGT))
    a('s_add_u32 s%d, s%d, s%d' % (sA, sA, sC))
    a('s_add_u32 s%d, s%d, s%d' % (sB, sB, sC))
    a('v_lshlrev_b32 v2, 4, v%d' % vG)
    for r in range(4): a('ds_bpermute_b32 v%d, v2, v%d offset:%d' % (28 + r, vM, 4 * r))
    a('s_set_gpr_idx_on s%d, gpr_idx(SRC0)' % sA)
    for i in range(8): a('v_mov_b32 v%d, v%d' % (HC + i, XH + (i & 3) + 8 * (i >> 2)))
    a('s_set_gpr_idx_off')
    a('s_set_gpr_idx_on s%d, gpr_idx(SRC0)' % sB)
    for i in range(4): a('v_mov_b32 v%d, v%d' % (HC + 8 + i, XH + i))
    a('s_set_gpr_idx_off')
    a('v_lshlrev_b32 v2, 2, v%d' % vN)
    a('v_mov_b32 v3, s93')
    a('v_mad_i32_i24 v2, v2, s92, v3')
    a('v_mov_b32 v9, 0x3f80')
    def selgen(db, sp):
        if db: a('v_add_u32 v2, s92, v2')
        a('v_bfe_u32 v3, v2, 2, 2')
        a('v_cmp_eq_u32 vcc, v3, v%d' % vG)
        a('v_lshlrev_b32 v4, 4, v2')
        a('v_lshlrev_b32 v4, v4, v9')
        a('v_lshrrev_b32 v3, 4, v2')
        a('v_bfe_u32 v5, v2, 1, 1')
        a('v_cndmask_b32 v4, 0, v4, vcc')
        a('v_lshl_or_b32 v3, v3, 1, v5')
        if db == 0: a('v_cmp_eq_u32 vcc, 8, v3')
        for h in range(2):
            for i in range(4): a('v_cmp_eq_u32 s[%d:%d], %d, v3' % (sp + 2 * i, sp + 1 + 2 * i, 4 * h + i))
            for i in range(4): a('v_cndmask_b32 v%d, 0, v4, s[%d:%d]' % (SEL + 8 * db + 4 * h + i, sp + 2 * i, sp + 1 + 2 * i))
        if db == 0:
            a('v_cndmask_b32 v124, 0, v4, vcc')
            for i in range(1, 4): a('v_mov_b32 v%d, 0' % (124 + i))
    nb = OPT.get('selb', 1)
    for db in range(nb): selgen(db, 94)
    poll_issue(OF1, 2)
    for db in range(nb, 4): selgen(db, 94)
    vm.wait(('st', 6)); a(flag(3)); vm.issue('fl')
    st.mark()
    a('s_and_b32 s%d, s%d, %d' % (sC, sDT, 3 if OPT['rot'] else 0))
    for Q in range(4):
        a('s_xor_b32 s%d, s%d, %d' % (sA, sC, Q))
        a('s_lshl_b32 s%d, s%d, 12' % (94 + Q, sA))
        a('s_add_u32 s%d, s%d, s%d' % (94 + Q, 94 + Q, sAL))
        a('s_add_u32 s%d, s%d, 32768' % (94 + Q, 94 + Q))
        a('s_lshl_b32 s%d, s%d, 2' % (sA, sA))
        a('s_lshr_b32 s%d, 0x%x, s%d' % (sA, DU[0][0] | DU[0][1] << 4 | DU[1][0] << 8 | DU[1][1] << 12, sA))
        a('s_and_b32 s%d, s%d, 15' % (sA, sA))
        a('s_lshl_b32 s%d, s%d, 14' % (sA, sA))
        a('v_add_u32 v%d, s%d, v1' % (2 + Q, sA))
    poll_check(OF1, 2, 'g1')
    for j in range(16):
        a('buffer_load_dwordx4 %s, v1, %s, s%d offen offset:%d sc1' % (vr(A45 + 4 * j, 4), sr(SW, 4), 94 + (j >> 2), 1024 * (j & 3))); vm.issue(('a', j))
    if OPT['prio']: a('s_setprio 0')
    st.mark()
    for db in range(4):
        acc = vr(A2 + 4 * db, 4)
        a('v_mfma_f32_16x16x32_bf16 %s, %s, %s, v[28:31]' % (acc, vr(HC, 4), vr(SEL + 8 * db, 4)))
    for db in range(4):
        acc = vr(A2 + 4 * db, 4)
        a('v_mfma_f32_16x16x32_bf16 %s, %s, %s, %s' % (acc, vr(HC + 4, 4), vr(SEL + 8 * db + 4, 4), acc))
    a('v_mfma_f32_16x16x32_bf16 %s, %s, v[124:127], %s' % (vr(A2, 4), vr(HC + 8, 4), vr(A2, 4)))
    a('s_add_u32 s%d, s%d, %d' % (sAL, sAL, 48 * 1024))
    a('s_add_u32 s98, s%d, 4096' % sAL)
    a('s_lshl_b32 s%d, s%d, 10' % (sA, sPP))
    a('s_lshl_b32 s%d, s%d, 7' % (sB, sDT))
    a('s_add_u32 s%d, s%d, s%d' % (sA, sA, sB))
    a('s_lshl_b32 s%d, s%d, 20' % (sB, sGT))
    a('s_add_u32 s%d, s%d, s%d' % (sOS, sA, sB))
    a.srd(SO, 38, 2048 * 1024)
    a('s_lshl_b32 s%d, s%d, 12' % (sA, sW))
    a('v_add_u32 v8, s%d, v1' % sA)
    a('v_add_u32 v9, 65536, v8')
    a('v_lshlrev_b32 v%d, 18, v%d' % (vG, vG))
    a('v_lshl_add_u32 v%d, v%d, 3, v%d' % (vG, vN, vG))
    if stamps: a('s_waitcnt lgkmcnt(0)')
    lg = LG(a)
    D = {'rd': 0}
    def drd():
        f = D['rd']
        D['rd'] += 1
        if f < 64: a('ds_read_b128 %s, v%d offset:%d' % (vr(WR + 4 * (f % NW), 4), 2 + (f >> 4), (f & 15) * 1024))
        else:
            u = DU[2][(f - 64) >> 4]
            a('ds_read_b128 %s, v%d offset:%d' % (vr(WR + 4 * (f % NW), 4), (1, vB1, vB2)[u >> 2], (u & 3) * U + (f & 15) * 1024))
        lg.issue(f)
    def pc():
        poll_issue(OF1, 3)
        poll_check(OF1, 3, 'g1')
        lg.q = []
        for j in range(16):
            a('buffer_load_dwordx2 %s, v%d, %s, s%d offen offset:%d sc1' % (vr(A6 + 2 * j, 2), vL8, sr(SW, 4), (sAL, 98)[j >> 3], 512 * (j & 7))); vm.issue(('a', 16 + (j >> 1)))
        st.mark()
        if stamps: a('s_waitcnt lgkmcnt(0)')
    def doF(fill, n):
        for o in fill[:n]:
            if isinstance(o, str): a(o)
            elif o[0] == 'wait': lg.wait(o[1])
            else: a(o[1]); lg.issue(o[2])
        del fill[:n]
    def steps(j0, j1, lim, fill):
        for j in range(j0, j1):
            if j == OPT['pc']: pc()
            vm.wait(('a', j))
            A = A45 + 4 * j if j < 16 else A6 + 4 * (j - 16)
            for db in range(4):
                f = 4 * j + db
                if db % 2 == 0: lg.wait(f + 1)
                acc = vr(A2 + 4 * db, 4)
                a('v_mfma_f32_16x16x32_bf16 %s, %s, %s, %s' % (acc, vr(A, 4), vr(WR + 4 * (f % NW), 4), acc))
                if D['rd'] < lim: drd()
                doF(fill, 2)
    for _ in range(OPT['dpf']): drd()
    steps(0, 16, 96, [])
    st.mark()
    a('s_barrier')
    if stamps: a('s_waitcnt lgkmcnt(0)')
    def prd(w):
        return [('rd', 'ds_read_b128 %s, v%d offset:%d' % (vr(PT + 16 * w + 4 * db, 4), 8 + (PU[w] >> 2), (PU[w] & 3) * U + db * 1024), ('p', w)) for db in range(4)]
    F = prd(0) + prd(1) + prd(2) + prd(3)
    for w in range(1, 4):
        F += [('wait', ('p', w))] + ['v_add_f32 v%d, v%d, v%d' % (PT + i, PT + i, PT + 16 * w + i) for i in range(16)]
    doF(F, OPT['npre'])
    steps(16, 24, 96, F)
    doF(F, len(F))
    assert not F
    st.mark()
    for r in range(4):
        for db in range(4): a('v_add_f32 v%d, v%d, v%d' % (PT + 4 * db + r, PT + 4 * db + r, A2 + 4 * db + r))
        for t in range(2): a('v_cvt_pk_bf16_f32 v%d, v%d, v%d' % (16 + 2 * r + t, PT + 8 * t + r, PT + 8 * t + 4 + r))
        a('buffer_store_dwordx2 %s, v%d, %s, s%d offen %s' % (vr(16 + 2 * r, 2), vG, sr(SO, 4), sOS, OPT['st_o']))
        if r < 3: a('s_add_u32 s%d, s%d, 65536' % (sOS, sOS))
    st.mark()
    if OPT.get('blkst') or OPT.get('prost') or OPT.get('bst'): st.on = st.on_save
    if stamps:
        a('s_waitcnt lgkmcnt(0)')
        if not OPT.get('prost'): a('s_add_u32 s66, s64, s%d' % sCNT)
    assert st.n <= 13
    st.flush(SW, sW8)
    a('s_endpgm')
    a.lines += tail.lines
    a.label('%s_end' % name)
    a('s_endpgm')
    return a.text(), descriptor(name, 256, 256), (name, 256, 512, LDS)

PAGE = '.text\n.p2align 12\n.fill %d, 4, 0xbf800000\n' % ((4096 - 0x300) // 4)

def build(path, stamps, verbose=False, extra=None, o1={}, o2={}, al=1, stubs=True):
    header = ''.join(l for l in open('sequential_preLN__spectral_fnet__swiglu_ffn__prompt.s.ref') if l.startswith(';') and 'launch' not in l and 'grid=' not in l)
    n1, n2 = 'fnet_dft_kernel', 'fnet_ffn_kernel'
    s1, s2 = dict(K1.OPT), dict(OPT)
    K1.OPT.update(o1); OPT.update(o2)
    t2, d2, l2 = gen_kf(n2, stamps)
    t2, nstub = align.layout(hazard.fix(t2, verbose)[0], al, (n2, n1 + '_fin') if stubs else None)
    t1, d1, l1 = K1.gen_k1(n1, stamps, n2, nstub)
    t1, _ = align.layout(hazard.fix(t1, ext=True)[0], al, None)
    K1.OPT.clear(); K1.OPT.update(s1); OPT.clear(); OPT.update(s2)
    if verbose: print('stubs', nstub)
    body = PAGE + t1 + '\n' + PAGE + t2 + '\n'
    descs, launches = [d1, d2], [l1, l2]
    if extra: body, descs, launches = extra(body, descs, launches)
    open(path, 'w').write(build_file(launches, body, descs, header))

if __name__ == '__main__':
    build('g_dbg.s', 1, '-v' in sys.argv, o2=dict(spin=20000))
    build('g_cyc.s', 2, o2=dict(spin=20000))
    build('g.s', 0)
```

```python
import re
TRANS = ('v_exp_f32', 'v_log_f32', 'v_rcp_f32', 'v_rsq_f32', 'v_sqrt_f32', 'v_sin_f32', 'v_cos_f32')
REG = re.compile(r'^-?\|?(?:abs\()?([vas])(?:(\d+)|\[(\d+):(\d+)\])\)?\|?$')

def regs(op):
    op = op.strip()
    if op in ('vcc', 'vcc_lo', 'vcc_hi'): return {('s', 'vcc')}
    if op in ('exec', 'exec_lo', 'exec_hi'): return {('s', 'exec')}
    if op == 'm0': return {('s', 'm0')}
    m = REG.match(op)
    if not m: return set()
    k = m.group(1)
    lo, hi = (int(m.group(2)),) * 2 if m.group(2) else (int(m.group(3)), int(m.group(4)))
    return {(k, i) for i in range(lo, hi + 1)}

class I:
    def __init__(s, line):
        s.line = line
        t = line.split(';')[0].strip()
        s.label = t[:-1] if t.endswith(':') else None
        s.kind = None; s.w = set(); s.r = set(); s.slots = 0; s.target = None
        if not t or s.label or t.startswith('.'): return
        p = t.split(None, 1)
        s.op = re.sub(r'_(e32|e64|dpp|sdwa)$', '', p[0]); s.dpp = p[0].endswith('_dpp')
        rest = p[1] if len(p) > 1 else ''
        rest = re.sub(r'\s+(op_sel|op_sel_hi|neg_lo|neg_hi):\[[^\]]*\]', '', rest)
        ops = [o.strip() for o in rest.split(',')]
        if ops:
            last = ops[-1].split()
            mods = last[1:] if last else []
            ops[-1] = last[0] if last else ''
        s.mods = mods; s.ops = ops; s.slots = 1
        op = s.op
        R = [regs(o) for o in ops]
        if op == 's_nop': s.kind = 'nop'; s.slots = int(ops[0], 0) + 1
        elif op.startswith('v_mfma'):
            s.kind = 'mfma'; s.w = R[0]; s.a = R[1] | R[2]; s.c = R[3]; s.r = s.a | s.c
            s.passes = 8 if '32x32' in op else 4
        elif op.startswith('v_'):
            s.kind = 'valu'
            s.w = set(R[0]); s.r = set().union(*R[1:]) if len(R) > 1 else set()
            if 'swap' in op: s.w = R[0] | R[1]; s.r = R[0] | R[1]
            if op in ('v_fmac_f32', 'v_dot2c_f32_bf16', 'v_writelane_b32') or s.dpp: s.r |= R[0]
            if op in ('v_add_co_u32', 'v_sub_co_u32', 'v_addc_co_u32'): s.w |= R[1]; s.r = set().union(*R[2:])
        elif op.startswith('ds_'):
            s.kind = 'ds'
            if op.startswith('ds_read') or op.startswith('ds_bpermute') or op.startswith('ds_swizzle') or op.startswith('ds_permute'):
                s.w = R[0]; s.r = set().union(*R[1:])
                if 'd16' in op: s.r |= R[0]
            else: s.r = set().union(*R)
        elif op.startswith('global_load'):
            s.kind = 'vmem'; s.lds = False; s.w = R[0]; s.r = set().union(*R[1:])
        elif op.startswith('buffer_'):
            s.kind = 'vmem'; s.lds = 'lds' in mods
            if op in ('buffer_inv', 'buffer_wbl2'): pass
            elif s.lds: s.r = set().union(*R) | {('s', 'm0')}
            elif op.startswith('buffer_load'): s.w = R[0]; s.r = set().union(*R[1:])
            else:
                s.r = set().union(*R); s.data = R[0]
                if 'atomic' in op and 'sc0' in mods: s.w = R[0]
        elif op.startswith('s_cbranch') or op == 's_branch': s.kind = 'br'; s.target = ops[0]
        elif op.startswith('s_'):
            s.kind = 'salu'
            if op in ('s_waitcnt', 's_barrier', 's_endpgm', 's_setprio', 's_sleep', 's_set_gpr_idx_off'): pass
            elif op == 's_set_gpr_idx_on': s.r = R[0]; s.w = {('s', 'm0')}
            elif op.startswith('s_cmp') or op.startswith('s_bitcmp'): s.r = set().union(*R)
            else:
                s.w = set(R[0]); s.r = set().union(*R[1:]) if len(R) > 1 else set()
                if 'saveexec' in op: s.w |= {('s', 'exec')}
        else:
            raise ValueError('unparsed: ' + line)

def vonly(x): return {r for r in x if r[0] != 's'}
def sonly(x): return {r for r in x if r[0] == 's'}

def need(p, c):
    n = 0
    if p.kind == 'valu':
        pw = vonly(p.w); ps = sonly(p.w)
        isdot = p.op.startswith('v_dot')
        if c.kind == 'mfma' and pw & c.r: n = max(n, 3 if isdot else 2)
        if c.kind == 'valu':
            if p.op in TRANS and c.op not in TRANS and pw & c.r: n = max(n, 1)
            if c.op in ('v_readfirstlane_b32', 'v_readlane_b32') and pw & c.r: n = max(n, 1)
            if (c.op.startswith('v_permlane') or c.dpp) and pw & c.r: n = max(n, 2)
            if ps & c.r: n = max(n, 4 if c.op in ('v_readlane_b32', 'v_writelane_b32') else 2)
            if isdot and pw & (c.r | c.w):
                same_c = c.op == p.op and not (pw & (regs(c.ops[1]) | regs(c.ops[2])))
                if not same_c: n = max(n, 3)
        if c.kind in ('vmem', 'ds') and isdot and pw & c.r: n = max(n, 3)
        if c.kind == 'vmem' and ps & c.r: n = max(n, 5)
        if c.kind in ('vmem', 'ds') and p.op in TRANS and pw & c.r: n = max(n, 1)
    if p.kind == 'mfma':
        big = 12 if p.passes == 8 else 8
        if c.kind in ('valu', 'vmem', 'ds') and p.w & (c.r | c.w): n = max(n, big)
        if c.kind == 'mfma':
            if p.w & c.a: n = max(n, big)
            if p.w & c.c and not (p.w == c.c and p.passes == c.passes): n = max(n, big - 2)
        if c.kind == 'valu' and p.c & c.w: n = max(n, 7 if p.passes == 8 else 3)
    if p.kind == 'salu' and ('s', 'm0') in p.w and c.kind == 'vmem' and c.lds: n = max(n, 1)
    if p.kind == 'vmem' and hasattr(p, 'data') and ('x4' in p.op or 'x3' in p.op):
        if p.data & c.w: n = max(n, 2 if c.kind == 'valu' else 1)
    return n

def deficit(hist, c):
    d = 0; dist = 0
    for p in reversed(hist):
        if dist >= 20: break
        d = max(d, need(p, c) - dist)
        dist += p.slots
    return d

def fix(text, verbose=False, ext=False):
    out = []; hist = []; total = 0
    for ln in text.split('\n'):
        i = I(ln)
        if i.kind is None:
            out.append(i); continue
        d = deficit(hist, i)
        if d > 0:
            total += d
            if verbose: print('pad %d before: %s' % (d, ln.strip()))
            n = I('    s_nop %d' % (d - 1)); out.append(n); hist.append(n)
        out.append(i); hist.append(i)
        if i.op in ('s_branch', 's_endpgm'): hist = []
    pos = {x.label: k for k, x in enumerate(out) if x.label}
    for k, x in enumerate(out):
        if x.kind != 'br': continue
        if ext and x.target not in pos: continue
        h = []
        for y in out[max(0, k - 40):k + 1]:
            if y.kind is None: continue
            h.append(y)
            if y is not x and y.op in ('s_branch', 's_endpgm'): h = []
        n0 = 0
        for y in out[pos[x.target]:]:
            if y.kind is None: continue
            if deficit(h, y) > 0:
                raise RuntimeError('hazard across branch %s -> %s' % (x.line.strip(), y.line.strip()))
            h.append(y); n0 += y.slots
            if n0 > 20 or y.op in ('s_branch', 's_endpgm'): break
    return '\n'.join(x.line for x in out), total
```

```python
import genf2 as G
G.build('o0.s', 0)
G.build('o1.s', 0, o2=dict(cap_b=[15, 15, 13, 15, 13, 100], espan=[0, 58.0, 60.0, 58.0, 60.0, 58.0, 44.0]))
G.build('o2.s', 0, stubs=False)
G.build('o3.s', 0, o2=dict(st_o='sc1'))
G.build('o4.s', 0, al=0)
```

```python
import sys, struct
from asmlib import *
import hazard
from gen1 import VM, LG, Stamps, fl

WS_BYTES = 268435456
Z_OFF = 0
WP_OFF = 1 << 20
WD_OFF = WP_OFF + 112 * 32768
ZC_OFF = WD_OFF + 8 * 229376
MX_OFF = ZC_OFF + 4096
FLAG_OFF = MX_OFF + 16384
NFLAG = 4
FG, FK = 8448, 128
ACT_OFF = 8 << 20
STAMP_OFF = 128 << 20
OOB = 0x20000000
OPT = dict(map=0, st_w='sc1', st_z='sc1', st_s='', pf_self=True, pf_next=True, burst=4, pre=1, prio=1, nlast=6, wbar=6)

def weave(a, valu, dma, pre, burst, after_pre):
    for o in valu[:pre]: a(o)
    valu = valu[pre:]
    after_pre()
    for g in dma[:burst]:
        for o in g: a(o)
    dma = dma[burst:]
    step = max(1, min(12, len(valu) // (len(dma) + 1)))
    for g in dma:
        for o in valu[:step]: a(o)
        valu = valu[step:]
        for o in g: a(o)
    for o in valu: a(o)

def gen_k1(name, stamps, next_kernel=None, nstub=0):
    a = Asm()
    L_WF = 0
    L_X = 16384
    L_WST = L_X + 65536
    L_EX = L_WST + 16384
    EXW = 32 * 144
    L_R = L_EX + 4 * EXW
    LDS = L_R + 1024
    SX, SG, SD, SW = 8, 12, 16, 20
    sW8, sP, sJ, sPS, sT0, sT1, sT2, sLAM, sPHI, sPB, sPHB = 3, 24, 25, 26, 27, 28, 29, 30, 31, 40, 41
    sTAU, sPHA, sSC, sROW, sSTEP = 57, 58, 59, 60, 61
    a.kernel_begin(name)
    st = Stamps(a, stamps, OPT.get('slot', 0))
    st.mark()
    a('s_load_dwordx2 s[4:5], s[0:1], 0')
    a('s_load_dwordx4 s[32:35], s[0:1], 48')
    a('s_load_dwordx2 s[36:37], s[0:1], 64')
    a('s_load_dwordx2 s[6:7], s[0:1], 88')
    a('s_cmp_ge_u32 s2, 256')
    a('s_cbranch_scc1 %s_end' % name)
    a('v_lshrrev_b32 v2, 6, v0')
    if OPT['pf_self']:
        a('s_getpc_b64 s[42:43]')
        a('v_lshlrev_b32 v4, 7, v0')
        a('v_min_u32 v4, %s_end - %s - 64, v4' % (name, name))
        a('v_add_co_u32 v4, vcc, s42, v4')
        a('v_mov_b32 v5, s43')
        a('v_and_b32 v0, 63, v0')
        a('v_addc_co_u32 v5, vcc, 0, v5, vcc')
        a('global_load_dword v62, v[4:5], off')
    else:
        a('v_and_b32 v0, 63, v0')
    a('v_readfirstlane_b32 s%d, v2' % sW8)
    a('v_lshlrev_b32 v1, 4, v0')
    if OPT['map'] < 2:
        a('s_and_b32 s%d, s2, 6' % sT0)
        a('s_lshl_b32 s%d, s%d, 1' % (sT0, sT0))
        a('s_bfe_u32 s%d, s2, 0x20003' % sT1)
        a('s_add_u32 s%d, s%d, s%d' % (sTAU, sT0, sT1))
        a('s_and_b32 s%d, s2, 32' % sT0)
    else:
        a('s_and_b32 s%d, s2, 4' % sT0)
        a('s_lshl_b32 s%d, s%d, 1' % (sT0, sT0))
        a('s_bfe_u32 s%d, s2, 0x30003' % sT1)
        a('s_add_u32 s%d, s%d, s%d' % (sTAU, sT0, sT1))
        a('s_and_b32 s%d, s2, 64' % sT0)
        a('s_lshr_b32 s%d, s%d, 1' % (sT0, sT0))
    a('s_add_u32 s%d, s%d, s%d' % (sP, sT0, sTAU))
    a('s_cmp_eq_u32 s%d, 32' % sP)
    a('s_cselect_b32 s%d, 48, s%d' % (sP, sP))
    a('s_sub_u32 s%d, 64, s%d' % (sT0, sP))
    a('s_cmp_eq_u32 s%d, 0' % sP)
    a('s_cselect_b32 s%d, 32, s%d' % (sPB, sT0))
    a('s_bitcmp1_b32 s%d, 1' % sW8)
    a('s_cselect_b32 s%d, s%d, s%d' % (sPS, sPB, sP))
    a('s_and_b32 s%d, s2, %d' % (sT0, 1 if OPT['map'] < 2 else 3))
    a('s_lshl_b32 s%d, s%d, %d' % (sT0, sT0, 2 if OPT['map'] < 2 else 1))
    a('s_lshr_b32 s%d, s2, %d' % (sT1, 6 if OPT['map'] < 2 else 7))
    a('s_add_u32 s%d, s%d, s%d' % (sJ, sT0, sT1))
    a('v_and_b32 v2, 15, v0')
    a('v_lshrrev_b32 v3, 4, v0')
    a('v_lshrrev_b32 v4, 3, v0')
    a('v_and_b32 v5, 7, v0')
    PAR = ['s_cmp_eq_u32 s%d, 0' % sP, 's_cselect_b32 s%d, 0, 1.0' % sLAM, 's_cselect_b32 s%d, 0, %s' % (sPHB, fl(-0.25)),
           's_cmp_eq_u32 s%d, 48' % sP, 's_cselect_b32 s%d, %s, s%d' % (sPHB, fl(-0.125), sPHB), 's_cselect_b32 s%d, %s, 0' % (sPHA, fl(-0.125)),
           's_cselect_b32 s%d, %s, 1.0' % (sSC, fl(0.5 ** 0.5)),
           's_add_u32 s%d, s%d, s%d' % (sROW, sP, sTAU), 's_cmp_eq_u32 s%d, 48' % sP, 's_cselect_b32 s%d, 1, s%d' % (sROW, sROW),
           's_cmp_eq_u32 s%d, 0' % sTAU, 's_cselect_b32 s%d, 32, 1' % sSTEP]
    a('s_cmp_lt_u32 s%d, 4' % sW8)
    a('s_cbranch_scc1 %s_main' % name)
    a('s_lshl_b32 s%d, s%d, 5' % (sT0, sJ))
    a('v_lshl_add_u32 v8, v2, 1, s%d' % sT0)
    a('v_mov_b32 v9, 0x100')
    a('v_cmp_eq_u32 vcc, 0, v8')
    a('s_and_b32 s44, s%d, 3' % sW8)
    a('s_lshl_b32 s%d, s44, 5' % sT0)
    a('v_cndmask_b32 v9, v8, v9, vcc')
    a('v_or_b32 v8, 1, v8')
    a('v_lshl_add_u32 v10, v3, 3, s%d' % sT0)
    a('v_cvt_f32_u32 v10, v10')
    a('s_lshl_b32 s%d, s44, 12' % sT0)
    a('v_add_u32 v13, s%d, v1' % sT0)
    for cb in range(2):
        e = (9, 8)[cb]
        a('v_cvt_f32_u32 v%d, v%d' % (e, e))
        a('v_mul_f32 v%d, %s, v%d' % (e, fl(-1 / 512), e))
        a('v_mul_f32 v11, v10, v%d' % e)
        for n in range(4):
            a('v_add_f32 v12, v11, v%d' % e)
            a('v_cos_f32 v14, v11')
            a('v_sin_f32 v16, v11')
            a('v_cos_f32 v15, v12')
            a('v_sin_f32 v17, v12')
            a('v_add_f32 v11, v12, v%d' % e)
            a('v_cvt_pk_bf16_f32 v%d, v14, v15' % (32 + 8 * cb + n))
            a('v_cvt_pk_bf16_f32 v%d, v16, v17' % (36 + 8 * cb + n))
        for part in range(2):
            a('ds_write_b128 v13, %s offset:%d' % (vr(32 + 8 * cb + 4 * part, 4), L_WF + (2 * cb + part) * 1024))
    a('s_waitcnt lgkmcnt(0)')
    if OPT.get('tlb'):
        a.srd(SW, 6, WS_BYTES)
        a('v_and_b32 v18, %d, v0' % (OPT['tlb'] - 1))
        a('v_lshlrev_b32 v18, %d, v18' % OPT.get('tlbsh', 20))
        a('buffer_load_dword v63, v18, %s, 0 offen' % sr(SW, 4))
    a('s_barrier')
    a('s_branch %s_mover' % name)
    a.label('%s_main' % name)

    if OPT['prio']: a('s_setprio 1')
    X, W = 128, 192
    AE, AO = 64, 80
    TK, TD = 112, 120
    GQ, GS, ONE = 20, 24, 28
    P = 32
    sXS = 45
    vm = VM(a)
    if OPT['pf_self']: vm.issue('pf')
    a('v_lshrrev_b32 v6, 1, v4')
    a('v_xor_b32 v6, v5, v6')
    a('v_lshlrev_b32 v6, 4, v6')
    a('v_lshl_add_u32 v6, v4, 16, v6')
    a('v_xor_b32 v17, 0x80040, v6')
    a('s_add_u32 s44, s%d, 1' % sW8)
    a('s_lshl_b32 s44, s44, 14')
    a('s_and_b32 s%d, s%d, 1' % (sT0, sW8))
    a('s_lshl_b32 s%d, s%d, 10' % (sT0, sT0))
    a('s_add_u32 s46, s%d, s%d' % (sT0, sPS))
    a('s_lshl_b32 s%d, s46, 10' % sXS)
    dma = []
    for i in range(16):
        c, q = i >> 1, i & 1
        dma.append(['s_add_u32 m0, s44, %d' % (c * (2048 - 128) + q * 1024), 's_nop 0',
                    'buffer_load_dwordx4 v%d, %s, s%d offen offset:%d lds' % ((6, 17)[q], sr(SX, 4), sXS, c * 128)])
        vm.issue(('x', c))
    lg = LG(a)
    wrd = []
    for i in range(16):
        wrd.append('ds_read_b128 %s, v1 offset:%d' % (vr(W + 4 * i, 4), i * 1024)); lg.issue(('w', i >> 2))
    nb = OPT['wbar']
    dma[nb - 1] = dma[nb - 1] + ['s_barrier']
    per = -(-16 // (17 - nb))
    for i in range(nb - 1, 16):
        dma[i] = dma[i] + wrd[:per]; wrd = wrd[per:]
    V = ['\n'.join(PAR + ['s_bitcmp1_b32 s%d, 1' % sW8, 's_cselect_b32 s%d, s%d, s%d' % (sPHI, sPHB, sPHA),
                          's_cmp_eq_u32 s%d, 0' % sP, 's_cselect_b32 s47, 0, -1']),
         'v_lshlrev_b32 v7, 31, v2', 'v_or_b32 v7, 1.0, v7',
         'v_lshl_add_u32 v8, v3, 8, s46', 'v_cvt_f32_u32 v8, v8', 'v_cvt_f32_u32 v10, v2']
    for tb in range(2):
        V += ['v_add_f32 v11, %s, v10' % fl(16.0 * tb), 'v_mul_f32 v11, %s, v11' % fl(1 / 2048), 'v_fma_f32 v12, v11, v8, s%d' % sPHI]
        for n in range(2):
            V += ['v_fmamk_f32 v13, v11, %s, v12' % fl(128.0 * n), 'v_fmamk_f32 v14, v11, %s, v12' % fl(128.0 * n + 64),
                  'v_cos_f32 v15, v13', 'v_cos_f32 v16, v14', 'v_sin_f32 v13, v13', 'v_sin_f32 v14, v14',
                  'v_cvt_pk_f16_f32 v%d, v15, v16' % (TK + 4 * tb + n), 'v_cvt_pk_f16_f32 v%d, v13, v14' % (TK + 4 * tb + 2 + n),
                  'v_cvt_pk_f16_f32 v%d, -v13, -v14' % (TD + 4 * tb + n), 'v_and_b32 v%d, s47, v%d' % (TD + 4 * tb + 2 + n, TK + 4 * tb + n),
                  'v_and_b32 v%d, s47, v%d' % (TD + 4 * tb + n, TD + 4 * tb + n)]
    V += ['v_mov_b32 v%d, 0x3f803f80' % (ONE + i) for i in range(4)]
    V += ['v_lshrrev_b32 v18, 1, v2', 'v_xor_b32 v18, v3, v18', 'v_lshlrev_b32 v18, 4, v18', 'v_lshl_add_u32 v18, v2, 7, v18',
          'v_add_u32 v18, s44, v18', 'v_xor_b32 v19, 64, v18',
          's_lshl_b32 s%d, s%d, 6' % (sT0, sW8), 's_add_u32 s%d, s%d, %d' % (sT0, sT0, L_R),
          'v_lshl_add_u32 v8, v2, 2, s%d' % sT0,
          'v_mul_u32_u24 v9, 80, v3',
          's_mul_i32 s%d, s%d, %d' % (sT0, sW8, EXW), 's_lshr_b32 s%d, s%d, 1' % (sT1, sW8), 's_lshl_b32 s%d, s%d, 6' % (sT1, sT1),
          's_add_u32 s%d, s%d, %d' % (sT0, sT0, L_EX), 'v_mul_u32_u24 v10, 144, v2', 'v_lshl_add_u32 v10, v3, 4, v10',
          'v_add_u32 v10, s%d, v10' % sT0, 's_xor_b32 s%d, s%d, 64' % (sT2, sT1), 'v_add_u32 v11, s%d, v10' % sT2, 'v_add_u32 v10, s%d, v10' % sT1,
          'v_and_b32 v12, 1, v0', 'v_cmp_eq_u32 s[50:51], 1, v12', 'v_and_b32 v12, 2, v0', 'v_cmp_eq_u32 s[52:53], 2, v12',
          'v_lshrrev_b32 v12, 2, v2', 'v_cmp_eq_u32 s[54:55], v12, v3',
          's_lshl_b32 s%d, s%d, 3' % (sT0, sW8), 'v_add_u32 v12, s%d, v4' % sT0, 'v_mul_u32_u24 v13, 144, v12',
          'v_lshl_add_u32 v13, v5, 4, v13', 'v_add_u32 v13, %d, v13' % L_EX,
          'v_lshlrev_b32 v12, 15, v12', 'v_and_b32 v14, 3, v0', 'v_lshl_add_u32 v12, v14, 4, v12',
          'v_lshrrev_b32 v14, 2, v5', 's_lshl_b32 s%d, s%d, 6' % (sT0, sSTEP), 'v_mad_u32_u24 v12, v14, s%d, v12' % sT0,
          's_lshl_b32 s%d, s%d, 12' % (sT1, sJ), 's_lshl_b32 s%d, s%d, 6' % (sT2, sROW), 's_add_u32 s38, s%d, s%d' % (sT1, sT2),
          's_add_u32 s38, s38, %d' % Z_OFF,
          's_mov_b32 s%d, s6' % SW, 's_and_b32 s%d, s7, 0xffff' % (SW + 1), 's_mov_b32 s%d, 0x%x' % (SW + 2, WS_BYTES), 's_mov_b32 s%d, 0x20000' % (SW + 3)]
    def after_pre():
        a('s_waitcnt lgkmcnt(0)')
        st.mark()
        a.srd(SX, 4, 2048 * 1024)
    weave(a, V, dma, OPT['pre'], OPT['burst'], after_pre)
    T = []
    def fill(n):
        for o in T[:n]: a(o)
        del T[:n]
    st.mark()
    seen = set()
    def main_mfma(ks, nf):
        q, kb = ks >> 2, ks & 3
        lg.wait(('w', kb))
        for cb in range(2):
            for part in range(2):
                r0 = AE + 8 * (q & 1) + 4 * part if cb == 0 else AO + 8 * q + 4 * part
                acc = vr(r0, 4)
                a('v_mfma_f32_16x16x32_bf16 %s, %s, %s, %s' % (acc, vr(X + 4 * ks, 4), vr(W + 16 * kb + 8 * cb + 4 * part, 4), acc if r0 in seen else '0'))
                seen.add(r0)
                fill(nf)
    def stat_mfma(ks):
        lg.wait(ks)
        f = vr(X + 4 * ks, 4)
        for G, B in ((GQ, f), (GS, vr(ONE, 4))):
            a('v_mfma_f32_16x16x32_bf16 %s, %s, %s, %s' % (vr(G, 4), f, B, vr(G, 4) if G in seen else '0'))
            seen.add(G)
    def rd(c):
        if c >= 8: return
        vm.wait(('x', c))
        for ks in (2 * c, 2 * c + 1):
            a('ds_read_b128 %s, v%d offset:%d' % (vr(X + 4 * ks, 4), 18 + (ks & 1), c * 2048)); lg.issue(ks)
    if stamps: a('s_waitcnt lgkmcnt(0)')
    rd(0)
    st.mark()
    if stamps: a('s_waitcnt lgkmcnt(0)')
    NL = OPT['nlast']
    mains = list(range(16))
    for c in range(8):
        stat_mfma(2 * c)
        rd(c + 1)
        stat_mfma(2 * c + 1)
        if c < 7:
            want = min(2 * c + 2, ((16 - NL) * (c + 1) + 6) // 7)
            while 16 - len(mains) < want: main_mfma(mains.pop(0), 0)
    st.mark()
    if stamps: a('s_waitcnt lgkmcnt(0)')
    a('s_mov_b64 exec, 0xffff')
    a('ds_write2st64_b32 v8, v%d, v%d offset0:1 offset1:3' % (X, X + 32))
    a('s_mov_b64 exec, -1')
    main_mfma(mains.pop(0), 0)
    for G in (GQ, GS):
        T += ['v_cndmask_b32 v%d, v%d, v%d, s[50:51]' % (G, G, G + 1), 'v_cndmask_b32 v%d, v%d, v%d, s[50:51]' % (G + 2, G + 2, G + 3),
              'v_cndmask_b32 v%d, v%d, v%d, s[52:53]' % (G, G, G + 2)]
    T += ['v_mul_f32 v%d, %s, v%d' % (GS, fl(-1 / 512), GS), 'v_mul_f32 v%d, %s, v%d' % (GQ, fl(1 / 512), GQ),
          'v_fma_f32 v%d, -v%d, v%d, v%d' % (GQ, GS, GS, GQ), 'v_max_f32 v%d, 0, v%d' % (GQ, GQ),
          'v_add_f32 v%d, %s, v%d' % (GQ, fl(1e-5), GQ), 'v_rsq_f32 v%d, v%d' % (GQ, GQ), 's_nop 0', 'v_mul_f32 v%d, s%d, v%d' % (GQ, sSC, GQ)]
    T += ['ds_bpermute_b32 v%d, v9, v%d offset:%d' % (ONE + r, GQ, 4 * r) for r in range(4)]
    SR = 48

    E1 = ['v_fmac_f32 v%d, v7, v%d' % (AO + i, AO + 12 + i) for i in range(4)]
    E1 += ['v_fma_f32 v%d, -v7, v%d, v%d' % (AO + 4 + i, AO + 8 + i, AO + 4 + i) for i in range(4)]
    E2 = ['v_sub_f32 v%d, v%d, v%d' % (AO + i, AO + i, AO + 16 + i) for i in range(8)]
    E2 += ['s_waitcnt lgkmcnt(0)']
    E2 += ['v_mul_f32 v%d, v7, v%d' % (SR + i, ONE + i) for i in range(4)]
    E2 += ['v_mul_f32 v%d, v%d, v%d' % (AE + i, AE + i, ONE + (i & 3)) for i in range(8)]
    E2 += ['v_mul_f32 v%d, v%d, v%d' % (AO + i, AO + i, ONE + (i & 3)) for i in range(8)]
    T += E1
    assert mains[0] <= 13
    while mains:
        ks = mains.pop(0)
        if ks == 13: T += E2
        main_mfma(ks, 2)
    fill(len(T))
    a('s_mov_b64 exec, s[54:55]')
    a('ds_write2st64_b32 v8, v%d, v%d offset0:0 offset1:2' % (GQ, GS))
    a('s_mov_b64 exec, -1')
    st.mark()
    A2, OUT = P, X
    for i in range(8): a('v_fmac_f32 v%d, v%d, v%d' % (AE + i, SR + (i & 3), AE + 8 + i))
    for n in range(4): a('v_cvt_pk_f16_f32 v%d, v%d, v%d' % (A2 + n, AE + 2 * n, AE + 2 * n + 1))
    T += ['v_fma_f32 v%d, -v%d, v%d, v%d' % (AO + i, SR + i, AO + 28 + i, AO + i) for i in range(4)]
    T += ['v_fmac_f32 v%d, v%d, v%d' % (AO + 4 + i, SR + i, AO + 24 + i) for i in range(4)]
    T += ['v_cvt_pk_f16_f32 v%d, v%d, v%d' % (A2 + 4 + n, AO + 2 * n, AO + 2 * n + 1) for n in range(4)]
    fill(2)
    for cb in range(2):
        for kind, M in enumerate((TK, TD)):
            for tb in range(2):
                a('v_mfma_f32_16x16x32_f16 %s, %s, %s, 0' % (vr(OUT + 16 * kind + 8 * tb + 4 * cb, 4), vr(A2 + 4 * cb, 4), vr(M + 4 * tb, 4)))
                fill(4)
        fill(len(T))
    for kind in range(2):
        for tb in range(2):
            o = OUT + 16 * kind + 8 * tb; d = AE + 8 * kind + 4 * tb
            for r in range(4): a('v_cvt_pk_f16_f32 v%d, v%d, v%d' % (d + r, o + r, o + 4 + r))
            a('ds_write_b128 v%d, %s offset:%d' % (10 + kind, vr(d, 4), tb * 16 * 144))
    a('s_waitcnt lgkmcnt(0)')
    a('s_barrier')
    for w in range(4): a('ds_read_b128 %s, v13 offset:%d' % (vr(P + 4 * w, 4), w * EXW))
    a('s_waitcnt lgkmcnt(2)')
    for i in range(4): a('v_pk_add_f16 v%d, v%d, v%d' % (P + i, P + i, P + 4 + i))
    a('s_waitcnt lgkmcnt(0)')
    for i in range(4): a('v_pk_add_f16 v%d, v%d, v%d' % (P + 8 + i, P + 8 + i, P + 12 + i))
    for i in range(4): a('v_pk_add_f16 v%d, v%d, v%d' % (P + i, P + i, P + 8 + i))
    a('s_cmp_eq_u32 s%d, 0' % sTAU)
    a('s_cbranch_scc1 %s_zhalf' % name)
    a('buffer_store_dwordx4 %s, v12, %s, s38 offen %s' % (vr(P, 4), sr(SW, 4), OPT['st_z']))
    a('s_branch %s_zdone' % name)
    a.label('%s_zhalf' % name)
    a('buffer_store_dwordx4 %s, v12, %s, s38 offen' % (vr(P, 4), sr(SW, 4)))
    a.label('%s_zdone' % name)
    st.mark()
    st.flush(SW, sW8)
    a.label('%s_walk' % name)
    if nstub:
        a('s_mov_b64 exec, 0')
        for k in range(min(nstub, 8)):
            a('s_cmp_eq_u32 s%d, %d' % (sW8, k))
            a('s_cbranch_scc1 %s_stub%d' % (next_kernel, k))
    a.label('%s_fin' % name)
    a('s_endpgm')

    a.label('%s_mover' % name)
    st.n = 1
    vm = VM(a)
    sHW, sWO1, sWO2, sST = 44, 47, 48, 49
    a('s_and_b32 s%d, s2, 7' % sT0)
    a('s_lshl_b32 s%d, s%d, 2' % (sT0, sT0))
    a('s_add_u32 s%d, s%d, s%d' % (sT0, sT0, sHW))
    a('s_lshl_b32 s%d, s%d, 10' % (sWO1, sT0))
    a('s_lshr_b32 s%d, s%d, 1' % (sT0, sT0))
    a('s_lshl_b32 s%d, s%d, 5' % (sT0, sT0))
    a('s_sub_u32 s%d, 768, s%d' % (sT1, sT0))
    a('s_cmp_ge_u32 s%d, 256' % sT0)
    a('s_cselect_b32 s%d, s%d, s%d' % (sT0, sT1, sT0))
    a('s_cselect_b32 s%d, -1, 1' % sT1)
    a('v_mov_b32 v8, s%d' % sT0)
    a('v_mad_i32_i24 v8, v4, s%d, v8' % sT1)
    a('s_mul_i32 s50, s%d, %d' % (sT1, 8 * 3584))
    a('s_movk_i32 s%d, 3584' % sT2)
    a('v_lshlrev_b32 v5, 4, v5')
    a('v_mad_u32_u24 v9, v8, s%d, v5' % sT2)
    a('v_cmp_eq_u32 vcc, 0x200, v8')
    a('v_subrev_u32 v8, %d, v9' % (256 * 3584))
    a('v_lshlrev_b32 v12, 3, v2')
    a('v_lshl_add_u32 v12, v3, 12, v12')
    a('v_cndmask_b32 v8, v9, v8, vcc')
    a('v_add_u32 v9, s50, v9')
    a('v_add_u32 v10, s50, v9')
    a('v_add_u32 v11, s50, v10')
    a('s_lshr_b32 s%d, s2, 3' % sT0)
    a('s_lshl_b32 s56, s%d, 7' % sT0)
    a('s_lshl_b32 s%d, s%d, 17' % (sT0, sT0))
    a('s_add_u32 s%d, s%d, s%d' % (sWO1, sWO1, sT0))
    a('s_add_u32 s%d, s%d, %d' % (sWO1, sWO1, WP_OFF))
    a('s_cmp_ge_u32 s2, %d' % (0 if OPT.get('now') == 1 else 224))
    a('s_cselect_b32 s56, %d, s56' % OOB)
    if OPT.get('now') == 2: a('s_cmp_ge_u32 s2, 0')
    a('s_cselect_b32 s%d, %d, s%d' % (sWO1, OOB, sWO1))
    a('s_lshl_b32 s%d, s%d, 12' % (sST, sHW))
    a('s_add_u32 s%d, s%d, %d' % (sST, sST, L_WST))
    a('s_sub_u32 s%d, 255, s2' % sT0)
    a('s_lshl_b32 s%d, s%d, 1' % (sT0, sT0))
    a('s_and_b32 s%d, s%d, 1' % (sT1, sHW))
    a('s_add_u32 s%d, s%d, s%d' % (sT0, sT0, sT1))
    a('s_and_b32 s%d, s%d, 7' % (sT1, sT0))
    a('s_lshr_b32 s%d, s%d, 3' % (sT2, sT0))
    a('s_mul_i32 s%d, s%d, 229376' % (sWO2, sT1))
    a('s_lshl_b32 s50, s%d, 12' % sT2)
    a('s_add_u32 s%d, s%d, s50' % (sWO2, sWO2))
    a('s_add_u32 s%d, s%d, %d' % (sWO2, sWO2, WD_OFF))
    a('s_cmp_ge_u32 s%d, 48' % sT2)
    a('s_cselect_b32 s51, 14, 7')
    a('s_cselect_b32 s54, 7, 1')
    a('s_and_b32 s50, s%d, 15' % sT2)
    a('s_mul_i32 s50, s50, s51')
    a('s_lshr_b32 s%d, s%d, 4' % (sT2, sT2))
    a('s_lshl_b32 s%d, s%d, 1' % (sT2, sT2))
    a('s_add_u32 s50, s50, s%d' % sT2)
    a('s_lshl_b32 s50, s50, 14')
    a('s_lshl_b32 s%d, s%d, 7' % (sT1, sT1))
    a('s_add_u32 s50, s50, s%d' % sT1)
    a('s_lshl_b32 s54, s54, 14')
    a('s_cmp_ge_u32 s%d, %d' % (sT0, 0 if OPT.get('now') in (1, 3) else 448))
    a('s_cselect_b32 s50, %d, s50' % OOB)
    if OPT.get('now') == 2: a('s_cmp_ge_u32 s2, 0')
    a('s_cselect_b32 s%d, %d, s%d' % (sWO2, OOB, sWO2))
    a('v_bfe_u32 v32, v0, 2, 2')
    a('v_and_b32 v33, 3, v0')
    a('v_lshlrev_b32 v32, 7, v32')
    a('v_add_u32 v32, s%d, v32' % sST)
    a('v_lshl_add_u32 v32, v33, 3, v32')
    a('v_lshl_add_u32 v32, v3, 9, v32')
    a('s_bitcmp1_b32 s%d, 0' % sHW)
    a('s_cselect_b32 s%d, s34, s32' % SG)
    a('s_cselect_b32 s%d, s35, s33' % (SG + 1))
    a('s_and_b32 s%d, s%d, 0xffff' % (SG + 1, SG + 1))
    a('s_mov_b32 s%d, %d' % (SG + 2, 512 * 3584))
    a('s_mov_b32 s%d, 0x20000' % (SG + 3))
    a.srd(SD, 36, 1792 * 1024)
    a.srd(SW, 6, WS_BYTES)
    for n in range(4):
        a('s_add_u32 m0, s%d, %d' % (sST, n * 1024))
        a('buffer_load_dwordx4 v%d, %s, s56 offen lds' % (8 + n, sr(SG, 4)))
    def w1_part(nafter):
        a('s_waitcnt vmcnt(%d)' % nafter)
        for f in range(4):
            for n in range(2):
                a('ds_read_b64_tr_b16 %s, v32 offset:%d' % (vr(64 + 4 * f + 2 * n, 2), n * 2048 + f * 32))
        for f in range(4):
            a('s_waitcnt lgkmcnt(%d)' % (6 - 2 * f))
            a('buffer_store_dwordx4 %s, v1, %s, s%d offen %s' % (vr(64 + 4 * f, 4), sr(SW, 4), sWO1, OPT['st_w']))
            if f < 3: a('s_add_u32 s%d, s%d, 32768' % (sWO1, sWO1))
    a('s_cmp_lt_u32 s%d, 2' % sHW)
    a('s_cbranch_scc1 %s_h01' % name)
    a('s_add_u32 s51, s50, s54')
    for jj in range(8):
        a('buffer_load_dwordx2 %s, v12, %s, s%d offen offset:%d' % (vr(96 + 2 * jj, 2), sr(SD, 4), 50 + (jj >> 2), (jj & 3) * 1024))
    a('s_mov_b32 s52, 0x05040100')
    a('s_mov_b32 s53, 0x07060302')
    st.mark()
    if stamps: a('s_waitcnt lgkmcnt(0)')
    w1_part(8)
    a('s_waitcnt vmcnt(4)')
    for db in range(4):
        for t in range(4):
            a('v_perm_b32 v%d, v%d, v%d, s%d' % (80 + 4 * db + t, 96 + 4 * t + 2 + (db >> 1), 96 + 4 * t + (db >> 1), 52 + (db & 1)))
        a('buffer_store_dwordx4 %s, v1, %s, s%d offen offset:%d %s' % (vr(80 + 4 * db, 4), sr(SW, 4), sWO2, 1024 * db, OPT['st_w']))
    st.mark()
    a('s_barrier')
    st.flush(SW, sW8)
    a('s_branch %s_walk' % name)
    a.label('%s_h01' % name)
    st.n = 1
    npf = 0
    for i in range(4): a('v_mov_b32 v%d, 0' % (40 + i))
    a('s_lshr_b32 s%d, s2, 2' % sT0)
    a('s_mul_i32 s%d, s%d, %d' % (sT0, sT0, FG))
    a('s_and_b32 s%d, s2, 3' % sT1)
    a('s_lshl_b32 s%d, s%d, 1' % (sT1, sT1))
    a('s_add_u32 s%d, s%d, s%d' % (sT1, sT1, sHW))
    a('s_lshl_b32 s%d, s%d, 10' % (sT1, sT1))
    a('s_add_u32 s%d, s%d, s%d' % (sT0, sT0, sT1))
    a('s_add_u32 s%d, s%d, %d' % (sT0, sT0, FLAG_OFF))
    a('buffer_store_dwordx4 v[40:43], v1, %s, s%d offen sc1' % (sr(SW, 4), sT0)); npf += 1
    if next_kernel and OPT['pf_next']:
        a('s_getpc_b64 s[42:43]')
        a.label('%s_pc' % name)
        a('s_add_u32 s42, s42, %s - %s_pc' % (next_kernel, name))
        a('s_addc_u32 s43, s43, 0')
        a('s_lshr_b32 s%d, s2, 3' % sT0)
        a('s_lshl_b32 s%d, s%d, 1' % (sT0, sT0))
        a('s_add_u32 s%d, s%d, s%d' % (sT0, sT0, sHW))
        a('s_lshl_b32 s%d, s%d, 10' % (sT0, sT0))
        a('v_add_u32 v44, s%d, v1' % sT0)
        a('v_min_u32 v44, %s_end - %s, v44' % (next_kernel, next_kernel))
        a('v_add_co_u32 v44, vcc, s42, v44')
        a('v_mov_b32 v45, s43')
        a('v_addc_co_u32 v45, vcc, 0, v45, vcc')
        a('global_load_dword v46, v[44:45], off'); npf += 1
    for o in PAR: a(o)
    a('s_lshl_b32 s%d, s%d, 2' % (sT0, sJ))
    a('v_add_u32 v41, s%d, v3' % sT0)
    a('v_cvt_f32_u32 v42, v41')
    a('v_mul_f32 v42, %s, v42' % fl(1 / 2048))
    for sg, (sres, sph) in enumerate(((sP, sPHA), (sPB, sPHB))):
        a('v_lshl_add_u32 v43, v2, 6, s%d' % sres)
        a('v_cvt_f32_u32 v43, v43')
        if sph: a('v_fma_f32 v43, v43, v42, s%d' % sph)
        else: a('v_mul_f32 v43, v43, v42')
        a('v_fmamk_f32 v48, v42, %s, v43' % fl(1024.0))
        a('v_cos_f32 v%d, v43' % (50 + 4 * sg))
        a('v_cos_f32 v%d, v48' % (51 + 4 * sg))
        a('v_sin_f32 v%d, v43' % (52 + 4 * sg))
        a('v_sin_f32 v%d, v48' % (53 + 4 * sg))
    a('v_lshlrev_b32 v40, 2, v2')
    a('v_add_u32 v40, %d, v40' % L_R)
    for q in range(4): a('v_add_u32 v%d, %d, v40' % (104 + q, 64 * q))
    a('v_lshlrev_b32 v47, 2, v0')
    a('v_add_u32 v47, %d, v47' % (L_R + 512))
    st.mark()
    if stamps: a('s_waitcnt lgkmcnt(0)')
    w1_part(npf)
    st.mark()
    a('s_cmp_eq_u32 s%d, 0' % sHW)
    a('s_cbranch_scc1 %s_h0' % name)
    a('v_mov_b32 v62, s%d' % sP)
    a('v_mov_b32 v63, s%d' % sPB)
    a('v_cmp_gt_u32 vcc, 32, v0')
    a('v_and_b32 v59, 31, v0')
    a('v_lshlrev_b32 v59, 3, v59')
    a('v_cndmask_b32 v62, v63, v62, vcc')
    a('v_lshl_add_u32 v59, v62, 8, v59')
    a('s_cmp_eq_u32 s%d, 0' % sJ)
    a('s_mov_b32 s%d, %d' % (sT0, MX_OFF))
    a('s_cselect_b32 s%d, s%d, %d' % (sT0, sT0, OOB))
    a('s_barrier')
    a('ds_read2st64_b32 v[60:61], v47 offset0:0 offset1:1')
    a('s_waitcnt lgkmcnt(0)')
    a('v_lshlrev_b32 v61, 16, v61')
    a('buffer_store_dwordx2 v[60:61], v59, %s, s%d offen %s' % (sr(SW, 4), sT0, OPT['st_s']))
    a('s_branch %s_hend' % name)
    a.label('%s_h0' % name)
    a('s_barrier')
    for q in range(4):
        a('ds_read_b32 v%d, v40 offset:%d' % (60 + q, 256 + 64 * q))
        a('ds_read2st64_b32 %s, v%d offset0:0 offset1:2' % (vr(96 + 2 * q, 2), 104 + q))
    a('s_waitcnt lgkmcnt(0)')
    for q in range(4):
        a('v_lshlrev_b32 v%d, 16, v%d' % (60 + q, 60 + q))
        a('v_add_f32 v%d, v%d, v%d' % (60 + q, 60 + q, 97 + 2 * q))
        a('v_mul_f32 v%d, v%d, v%d' % (60 + q, 60 + q, 96 + 2 * q))
    a('v_mul_f32 v58, v56, v62')
    a('v_mul_f32 v59, v52, v60')
    a('v_fmac_f32 v58, v57, v63')
    a('v_fmac_f32 v59, v53, v61')
    a('v_mul_f32 v58, s%d, v58' % sLAM)
    a('v_mul_f32 v59, s%d, v59' % sLAM)
    a('v_fma_f32 v58, -v50, v60, v58')
    a('v_fma_f32 v59, -v54, v62, v59')
    a('v_fma_f32 v58, -v51, v61, v58')
    a('v_fma_f32 v59, -v55, v63, v59')
    for rot in (8, 4, 2, 1):
        a('v_add_f32_dpp v58, v58, v58 row_ror:%d row_mask:0xf bank_mask:0xf' % rot)
        a('v_add_f32_dpp v59, v59, v59 row_ror:%d row_mask:0xf bank_mask:0xf' % rot)
    a('v_cvt_pk_f16_f32 v58, v58, v59')
    a('v_lshlrev_b32 v41, 7, v41')
    a('s_lshl_b32 s%d, s%d, 1' % (sT0, sROW))
    a('s_add_u32 s%d, s%d, %d' % (sT0, sT0, ZC_OFF))
    a('s_lshl_b32 s%d, s%d, 1' % (sT1, sSTEP))
    a('s_add_u32 s%d, s%d, s%d' % (sT1, sT1, sT0))
    a('s_mov_b32 exec_lo, 0x10001')
    a('s_mov_b32 exec_hi, 0x10001')
    a('buffer_store_short v58, v41, %s, s%d offen' % (sr(SW, 4), sT0))
    a('buffer_store_short_d16_hi v58, v41, %s, s%d offen' % (sr(SW, 4), sT1))
    a.label('%s_hend' % name)
    a('s_mov_b64 exec, -1')
    st.flush(SW, sW8)
    a('s_branch %s_walk' % name)
    a.label('%s_end' % name)
    a('s_endpgm')
    return a.text(), descriptor(name, 256, 256), (name, 256, 512, LDS)

if __name__ == '__main__':
    from gen2 import gen_empty
    K2 = [0, 1, 4, 5, 8, 9, 12, 13, 2, 3, 6, 7, 10, 11, 14, 15]
    for tag, o in (('a', dict()), ('b', dict(stamp=2)), ('c', dict(wbar=8)), ('d', dict(nlast=8, burst=8, wbar=8))):
        save = dict(OPT); OPT.update(o)
        t, d, l = gen_k1('k1_kernel', OPT.get('stamp', 1), 'k2_kernel')
        t, n = hazard.fix(t, '-v' in sys.argv and tag == 'a')
        t2, d2, l2 = gen_empty('k2_kernel', 1)
        open('k1v6%s.s' % tag, 'w').write(build_file([l, l2], t + '\n' + t2, [d, d2]))
        OPT.clear(); OPT.update(save)
```

```python
from asmlib import *
def probe(name, off0, off1, base_ticks):
    a = Asm()
    a.kernel_begin(name)
    a('s_load_dwordx2 s[4:5], s[0:1], 88')
    a('s_cmp_ge_u32 s2, 1')
    a('s_cbranch_scc1 %s_end' % name)
    a('s_waitcnt lgkmcnt(0)')
    a.srd(8, 4, 268435456)
    a('v_mov_b32 v1, %d' % off0)
    a('v_mov_b32 v2, %d' % off1)
    a('buffer_load_dword v3, v1, s[8:11], 0 offen')
    a('buffer_load_dword v4, v2, s[8:11], 0 offen')
    a('s_waitcnt vmcnt(0)')
    a('v_readfirstlane_b32 s12, v3')
    a('v_readfirstlane_b32 s13, v4')
    a('s_nop 3')
    a('s_sub_u32 s13, s13, s12')
    a('s_min_u32 s13, s13, 10000')
    a('s_add_u32 s13, s13, %d' % base_ticks)
    a('s_mov_b32 s14, 0')
    a.label('%s_spin' % name)
    a('s_memrealtime s[16:17]')
    a('s_waitcnt lgkmcnt(0)')
    a('s_sub_u32 s15, s16, s12')
    a('s_cmp_ge_u32 s15, s13')
    a('s_cbranch_scc1 %s_end' % name)
    a('s_add_u32 s14, s14, 1')
    a('s_cmp_lt_u32 s14, 20000')
    a('s_cbranch_scc1 %s_spin' % name)
    a.label('%s_end' % name)
    a('s_endpgm')
    return a.text(), descriptor(name, 8, 8, 32), (name, 1, 64, 0)
def with_probe(stamp_off, kslot, wg, wave, idx, base_us=60):
    def extra(body, descs, launches):
        o = lambda k, b, w, i: stamp_off + k * 131072 + (b * 8 + w) * 64 + 4 * i
        t, d, l = probe('probe_kernel', o(0, 0, 0, 0), o(kslot, wg, wave, idx), base_us * 100)
        return body + t, descs + [d], launches + [l]
    return extra
if __name__ == '__main__':
    import gen1
    for n, (k, w, i) in enumerate([(0, 0, 0), (0, 4, 6), (1, 0, 0), (1, 0, 6), (2, 0, 0), (2, 0, 5)]):
        gen1.build('p%d.s' % n, True, extra=with_probe(gen1.STAMP_OFF, k, 0 if n == 0 else 100, w, i))

def probe_red(name, off0, offk, op, base_ticks):
    a = Asm()
    a.kernel_begin(name)
    a('s_load_dwordx2 s[4:5], s[0:1], 88')
    a('s_cmp_ge_u32 s2, 1')
    a('s_cbranch_scc1 %s_end' % name)
    a('s_waitcnt lgkmcnt(0)')
    a.srd(8, 4, 268435456)
    a('v_mov_b32 v1, %d' % off0)
    a('v_lshlrev_b32 v2, 9, v0')
    a('buffer_load_dword v3, v1, s[8:11], 0 offen')
    for q in range(4):
        a('s_mov_b32 s12, %d' % (offk + q * 64 * 512))
        a('buffer_load_dword v%d, v2, s[8:11], s12 offen' % (4 + q))
    a('s_waitcnt vmcnt(0)')
    for q in range(4): a('v_sub_u32 v%d, v%d, v3' % (4 + q, 4 + q))
    for q in range(1, 4): a('v_%s_i32 v4, v4, v%d' % (op, 4 + q))
    a('s_nop 1')
    a('v_readfirstlane_b32 s12, v3')
    a('v_readlane_b32 s13, v4, 0')
    for l in range(1, 64):
        a('v_readlane_b32 s14, v4, %d' % l)
        a('s_nop 0')
        a('s_%s_i32 s13, s13, s14' % op)
    a('s_add_u32 s13, s13, 500')
    a('s_min_u32 s13, s13, 10000')
    a('s_add_u32 s13, s13, %d' % base_ticks)
    a('s_mov_b32 s14, 0')
    a.label('%s_spin' % name)
    a('s_memrealtime s[16:17]')
    a('s_waitcnt lgkmcnt(0)')
    a('s_sub_u32 s15, s16, s12')
    a('s_cmp_ge_u32 s15, s13')
    a('s_cbranch_scc1 %s_end' % name)
    a('s_add_u32 s14, s14, 1')
    a('s_cmp_lt_u32 s14, 20000')
    a('s_cbranch_scc1 %s_spin' % name)
    a.label('%s_end' % name)
    a('s_endpgm')
    return a.text(), descriptor(name, 16, 16, 32), (name, 1, 64, 0)
def with_red(stamp_off, kslot, wave, idx, op, base_us=35):
    def extra(body, descs, launches):
        t, d, l = probe_red('probe_kernel', stamp_off, stamp_off + kslot * 131072 + wave * 64 + 4 * idx, op, base_us * 100)
        return body + t, descs + [d], launches + [l]
    return extra
```

```python
import genf2 as G, probe, hazard, align
K1 = G.K1
def mk(path, o, what=(2, 0, 0, 'min')):
    red = probe.with_red(G.STAMP_OFF, *what)
    def extra(body, descs, launches):
        s = dict(K1.OPT); K1.OPT.update(o)
        t, d, l = K1.gen_k1('t_kernel', 1, 'fnet_ffn_kernel', 0)
        K1.OPT.clear(); K1.OPT.update(s)
        t = align.layout(hazard.fix(t, ext=True)[0], 1, None)[0]
        return red(G.PAGE + t + '\n' + body, [d] + descs, [l] + launches)
    G.build(path, 1, extra=extra, o1=dict(slot=2))
if __name__ == '__main__':
    mk('p0.s', {})
    mk('p1.s', dict(now=1))
    mk('p2.s', dict(now=2))
    mk('p3.s', dict(now=3))
    mk('p4.s', dict(wbar=4))
    mk('p5.s', dict(wbar=14))
```

```python
import sys, struct
from asmlib import *
import hazard

WS_BYTES = 268435456
Z_OFF, XP_OFF, WP_OFF = 0, 1 << 20, 3 << 20
ZC_OFF, MX_OFF = 7 << 20, (7 << 20) + 4096
ACT_OFF, HB_OFF = 8 << 20, 16 << 20
STAMP_OFF = 128 << 20
OOB = 0x20000000

def fl(x):
    return '0x%08x' % struct.unpack('<I', struct.pack('<f', x))[0]

class VM:
    def __init__(self, a): self.a = a; self.q = []
    def issue(self, tag): self.q.append(tag)
    def wait(self, tag):
        idx = [i for i, t in enumerate(self.q) if t == tag]
        if not idx: return
        n = len(self.q) - 1 - idx[-1]
        assert n <= 62
        self.a('s_waitcnt vmcnt(%d)' % n)
        self.q = self.q[idx[-1] + 1:]

class LG(VM):
    def wait(self, tag):
        idx = [i for i, t in enumerate(self.q) if t == tag]
        if not idx: return
        n = len(self.q) - 1 - idx[-1]
        self.a('s_waitcnt lgkmcnt(%d)' % min(n, 14))
        self.q = self.q[idx[-1] + 1:] if n <= 14 else self.q[-14:]

class Stamps:
    def __init__(self, a, on, slot): self.a = a; self.on = on; self.slot = slot; self.n = 0
    LITE = False
    def mark(self, force=False):
        if Stamps.LITE:
            if self.n == 0 or force:
                self.a('s_memrealtime s[%d:%d]' % (64 + 2 * self.n, 65 + 2 * self.n)); self.n += 1
            return
        if self.on:
            self.a('%s s[%d:%d]' % ('s_memtime' if self.on == 2 else 's_memrealtime', 64 + 2 * self.n, 65 + 2 * self.n)); self.n += 1
    def flush(self, srd, wave_s, n=None):
        if not self.on and not Stamps.LITE: return
        a = self.a
        a('s_waitcnt vmcnt(0)')
        self.mark(True)
        a('s_waitcnt lgkmcnt(0)')
        a('s_lshl_b32 s62, s2, 3')
        a('s_add_u32 s62, s62, s%d' % wave_s)
        a('s_lshl_b32 s62, s62, 6')
        a('s_add_u32 s62, s62, %d' % (STAMP_OFF + self.slot * 131072))
        a('s_mov_b64 exec, 1')
        a('v_mov_b32 v1, 0')
        a('s_getreg_b32 s63, hwreg(HW_REG_XCC_ID)')
        a('v_mov_b32 v2, s63')
        a('buffer_store_dword v2, v1, %s, s62 offen offset:60' % sr(srd, 4))
        for i in range(self.n):
            a('v_mov_b32 v2, s%d' % (64 + 2 * i))
            a('buffer_store_dword v2, v1, %s, s62 offen offset:%d' % (sr(srd, 4), 4 * i))

def gen_k1(name, stamps):
    a = Asm()
    XROW = 1056
    L_WST = 64 * XROW
    L_EX = L_WST + 16384
    L_R = L_EX + 8192
    L_PART = L_R + 256
    LDS = L_PART + 128
    SX, SG, SU, SW = 8, 12, 16, 20
    sW8, sP, sJ, sPS, sT0, sT1, sT2, sLAM, sPHI = 3, 24, 25, 26, 27, 28, 29, 30, 31
    a.kernel_begin(name)
    st = Stamps(a, stamps, 0)
    st.mark()
    a('s_load_dwordx2 s[4:5], s[0:1], 0')
    a('s_load_dwordx4 s[32:35], s[0:1], 48')
    a('s_load_dwordx2 s[6:7], s[0:1], 88')
    a('s_cmp_ge_u32 s2, 256')
    a('s_cbranch_scc1 %s_end' % name)
    a('v_lshrrev_b32 v2, 6, v0')
    a('v_and_b32 v0, 63, v0')
    a('v_readfirstlane_b32 s%d, v2' % sW8)
    a('v_lshlrev_b32 v1, 4, v0')
    a('s_and_b32 s%d, s2, 31' % sP)
    a('s_lshr_b32 s%d, s2, 5' % sJ)
    a('s_sub_u32 s%d, 64, s%d' % (sT0, sP))
    a('s_cmp_eq_u32 s%d, 0' % sP)
    a('s_cselect_b32 s36, 32, s%d' % sT0)
    a('s_cselect_b32 s%d, 0, 1.0' % sLAM)
    a('s_cselect_b32 s37, 0, %s' % fl(-0.25))
    a('s_cmp_ge_u32 s%d, 4' % sW8)
    a('s_cselect_b32 s%d, s36, s%d' % (sT0, sP))
    a('s_and_b32 s%d, s%d, 3' % (sT1, sW8))
    a('s_lshl_b32 s%d, s%d, 9' % (sT1, sT1))
    a('s_add_u32 s%d, s%d, s%d' % (sT0, sT0, sT1))
    a('s_lshl_b32 s%d, s%d, 10' % (sT0, sT0))
    a('s_mul_i32 s%d, s%d, %d' % (sT1, sW8, 8 * XROW))
    a('s_waitcnt lgkmcnt(0)')
    a.srd(SX, 4, 2048 * 1024)
    for n in range(8):
        a('s_mov_b32 m0, s%d' % sT1)
        a('s_add_u32 s%d, s%d, %d' % (sT1, sT1, XROW))
        a('buffer_load_dwordx4 v1, %s, s%d offen lds' % (sr(SX, 4), sT0))
        a('s_add_u32 s%d, s%d, 65536' % (sT0, sT0))
    a.srd(SW, 6, WS_BYTES)
    a('v_and_b32 v2, 15, v0')
    a('v_lshrrev_b32 v3, 4, v0')
    a('s_bitcmp1_b32 s%d, 1' % sW8)
    a('s_cselect_b32 s%d, s36, s%d' % (sPS, sP))
    a('s_cselect_b32 s%d, s37, 0' % sPHI)
    a('s_cmp_ge_u32 s%d, 4' % sW8)
    a('s_cbranch_scc1 %s_helper' % name)

    WA, WB = 128, 192
    TC, TS, TN = 104, 112, 120
    ACC = 88
    XF = 32
    a('s_and_b32 s%d, s%d, 1' % (sT0, sW8))
    a('s_lshl_b32 s%d, s%d, 4' % (sT0, sT0))
    a('s_lshl_b32 s%d, s%d, 5' % (sT1, sJ))
    a('s_add_u32 s%d, s%d, s%d' % (sT0, sT0, sT1))
    a('v_add_u32 v4, s%d, v2' % sT0)
    a('v_mov_b32 v5, 0x100')
    a('v_cmp_eq_u32 vcc, 0, v4')
    a('v_cndmask_b32 v4, v4, v5, vcc')
    a('v_cvt_f32_u32 v5, v4')
    a('v_mul_f32 v5, %s, v5' % fl(1 / 512))
    a('v_cvt_f32_u32 v6, v3')
    a('v_mul_f32 v6, 0x41000000, v6')
    a('v_mul_f32 v6, v6, v5')
    for ks in range(4):
        for n in range(4):
            a('v_fmamk_f32 v8, v5, %s, v6' % fl(32 * ks + 2 * n))
            a('v_fmamk_f32 v9, v5, %s, v6' % fl(32 * ks + 2 * n + 1))
            a('v_cos_f32 v10, v8')
            a('v_cos_f32 v11, v9')
            a('v_sin_f32_e64 v12, -v8')
            a('v_sin_f32_e64 v13, -v9')
            a('v_cvt_pk_bf16_f32 v%d, v10, v11' % (WA + 4 * ks + n))
            a('v_cvt_pk_bf16_f32 v%d, v12, v13' % (WB + 4 * ks + n))
    a('v_and_b32 v8, 1, v4')
    a('v_cmp_eq_u32 vcc, 1, v8')
    a('s_mov_b32 s%d, 0x80008000' % sT0)
    a('v_mul_lo_u32 v9, v8, s%d' % sT0)
    a('v_bfe_u32 v10, v4, 1, 1')
    a('v_mul_lo_u32 v10, v10, s%d' % sT0)
    a('v_xor_b32 v11, v9, v10')
    for i in range(16):
        a('v_cndmask_b32 v12, v%d, v%d, vcc' % (WA + i, WB + i))
        a('v_cndmask_b32 v13, v%d, v%d, vcc' % (WB + i, WA + i))
        a('v_xor_b32 v%d, v9, v%d' % (WA + 32 + i, WA + i))
        a('v_xor_b32 v%d, v9, v%d' % (WB + 32 + i, WB + i))
        a('v_xor_b32 v%d, v10, v12' % (WA + 16 + i))
        a('v_xor_b32 v%d, v11, v13' % (WB + 16 + i))
        a('v_xor_b32 v%d, v11, v12' % (WA + 48 + i))
        a('v_xor_b32 v%d, v10, v13' % (WB + 48 + i))
    a('v_lshlrev_b32 v8, 8, v3')
    a('v_add_u32 v8, s%d, v8' % sPS)
    a('v_cvt_f32_u32 v8, v8')
    a('v_cvt_f32_u32 v9, v2')
    a('v_mov_b32 v16, s%d' % sPHI)
    for tb in range(2):
        a('v_add_f32 v10, %s, v9' % fl(16.0 * tb))
        a('v_mul_f32 v10, %s, v10' % fl(1 / 2048))
        a('v_fma_f32 v11, v10, v8, v16')
        for n in range(4):
            s1 = [(0, 1), (2, 3), (16, 17), (18, 19)][n]
            a('v_fmamk_f32 v12, v10, %s, v11' % fl(64.0 * s1[0]))
            a('v_fmamk_f32 v13, v10, %s, v11' % fl(64.0 * s1[1]))
            a('v_cos_f32 v14, v12')
            a('v_cos_f32 v15, v13')
            a('v_sin_f32 v12, v12')
            a('v_sin_f32 v13, v13')
            a('v_cvt_pk_f16_f32 v%d, v14, v15' % (TC + 4 * tb + n))
            a('v_cvt_pk_f16_f32 v%d, v12, v13' % (TS + 4 * tb + n))
            a('v_cvt_pk_f16_f32 v%d, -v12, -v13' % (TN + 4 * tb + n))
    a('s_lshr_b32 s%d, s%d, 1' % (sT0, sW8))
    a('s_mul_i32 s%d, s%d, %d' % (sT1, sT0, 32 * XROW))
    a('v_mul_u32_u24 v8, %d, v2' % XROW)
    a('v_lshl_add_u32 v8, v3, 4, v8')
    a('v_add_u32 v8, s%d, v8' % sT1)
    a('s_lshl_b32 s%d, s%d, 7' % (sT1, sT0))
    a('s_add_u32 s%d, s%d, %d' % (sT1, sT1, L_R))
    a('v_lshl_add_u32 v9, v3, 4, s%d' % sT1)
    a('s_lshl_b32 s%d, s%d, 11' % (sT1, sW8))
    a('s_add_u32 s%d, s%d, %d' % (sT2, sT1, L_EX))
    a('v_add_u32 v10, s%d, v1' % sT2)
    a('s_xor_b32 s%d, s%d, 4096' % (sT1, sT1))
    a('s_add_u32 s%d, s%d, %d' % (sT2, sT1, L_EX))
    a('v_add_u32 v11, s%d, v1' % sT2)
    a('v_lshlrev_b32 v12, 15, v2')
    a('v_lshl_add_u32 v12, v3, 3, v12')
    a('s_lshl_b32 s%d, s%d, 12' % (sT1, sJ))
    a('s_lshl_b32 s%d, s%d, 7' % (sT2, sP))
    a('s_add_u32 s%d, s%d, s%d' % (sT1, sT1, sT2))
    a('s_lshl_b32 s%d, s%d, 5' % (sT2, sW8))
    a('s_add_u32 s38, s%d, s%d' % (sT1, sT2))
    a('s_add_u32 s38, s38, %d' % Z_OFF)
    a('s_add_u32 s39, s38, %d' % (16 * 32768))
    st.mark()
    a('s_waitcnt vmcnt(0)')
    a('s_barrier')
    st.mark()
    lg = LG(a)
    if stamps: a('s_waitcnt lgkmcnt(0)')
    PD = 7
    def rd(ks):
        for rb in range(2):
            a('ds_read_b128 %s, v8 offset:%d' % (vr(XF + 8 * (ks % PD) + 4 * rb, 4), rb * 16 * XROW + ks * 64))
            lg.issue(('x', ks, rb))
    for ks in range(PD - 1): rd(ks)
    for ks in range(16):
        if ks + PD - 1 < 16: rd(ks + PD - 1)
        for rb in range(2):
            lg.wait(('x', ks, rb))
            for part, W in enumerate((WA, WB)):
                acc = vr(ACC + 8 * part + 4 * rb, 4)
                a('v_mfma_f32_16x16x32_bf16 %s, %s, %s, %s' % (acc, vr(XF + 8 * (ks % PD) + 4 * rb, 4), vr(W + 4 * ks, 4), acc if ks else '0'))
    a('s_barrier')
    a('ds_read_b128 v[16:19], v9')
    a('ds_read_b128 v[20:23], v9 offset:64')
    a('s_waitcnt lgkmcnt(0)')
    for part in range(2):
        for i in range(8):
            a('v_mul_f32 v%d, v%d, v%d' % (ACC + 8 * part + i, ACC + 8 * part + i, 16 + i))
        for n in range(4):
            a('v_cvt_pk_f16_f32 v%d, v%d, v%d' % (24 + 4 * part + n, ACC + 8 * part + 2 * n, ACC + 8 * part + 2 * n + 1))
    KP, SD = 40, 32
    for tb in range(2):
        a('v_mfma_f32_16x16x32_f16 %s, v[24:27], %s, 0' % (vr(SD + 4 * tb, 4), vr(TN + 4 * tb, 4)))
    for tb in range(2):
        a('v_mfma_f32_16x16x32_f16 %s, v[28:31], %s, %s' % (vr(SD + 4 * tb, 4), vr(TC + 4 * tb, 4), vr(SD + 4 * tb, 4)))
    for tb in range(2):
        a('v_mfma_f32_16x16x32_f16 %s, v[24:27], %s, 0' % (vr(KP + 4 * tb, 4), vr(TC + 4 * tb, 4)))
    for tb in range(2):
        a('v_mfma_f32_16x16x32_f16 %s, v[28:31], %s, %s' % (vr(KP + 4 * tb, 4), vr(TS + 4 * tb, 4), vr(KP + 4 * tb, 4)))
    a('ds_write_b128 v10, %s' % vr(SD, 4))
    a('ds_write_b128 v10, %s offset:1024' % vr(SD + 4, 4))
    a('s_waitcnt lgkmcnt(0)')
    a('s_barrier')
    a('ds_read_b128 v[48:51], v11')
    a('ds_read_b128 v[52:55], v11 offset:1024')
    a('s_waitcnt lgkmcnt(0)')
    for i in range(8):
        a('v_fma_f32 v%d, v%d, s%d, v%d' % (KP + i, 48 + i, sLAM, KP + i))
    for n in range(4):
        a('v_cvt_pk_f16_f32 v%d, v%d, v%d' % (48 + n, KP + 2 * n, KP + 2 * n + 1))
    a('buffer_store_dwordx2 v[48:49], v12, %s, s38 offen' % sr(SW, 4))
    a('buffer_store_dwordx2 v[50:51], v12, %s, s39 offen' % sr(SW, 4))
    st.mark()
    n_main = st.n
    st.flush(SW, sW8)
    a('s_endpgm')

    a.label('%s_helper' % name)
    st.n = 1
    vm = VM(a)
    for _ in range(8): vm.issue('x')
    sHW, sKS, sD0, sSG, sWO = 40, 41, 42, 43, 44
    a.srd(SG, 32, 512 * 3584)
    a.srd(SU, 34, 512 * 3584)
    a('s_and_b32 s%d, s%d, 3' % (sHW, sW8))
    a('s_and_b32 s%d, s2, 7' % sT0)
    a('s_lshl_b32 s%d, s%d, 2' % (sT0, sT0))
    a('s_add_u32 s%d, s%d, s%d' % (sKS, sT0, sHW))
    a('s_lshl_b32 s%d, s%d, 4' % (sT0, sKS))
    a('s_sub_u32 s%d, 768, s%d' % (sT1, sT0))
    a('s_cmp_ge_u32 s%d, 16' % sKS)
    a('s_cselect_b32 s%d, s%d, s%d' % (sD0, sT1, sT0))
    a('s_cselect_b32 s%d, -1, 1' % sSG)
    a('s_lshr_b32 s%d, s2, 3' % sT0)
    a('s_lshl_b32 s%d, s%d, 7' % (sT1, sT0))
    a('s_lshl_b32 s%d, s%d, 17' % (sWO, sT0))
    a('s_lshl_b32 s%d, s%d, 10' % (sT2, sKS))
    a('s_add_u32 s%d, s%d, s%d' % (sWO, sWO, sT2))
    a('s_add_u32 s%d, s%d, %d' % (sWO, sWO, WP_OFF))
    a('s_cmp_ge_u32 s2, 224')
    a('s_cselect_b32 s%d, %d, s%d' % (sT1, OOB, sT1))
    a('s_cselect_b32 s%d, %d, s%d' % (sWO, OOB, sWO))
    a('v_lshrrev_b32 v4, 3, v0')
    a('v_and_b32 v5, 7, v0')
    a('v_lshlrev_b32 v5, 4, v5')
    a('v_mov_b32 v6, s%d' % sD0)
    a('v_mad_i32_i24 v6, v4, s%d, v6' % sSG)
    a('s_lshl_b32 s%d, s%d, 3' % (sT2, sSG))
    a('v_add_u32 v7, s%d, v6' % sT2)
    a('v_mov_b32 v8, 0x100')
    a('v_cmp_eq_u32 vcc, 0x200, v6')
    a('v_cndmask_b32 v6, v6, v8, vcc')
    a('s_movk_i32 s%d, 3584' % sT2)
    a('v_mad_u32_u24 v6, v6, s%d, v5' % sT2)
    a('v_mad_u32_u24 v7, v7, s%d, v5' % sT2)
    a('s_lshl_b32 s%d, s%d, 12' % (sT2, sHW))
    a('s_add_u32 s45, s%d, %d' % (sT2, L_WST))
    for mat, S_ in enumerate((SG, SU)):
        for n in range(2):
            a('s_add_u32 m0, s45, %d' % (mat * 2048 + n * 1024))
            a('buffer_load_dwordx4 v%d, %s, s%d offen lds' % (6 + n, sr(S_, 4), sT1))
            vm.issue('w')
    a('s_and_b32 s%d, s%d, 1' % (sT0, sHW))
    a('s_lshl_b32 s%d, s%d, 10' % (sT0, sT0))
    a('s_add_u32 s%d, s%d, s%d' % (sT0, sT0, sPS))
    a('v_lshl_add_u32 v8, v2, 6, s%d' % sT0)
    a('s_lshl_b32 s%d, s%d, 2' % (sT0, sJ))
    a('v_add_u32 v9, s%d, v3' % sT0)
    a('v_mul_u32_u24 v8, v8, v9')
    a('v_cvt_f32_u32 v8, v8')
    a('v_mov_b32 v9, s%d' % sPHI)
    a('v_fmamk_f32 v8, v8, %s, v9' % fl(1 / 2048))
    a('v_cos_f32 v10, v8')
    a('v_sin_f32 v11, v8')
    a('v_mul_f32 v11, s%d, v11' % sLAM)
    a('s_mul_i32 s%d, s%d, %d' % (sT0, sHW, 16 * XROW))
    a('v_mul_u32_u24 v12, %d, v2' % XROW)
    a('v_add_u32 v13, s%d, v12' % sT0)
    a('v_lshl_add_u32 v12, v3, 4, v13')
    a('v_mov_b32 v14, 0')
    a('v_mov_b32 v15, 0')
    a('v_mov_b32 v16, 0')
    a('v_mov_b32 v17, 0')
    a('v_mov_b32 v18, 0x3f803f80')
    st.mark()
    vm.wait('x')
    a('s_barrier')
    st.mark()
    if stamps: a('s_waitcnt lgkmcnt(0)')
    lg = LG(a)
    a('ds_read_b32 v19, v13'); lg.issue('x0')
    for ks in range(14):
        a('ds_read_b128 %s, v12 offset:%d' % (vr(64 + 4 * ks, 4), ks * 64)); lg.issue(ks)
    for ks in range(16):
        lg.wait(ks)
        if ks + 14 < 16:
            a('ds_read_b128 %s, v12 offset:%d' % (vr(64 + 4 * (ks + 14), 4), (ks + 14) * 64)); lg.issue(ks + 14)
        for n in range(4):
            r = 64 + 4 * ks + n
            a('v_dot2c_f32_bf16 v%d, v%d, v%d' % (14 + (n & 1), r, r))
            a('v_dot2c_f32_bf16 v%d, v%d, v18' % (16 + (n & 1), r))
    a('v_add_f32 v14, v14, v15')
    a('v_add_f32 v16, v16, v17')
    for op in ('v_permlane32_swap_b32', 'v_permlane16_swap_b32'):
        a('v_mov_b32 v15, v14')
        a('v_mov_b32 v17, v16')
        a('%s v14, v15' % op)
        a('%s v16, v17' % op)
        a('v_add_f32 v14, v14, v15')
        a('v_add_f32 v16, v16, v17')
    a('v_mul_f32 v16, %s, v16' % fl(-1 / 512))
    a('v_mul_f32 v14, %s, v14' % fl(1 / 512))
    a('v_fma_f32 v14, -v16, v16, v14')
    a('v_max_f32 v14, 0, v14')
    a('v_add_f32 v14, %s, v14' % fl(1e-5))
    a('v_rsq_f32 v14, v14')
    a('v_lshlrev_b32 v19, 16, v19')
    a('v_add_f32 v19, v19, v16')
    a('s_lshl_b32 s%d, s%d, 6' % (sT0, sHW))
    a('s_add_u32 s%d, s%d, %d' % (sT0, sT0, L_R))
    a('v_lshl_add_u32 v20, v2, 2, s%d' % sT0)
    a('ds_write_b32 v20, v14')
    a('v_mul_f32 v19, v19, v14')
    a('v_mul_f32 v10, v10, v19')
    a('v_mul_f32 v11, v11, v19')
    for rot in (8, 4, 2, 1):
        a('v_add_f32_dpp v10, v10, v10 row_ror:%d row_mask:0xf bank_mask:0xf' % rot)
        a('v_add_f32_dpp v11, v11, v11 row_ror:%d row_mask:0xf bank_mask:0xf' % rot)
    a('v_sub_f32 v10, 0, v10')
    a('s_lshl_b32 s%d, s%d, 5' % (sT0, sHW))
    a('s_lshr_b32 s%d, s%d, 1' % (sT1, sHW))
    a('s_lshl_b32 s%d, s%d, 2' % (sT1, sT1))
    a('s_add_u32 s%d, s%d, s%d' % (sT0, sT0, sT1))
    a('s_add_u32 s%d, s%d, %d' % (sT0, sT0, L_PART))
    a('v_lshl_add_u32 v20, v3, 3, s%d' % sT0)
    a('v_xor_b32 v21, 4, v20')
    a('ds_write_b32 v20, v10')
    a('ds_write_b32 v21, v11')
    a('s_waitcnt lgkmcnt(0)')
    a('s_barrier')
    st.mark()
    if stamps: a('s_waitcnt lgkmcnt(0)')
    a('v_and_b32 v22, 31, v0')
    a('v_lshrrev_b32 v23, 5, v0')
    a('s_lshr_b32 s%d, s%d, 1' % (sT0, sHW))
    a('s_mul_i32 s%d, s%d, %d' % (sT0, sT0, 32 * XROW))
    a('v_mul_u32_u24 v22, %d, v22' % XROW)
    a('v_add_u32 v22, s%d, v22' % sT0)
    a('s_and_b32 s%d, s%d, 1' % (sT0, sHW))
    a('s_lshl_b32 s%d, s%d, 1' % (sT0, sT0))
    a('s_lshl_b32 s%d, s%d, 2' % (sT1, sJ))
    a('s_add_u32 s%d, s%d, s%d' % (sT0, sT0, sT1))
    a('s_lshl_b32 s%d, s%d, 5' % (sT1, sPS))
    a('s_add_u32 s%d, s%d, s%d' % (sT1, sT1, sT0))
    a('s_lshl_b32 s%d, s%d, 10' % (sT1, sT1))
    a('s_add_u32 s46, s%d, %d' % (sT1, XP_OFF))
    a('s_lshl_b32 s%d, s%d, 5' % (sT0, sT0))
    a('v_lshl_add_u32 v23, v23, 4, s%d' % sT0)
    a('s_cmp_ge_u32 s%d, 4' % sJ)
    a('s_cbranch_scc1 %s_xr' % name)
    a('v_add_u32 v24, v22, v23')
    a('ds_read_b128 v[32:35], v24')
    a('ds_read_b128 v[36:39], v24 offset:32')
    a('s_waitcnt lgkmcnt(0)')
    a('s_branch %s_xs' % name)
    a.label('%s_xr' % name)
    a('v_sub_u32 v23, 1536, v23')
    a('v_add_u32 v24, v22, v23')
    a('v_subrev_u32 v24, 48, v24')
    a('v_mov_b32 v25, 0x200')
    a('v_cmp_eq_u32 vcc, 0x400, v23')
    a('v_cndmask_b32 v25, v23, v25, vcc')
    a('v_add_u32 v25, v22, v25')
    a('ds_read_b128 v[40:43], v24 offset:32')
    a('ds_read_b32 v44, v25')
    a('ds_read_b128 v[48:51], v24')
    a('ds_read_b32 v52, v24 offset:16')
    a('s_mov_b32 s%d, 0xffff' % sT0)
    a('s_waitcnt lgkmcnt(0)')
    for f in range(2):
        for n in range(4):
            a('v_bfi_b32 v%d, s%d, v%d, v%d' % (32 + 4 * f + n, sT0, 40 + 8 * f + 4 - n, 40 + 8 * f + 3 - n))
    a.label('%s_xs' % name)
    a('buffer_store_dwordx4 v[32:35], v1, %s, s46 offen' % sr(SW, 4)); vm.issue('s')
    a('buffer_store_dwordx4 v[36:39], v1, %s, s46 offen offset:1024' % sr(SW, 4)); vm.issue('s')
    a('s_barrier')
    a('s_lshl_b32 s%d, s%d, 7' % (sT0, sPS))
    a('s_and_b32 s%d, s%d, 1' % (sT1, sHW))
    a('s_lshl_b32 s%d, s%d, 6' % (sT1, sT1))
    a('s_add_u32 s%d, s%d, s%d' % (sT0, sT0, sT1))
    a('s_add_u32 s%d, s%d, %d' % (sT0, sT0, MX_OFF))
    a('s_cmp_eq_u32 s%d, 0' % sJ)
    a('s_cselect_b32 s%d, s%d, %d' % (sT0, sT0, OOB))
    a('v_lshlrev_b32 v26, 2, v2')
    a('v_and_b32 v27, 3, v0')
    a('v_lshlrev_b32 v28, 3, v27')
    a('v_add_u32 v28, %d, v28' % L_PART)
    for w in range(4):
        a('ds_read_b64 %s, v28 offset:%d' % (vr(40 + 2 * w, 2), 32 * w))
    a('s_mov_b64 exec, 0xffff')
    a('buffer_store_dword v16, v26, %s, s%d offen' % (sr(SW, 4), sT0)); vm.issue('s')
    a('s_mov_b64 exec, -1')
    a('s_lshl_b32 s%d, s%d, 9' % (sT0, sJ))
    a('s_lshl_b32 s%d, s%d, 2' % (sT1, sP))
    a('s_add_u32 s%d, s%d, s%d' % (sT0, sT0, sT1))
    a('s_add_u32 s%d, s%d, %d' % (sT0, sT0, ZC_OFF))
    a('s_cmp_eq_u32 s%d, 0' % sHW)
    a('s_cselect_b32 s%d, s%d, %d' % (sT0, sT0, OOB))
    a('v_lshlrev_b32 v27, 7, v27')
    a('s_waitcnt lgkmcnt(0)')
    a('v_add_f32 v40, v40, v42')
    a('v_add_f32 v41, v41, v43')
    a('v_add_f32 v44, v44, v46')
    a('v_add_f32 v45, v45, v47')
    a('v_add_f32 v40, v40, v44')
    a('v_add_f32 v41, v41, v45')
    a('v_cvt_pk_f16_f32 v40, v40, v41')
    a('s_mov_b64 exec, 0xf')
    a('buffer_store_dword v40, v27, %s, s%d offen' % (sr(SW, 4), sT0)); vm.issue('s')
    a('s_mov_b64 exec, -1')
    a('v_lshrrev_b32 v22, 5, v0')
    a('v_bfe_u32 v23, v0, 4, 1')
    a('v_bfe_u32 v24, v0, 2, 2')
    a('v_and_b32 v25, 3, v0')
    a('v_lshlrev_b32 v22, 9, v22')
    a('v_lshl_add_u32 v22, v23, 11, v22')
    a('v_lshl_add_u32 v22, v24, 7, v22')
    a('v_lshl_add_u32 v22, v25, 3, v22')
    a('v_add_u32 v22, s45, v22')
    vm.wait('w')
    st.mark()
    if stamps: a('s_waitcnt lgkmcnt(0)')
    for f in range(4):
        for n in range(2):
            a('ds_read_b64_tr_b16 %s, v22 offset:%d' % (vr(64 + 4 * f + 2 * n, 2), n * 1024 + f * 32))
    for f in range(4):
        a('s_waitcnt lgkmcnt(%d)' % (6 - 2 * f))
        a('buffer_store_dwordx4 %s, v1, %s, s%d offen' % (vr(64 + 4 * f, 4), sr(SW, 4), sWO))
        if f < 3: a('s_add_u32 s%d, s%d, 32768' % (sWO, sWO))
    st.mark()
    st.flush(SW, sW8)
    a.label('%s_end' % name)
    a('s_endpgm')
    return a.text(), descriptor(name, 256, 256), (name, 256, 512, LDS)


def emit_dmat(a, D, vT2f, vH, tmp, vSign):
    a('v_mul_f32 v%d, v%d, v%d' % (tmp, vT2f, vH))
    for ks in range(4):
        for n in range(4):
            a('v_fmamk_f32 v%d, v%d, %s, v%d' % (tmp + 1, vT2f, fl(8.0 * ks + n), tmp))
            a('v_cos_f32 v%d, v%d' % (tmp + 2, tmp + 1))
            a('v_sin_f32 v%d, v%d' % (tmp + 3, tmp + 1))
            if ks == 0 and n == 0:
                a('v_cndmask_b32 v%d, v%d, v%d, vcc' % (tmp + 3, tmp + 3, vSign))
            a('v_cvt_pk_f16_f32 v%d, v%d, v%d' % (D + 4 * ks + n, tmp + 2, tmp + 3))

def emit_ident(a, PI, vM, vHi, tmp):
    a('v_lshlrev_b32 v%d, 3, v%d' % (tmp, vHi))
    a('v_sub_u32 v%d, v%d, v%d' % (tmp, vM, tmp))
    a('v_and_b32 v%d, 1, v%d' % (tmp + 1, tmp))
    a('v_lshlrev_b32 v%d, 4, v%d' % (tmp + 1, tmp + 1))
    a('v_mov_b32 v%d, 0x3f80' % (tmp + 2))
    a('v_lshlrev_b32 v%d, v%d, v%d' % (tmp + 1, tmp + 1, tmp + 2))
    a('v_ashrrev_i32 v%d, 1, v%d' % (tmp, tmp))
    for kap in range(2):
        for n in range(4):
            a('v_cmp_eq_u32 vcc, %d, v%d' % (8 * kap + n, tmp))
            a('v_cndmask_b32 v%d, 0, v%d, vcc' % (PI + 4 * kap + n, tmp + 1))

def gen_k23(name, stamps):
    a = Asm()
    LDS = 163840
    SW = 8
    sW8, sW, sTAU, sSL, sT1, sPAR, sPP, sG, sGM, sA, sB, sC = 3, 12, 13, 14, 15, 16, 17, 18, 19, 20, 21, 22
    sT1G0, sT1G1 = 23, 24
    SLOT = [65536, 98304, 131072, 0, 32768, 65536, 98304]
    a.kernel_begin(name)
    st = Stamps(a, stamps, 1)
    st.mark()
    a('s_load_dwordx2 s[4:5], s[0:1], 88')
    a('s_cmp_ge_u32 s2, 256')
    a('s_cbranch_scc1 %s_end' % name)
    a('v_lshrrev_b32 v2, 6, v0')
    a('v_and_b32 v0, 63, v0')
    a('v_readfirstlane_b32 s%d, v2' % sW8)
    a('v_lshlrev_b32 v1, 4, v0')
    a('s_and_b32 s%d, s2, 6' % sA)
    a('s_lshl_b32 s%d, s%d, 1' % (sA, sA))
    a('s_bfe_u32 s%d, s2, 0x20003' % sB)
    a('s_add_u32 s%d, s%d, s%d' % (sTAU, sA, sB))
    a('s_and_b32 s%d, s2, 1' % sA)
    a('s_lshl_b32 s%d, s%d, 3' % (sA, sA))
    a('s_lshr_b32 s%d, s2, 5' % sB)
    a('s_add_u32 s%d, s%d, s%d' % (sSL, sA, sB))
    a('s_and_b32 s%d, s%d, 3' % (sW, sW8))
    a('s_lshr_b32 s%d, s%d, 1' % (sG, sW))
    a('s_and_b32 s%d, s%d, 1' % (sPAR, sW))
    a('s_sub_u32 s%d, 32, s%d' % (sA, sTAU))
    a('s_xor_b32 s%d, s%d, 1' % (sB, sG))
    a('s_cmp_eq_u32 s%d, 0' % sTAU)
    a('s_cselect_b32 s%d, 16, s%d' % (sT1G1, sA))
    a('s_cselect_b32 s%d, s%d, s%d' % (sGM, sG, sB))
    a('s_cmp_eq_u32 s%d, 0' % sG)
    a('s_cselect_b32 s%d, s%d, s%d' % (sT1, sTAU, sT1G1))
    a('s_lshl_b32 s%d, s%d, 5' % (sA, sPAR))
    a('s_add_u32 s%d, s%d, s%d' % (sPP, sT1, sA))
    a('v_and_b32 v2, 31, v0')
    a('v_lshrrev_b32 v3, 5, v0')
    a('s_waitcnt lgkmcnt(0)')
    a.srd(SW, 4, WS_BYTES)
    a('s_cmp_ge_u32 s%d, 4' % sW8)
    a('s_cbranch_scc1 %s_loader' % name)

    def common_setup():
        a('v_lshl_add_u32 v4, v2, 1, s%d' % sPAR)
        a('s_cmp_eq_u32 s%d, 0' % sT1)
        a('s_cselect_b32 s%d, 64, 63' % sA)
        a('v_sub_u32 v5, s%d, v4' % sA)
        a('v_and_b32 v5, 63, v5')
        a('v_lshlrev_b32 v7, 31, v4')
        a('v_or_b32 v7, 1.0, v7')
        a('v_lshlrev_b32 v8, 31, v5')
        a('v_or_b32 v8, 1.0, v8')
        a('v_cvt_f32_u32 v4, v4')
        a('v_cvt_f32_u32 v5, v5')
        a('v_mul_f32 v4, %s, v4' % fl(1 / 64))
        a('v_mul_f32 v5, %s, v5' % fl(1 / 64))
        a('v_cvt_f32_u32 v6, v3')
        a('v_mul_f32 v6, 4.0, v6')
        a('v_bfe_u32 v9, v0, 2, 2')
        a('v_lshlrev_b32 v9, 6, v9')
        a('v_lshl_add_u32 v9, v3, 9, v9')
        a('v_bfe_u32 v10, v0, 4, 1')
        a('v_lshl_add_u32 v9, v10, 5, v9')
        a('v_and_b32 v10, 3, v0')
        a('v_lshl_add_u32 v9, v10, 3, v9')

    XH, DL, DR, PI, CM, ACC, AF = 128, 16, 32, 48, 56, 72, 104
    NAF = 6
    vm = VM(a)
    a('s_lshl_b32 s%d, s%d, 7' % (sA, sT1))
    a('s_add_u32 s%d, s%d, %d' % (sA, sA, ZC_OFF))
    a('v_lshlrev_b32 v10, 4, v3')
    for ks in range(4):
        a('buffer_load_dwordx4 %s, v10, %s, s%d offen offset:%d' % (vr(AF + 4 * ks, 4), sr(SW, 4), sA, 32 * ks)); vm.issue('zc')
    a('s_lshl_b32 s%d, s%d, 7' % (sA, sPP))
    a('s_add_u32 s%d, s%d, %d' % (sA, sA, MX_OFF))
    a('v_lshlrev_b32 v10, 2, v2')
    a('buffer_load_dword v11, v10, %s, s%d offen' % (sr(SW, 4), sA)); vm.issue('zc')
    a('s_lshl_b32 s%d, s%d, 15' % (sA, sPP))
    a('s_add_u32 s%d, s%d, %d' % (sA, sA, XP_OFF))
    a('s_add_u32 s%d, s%d, 16384' % (sB, sA))
    order = []
    for b in range(8): order += [b, 8 + b]
    for b in range(8):
        for half, sreg in ((0, sA), (1, sB)):
            beta = b + 8 * half
            for kap in range(2):
                a('buffer_load_dwordx4 %s, v1, %s, s%d offen offset:%d' % (vr(XH + 8 * beta + 4 * kap, 4), sr(SW, 4), sreg, (b & 1) * 2048 + kap * 1024))
                vm.issue(('x', beta))
        if b & 1:
            a('s_add_u32 s%d, s%d, 4096' % (sA, sA))
            a('s_add_u32 s%d, s%d, 4096' % (sB, sB))
    common_setup()
    a('v_cmp_eq_u32 vcc, 0, v3')
    emit_dmat(a, DL, 4, 6, 12, 7)
    emit_dmat(a, DR, 5, 6, 12, 8)
    emit_ident(a, PI, 2, 3, 12)
    a('v_cmp_ne_u32 vcc, 0, v2')
    a('v_cndmask_b32 v8, 0, -1, vcc')
    a('s_lshl_b32 s%d, s%d, 15' % (sA, sG))
    a('s_lshl_b32 s%d, s%d, 15' % (sB, sGM))
    a('v_add_u32 v10, s%d, v9' % sB)
    a('v_add_u32 v9, s%d, v9' % sA)
    a('v_mov_b32 v6, 0')
    a('v_mov_b32 v7, 0')
    a('v_add_u32 v4, 65536, v1')
    a('v_add_u32 v5, 131072, v1')
    a('s_mul_i32 s%d, s%d, 112' % (sA, sPP))
    a('s_mul_i32 s%d, s%d, 7' % (sB, sSL))
    a('s_add_u32 s%d, s%d, s%d' % (sA, sA, sB))
    a('s_lshl_b32 s%d, s%d, 10' % (sA, sA))
    a('s_add_u32 s%d, s%d, %d' % (sC, sA, ACT_OFF))
    st.mark()
    vm.wait('zc')
    for i in range(16): a('v_mov_b32 v%d, v11' % (CM + i))
    for ks in range(4):
        a('v_mfma_f32_32x32x16_f16 %s, %s, %s, %s' % (vr(CM, 16), vr(AF + 4 * ks, 4), vr(DL + 4 * ks, 4), vr(CM, 16)))
    a('s_barrier')
    st.mark()
    if stamps: a('s_waitcnt lgkmcnt(0)')
    lg = LG(a)
    frags = [(n, ks) for n in range(16) for ks in range(4)]
    state = {'rd': 0}
    def zread():
        f = state['rd']
        if f >= len(frags): return
        n, ks = frags[f]
        if ks == 0 and n in (4, 8, 12): a('s_barrier')
        beta = order[n]
        base = 9 if beta < 8 else 10
        reg = AF + 4 * (f % NAF)
        for q in range(2):
            a('ds_read_b64_tr_b16 %s, v%d offset:%d' % (vr(reg + 2 * q, 2), base, (beta & 7) * 4096 + ks * 1024 + q * 256))
            lg.issue(('z', f))
        state['rd'] += 1
    def post(n):
        beta = order[n]; acc = ACC + 16 * (n & 1); ops = []
        for i in range(8):
            ops.append('v_cvt_pk_bf16_f32 v%d, v%d, v%d' % (XH + 8 * beta + i, acc + 2 * i, acc + 2 * i + 1))
        dots = ['v_dot2c_f32_bf16 v%d, v%d, v%d' % (6 + (i & 1), XH + 8 * beta + i, XH + 8 * beta + i) for i in range(8)]
        return ops[:4] + ops[4:] + dots
    for _ in range(NAF - 1): zread()
    for n in range(16):
        beta = order[n]; acc = vr(ACC + 16 * (n & 1), 16); D = DL if beta < 8 else DR
        pend = post(n - 1) if n else []
        for ks in range(4):
            f = 4 * n + ks
            lg.wait(('z', f))
            reg = AF + 4 * (f % NAF)
            if n == 0:
                for i in range(4): a('v_and_b32 v%d, v8, v%d' % (reg + i, reg + i))
            a('v_mfma_f32_32x32x16_f16 %s, %s, %s, %s' % (acc, vr(reg, 4), vr(D + 4 * ks, 4), acc if ks else vr(CM, 16)))
            zread()
            if ks >= 2:
                for o in pend[:4]: a(o)
                pend = pend[4:]
        vm.wait(('x', beta))
        for kap in range(2):
            a('v_mfma_f32_32x32x16_bf16 %s, %s, %s, %s' % (acc, vr(PI + 4 * kap, 4), vr(XH + 8 * beta + 4 * kap, 4), acc))
            for o in pend[:4]: a(o)
            pend = pend[4:]
    a('s_barrier')
    st.mark()
    if stamps: a('s_waitcnt lgkmcnt(0)')
    WF, NWF = 16, 8
    TMP, OUT = 104, 124
    lg = LG(a)
    wst = {'rd': 0}
    def wread():
        f = wst['rd']
        if f >= 224: return
        i, ks = divmod(f, 32)
        if ks == 0 and i > 0: a('s_barrier')
        base = {0: 1, 1: 4, 2: 5}[SLOT[i] >> 16]
        a('ds_read_b128 %s, v%d offset:%d' % (vr(WF + 4 * (f % NWF), 4), base, (SLOT[i] & 65535) + ks * 1024))
        lg.issue(('w', f))
        wst['rd'] += 1
    for _ in range(NWF - 1): wread()
    for o in post(15): a(o)
    stats = ['v_add_f32 v6, v6, v7', 'v_mov_b32 v7, v6', 'v_permlane32_swap_b32 v6, v7', 'v_add_f32 v6, v6, v7',
             'v_mov_b32 v7, %s' % fl(1e-5), 'v_fmamk_f32 v6, v6, %s, v7' % fl(1 / 512), 'v_rsq_f32 v7, v6',
             'v_mul_f32 v7, %s, v7' % fl(-1.4426950408889634)]
    def epi(i):
        acc = ACC + 16 * (i & 1); ops = []
        for hf in range(2):
            R = range(4 * hf, 4 * hf + 4)
            ops += ['v_mul_f32 v%d, v7, v%d' % (TMP + r, acc + r) for r in R]
            ops += ['v_exp_f32 v%d, v%d' % (TMP + r, TMP + r) for r in R]
            ops += ['v_mul_f32 v%d, v%d, v%d' % (TMP + 8 + r, acc + r, acc + 8 + r) for r in R]
            ops += ['v_fma_f32 v%d, v%d, v6, v6' % (TMP + r, TMP + r) for r in R]
            ops += ['v_rcp_f32 v%d, v%d' % (TMP + r, TMP + r) for r in R]
            ops += ['v_mul_f32 v%d, v%d, v%d' % (TMP + r, TMP + r, TMP + 8 + r) for r in R]
            ops += ['v_cvt_pk_bf16_f32 v%d, v%d, v%d' % (OUT + r // 2, TMP + r, TMP + r + 1) for r in R if r % 2 == 0]
        ops.append('buffer_store_dwordx4 %s, v1, %s, s%d offen %s' % (vr(OUT, 4), sr(SW, 4), sC, ACT_FLAGS))
        ops.append('s_add_u32 s%d, s%d, 1024' % (sC, sC))
        return ops
    for i in range(7):
        acc = vr(ACC + 16 * (i & 1), 16)
        pend = epi(i - 1) if i else list(stats)
        for ks in range(32):
            f = 32 * i + ks
            lg.wait(('w', f))
            a('v_mfma_f32_32x32x16_bf16 %s, %s, %s, %s' % (acc, vr(WF + 4 * (f % NWF), 4), vr(XH + 4 * ks, 4), acc if ks else '0'))
            wread()
            if ks >= 3:
                for o in pend[:2]: a(o)
                pend = pend[2:]
        assert not pend
    st.mark()
    for o in epi(6): a(o)
    st.mark()
    st.flush(SW, sW8)
    a('s_endpgm')

    a.label('%s_loader' % name)
    st.n = 1
    vm = VM(a)
    sZS, sZD, sWS = 25, 26, 27
    a('s_lshl_b32 s%d, s%d, 15' % (sA, sT1))
    a('s_lshl_b32 s%d, s%d, 11' % (sB, sPAR))
    a('s_add_u32 s%d, s%d, s%d' % (sZS, sA, sB))
    a('s_add_u32 s%d, s%d, %d' % (sZS, sZS, Z_OFF))
    a('s_lshl_b32 s%d, s%d, 15' % (sA, sG))
    a('s_add_u32 s%d, s%d, s%d' % (sZD, sA, sB))
    for b in range(8):
        a('s_add_u32 m0, s%d, %d' % (sZD, 4096 * b))
        for q in range(2):
            a('buffer_load_dwordx4 v1, %s, s%d offen offset:%d lds' % (sr(SW, 4), sZS, 1024 * q)); vm.issue(('z', b >> 1))
        a('s_add_u32 s%d, s%d, 4096' % (sZS, sZS))
    LX, LD, LPI, LAF, LACC = 16, 24, 40, 48, 64
    a('s_lshl_b32 s%d, s%d, 15' % (sA, sPP))
    a('s_lshl_b32 s%d, s%d, 11' % (sB, sSL))
    a('s_add_u32 s%d, s%d, s%d' % (sA, sA, sB))
    a('s_add_u32 s%d, s%d, %d' % (sA, sA, XP_OFF))
    for kap in range(2):
        a('buffer_load_dwordx4 %s, v1, %s, s%d offen offset:%d' % (vr(LX + 4 * kap, 4), sr(SW, 4), sA, 1024 * kap)); vm.issue('x')
    a('s_mul_i32 s%d, s%d, %d' % (sWS, sSL, 7 * 32768))
    a('s_lshl_b32 s%d, s%d, 13' % (s_w13, sW))
    a('s_add_u32 s%d, s%d, s%d' % (sWS, sWS, s_w13))
    a('s_add_u32 s%d, s%d, %d' % (sWS, sWS, WP_OFF))
    def wissue(i):
        for hq in range(2):
            a('s_add_u32 m0, s%d, %d' % (s_w13, SLOT[i] + 4096 * hq))
            a('s_add_u32 s%d, s%d, %d' % (sA, sWS, 32768 * i + 4096 * hq))
            for q in range(4):
                a('buffer_load_dwordx4 v1, %s, s%d offen offset:%d lds' % (sr(SW, 4), sA, 1024 * q)); vm.issue(('w', i))
    vm.wait(('z', 0)); a('s_barrier')
    common_setup()
    a('s_cmp_ge_u32 s%d, 8' % sSL)
    a('s_cselect_b32 s%d, s%d, s%d' % (sA, sGM, sG))
    a('s_cselect_b64 vcc, -1, 0')
    a('v_cndmask_b32 v4, v4, v5, vcc')
    a('v_cndmask_b32 v7, v7, v8, vcc')
    a('s_lshl_b32 s%d, s%d, 15' % (sA, sA))
    a('s_and_b32 s%d, s%d, 7' % (sB, sSL))
    a('s_lshl_b32 s%d, s%d, 12' % (sB, sB))
    a('s_add_u32 s%d, s%d, s%d' % (sA, sA, sB))
    a('v_add_u32 v9, s%d, v9' % sA)
    vm.wait(('z', 1)); a('s_barrier')
    a('v_cmp_eq_u32 vcc, 0, v3')
    emit_dmat(a, LD, 4, 6, 12, 7)
    vm.wait(('z', 2)); a('s_barrier')
    wissue(0)
    emit_ident(a, LPI, 2, 3, 12)
    a('v_add_u32 v8, s%d, v2' % sSL)
    a('v_cmp_ne_u32 vcc, 0, v8')
    a('v_cndmask_b32 v8, 0, -1, vcc')
    vm.wait(('z', 3)); a('s_barrier')
    wissue(1)
    for ks in range(4):
        for q in range(2):
            a('ds_read_b64_tr_b16 %s, v9 offset:%d' % (vr(LAF + 4 * ks + 2 * q, 2), ks * 1024 + q * 256))
    wissue(2)
    a('s_waitcnt lgkmcnt(0)')
    for i in range(16): a('v_and_b32 v%d, v8, v%d' % (LAF + i, LAF + i))
    for ks in range(4):
        a('v_mfma_f32_32x32x16_f16 %s, %s, %s, %s' % (vr(LACC, 16), vr(LAF + 4 * ks, 4), vr(LD + 4 * ks, 4), vr(LACC, 16) if ks else '0'))
    vm.wait('x')
    for kap in range(2):
        a('v_mfma_f32_32x32x16_bf16 %s, %s, %s, %s' % (vr(LACC, 16), vr(LPI + 4 * kap, 4), vr(LX + 4 * kap, 4), vr(LACC, 16)))
    a('s_lshl_b32 s%d, s%d, 5' % (sA, sSL))
    a('s_sub_u32 s%d, 768, s%d' % (sB, sA))
    a('s_cmp_ge_u32 s%d, 8' % sSL)
    a('s_cselect_b32 s%d, s%d, s%d' % (sA, sB, sA))
    a('s_cselect_b32 s%d, -1, 1' % sB)
    a('s_cselect_b64 vcc, -1, 0')
    a('s_cselect_b32 s%d, 4, 0' % sC)
    a('s_lshl_b32 s%d, s%d, 7' % (sB, sB))
    a('s_sub_u32 s%d, s%d, s%d' % (sA, sA, sC))
    a('s_lshl_b32 s%d, s%d, 7' % (sA, sA))
    a('s_lshl_b32 s%d, s%d, 16' % (sC, sPP))
    a('s_add_u32 s%d, s%d, s%d' % (sA, sA, sC))
    a('s_add_u32 s%d, s%d, %d' % (sA, sA, HB_OFF))
    a('v_xor_b32 v10, 1, v3')
    a('v_cndmask_b32 v10, v3, v10, vcc')
    a('v_lshlrev_b32 v10, 9, v10')
    a('v_lshl_add_u32 v10, v2, 2, v10')
    a('s_cmp_eq_u32 s%d, 8' % sSL)
    a('s_cselect_b32 s%d, 0, 32768' % sC)
    a('v_mov_b32 v11, s%d' % sC)
    a('v_mov_b32 v12, 32768')
    a('v_cmp_eq_u32 vcc, 0, v3')
    a('v_cndmask_b32 v11, v12, v11, vcc')
    a('v_add_u32 v11, v11, v10')
    a('s_sub_u32 s%d, s%d, 32768' % (sC, sA))
    vm.wait(('w', 0)); a('s_barrier')
    st.mark()
    wissue_tmp = sA
    a('s_mov_b32 s30, s%d' % sA)
    wissue(3); wissue(4)
    a('s_mul_i32 s31, s%d, 5' % sB)
    for r in range(16):
        if r == 0:
            a('buffer_store_dword v%d, v11, %s, s%d offen' % (LACC, sr(SW, 4), sC))
        else:
            a('s_add_u32 s30, s30, s%d' % (sB if r & 3 else 31))
            a('buffer_store_dword v%d, v10, %s, s30 offen' % (LACC + r, sr(SW, 4)))
        vm.issue('h')
    for i in range(1, 7):
        vm.wait(('w', i)); a('s_barrier')
        if i in (2, 3): wissue(i + 3)
    st.mark()
    st.flush(SW, sW8)
    a.label('%s_end' % name)
    a('s_endpgm')
    return a.text(), descriptor(name, 256, 256), (name, 256, 512, LDS)

s_w13 = 28
ACT_FLAGS = 'sc1'

def gen_k4(name, stamps):
    a = Asm()
    LDS = 131072
    SW, SD, SO = 8, 12, 16
    sW, sG0, sDT, sA, sB, sC, sA0, sA1, sWD, sLB = 3, 20, 21, 22, 23, 24, 25, 26, 27, 28
    a.kernel_begin(name)
    st = Stamps(a, stamps, 2)
    st.mark()
    a('s_load_dwordx4 s[4:7], s[0:1], 64')
    a('s_load_dwordx2 s[30:31], s[0:1], 88')
    a('s_cmp_ge_u32 s2, 256')
    a('s_cbranch_scc1 %s_end' % name)
    a('v_lshrrev_b32 v2, 6, v0')
    a('v_mov_b32 v15, v0')
    a('v_and_b32 v0, 63, v0')
    a('v_readfirstlane_b32 s%d, v2' % sW)
    a('v_lshlrev_b32 v1, 4, v0')
    a('s_and_b32 s%d, s2, 6' % sA)
    a('s_lshl_b32 s%d, s%d, 2' % (sA, sA))
    a('s_bfe_u32 s%d, s2, 0x30003' % sB)
    a('s_add_u32 s%d, s%d, s%d' % (sG0, sA, sB))
    a('s_lshl_b32 s%d, s%d, 1' % (sG0, sG0))
    a('s_and_b32 s%d, s2, 1' % sA)
    a('s_lshl_b32 s%d, s%d, 2' % (sA, sA))
    a('s_lshr_b32 s%d, s2, 6' % sB)
    a('s_add_u32 s%d, s%d, s%d' % (sDT, sA, sB))
    a('s_and_b32 s%d, s%d, 1' % (sA, sW))
    a('s_add_u32 s%d, s%d, s%d' % (sB, sG0, sA))
    a('s_xor_b32 s%d, s%d, 1' % (sC, sB))
    a('s_mul_i32 s29, s%d, 28' % sW)
    a('s_mul_i32 s%d, s%d, 112' % (sA0, sB))
    a('s_mul_i32 s%d, s%d, 112' % (sA1, sC))
    for r in (sA0, sA1):
        a('s_add_u32 s%d, s%d, s29' % (r, r))
        a('s_lshl_b32 s%d, s%d, 10' % (r, r))
        a('s_add_u32 s%d, s%d, %d' % (r, r, ACT_OFF))
    a('s_mul_i32 s%d, s%d, %d' % (sWD, sW, 28 * 16384))
    a('s_lshl_b32 s%d, s%d, 7' % (sA, sDT))
    a('s_add_u32 s%d, s%d, s%d' % (sWD, sWD, sA))
    a('s_lshl_b32 s%d, s%d, 15' % (sLB, sW))
    a('v_and_b32 v2, 31, v0')
    a('v_lshrrev_b32 v3, 5, v0')
    a('v_bfe_u32 v4, v0, 4, 1')
    a('v_bfe_u32 v5, v0, 2, 2')
    a('v_and_b32 v6, 3, v0')
    a('v_lshlrev_b32 v7, 12, v3')
    a('v_lshl_add_u32 v7, v5, 10, v7')
    a('v_lshl_add_u32 v7, v4, 6, v7')
    a('v_lshl_add_u32 v7, v6, 4, v7')
    a('s_waitcnt lgkmcnt(0)')
    a.srd(SW, 30, WS_BYTES)
    a.srd(SD, 4, 1792 * 1024)
    ACC, AF, HR, BR = 16, 80, 104, 128
    NB, PD, NL = 14, 12, 16
    vm = VM(a); lg = LG(a)
    def issue(f):
        if f >= 28: return
        for tg, sreg in ((0, sA0), (1, sA1)):
            a('buffer_load_dwordx4 %s, v1, %s, s%d offen offset:%d' % (vr(BR + 8 * (f % NB) + 4 * tg, 4), sr(SW, 4), sreg, (f & 3) * 1024))
            vm.issue(f)
        for n in range(2):
            a('s_add_u32 m0, s%d, %d' % (sLB, (f % NL) * 2048 + n * 1024))
            a('s_add_u32 s%d, s%d, %d' % (sA, sWD, f * 16384 + n * 8192))
            a('buffer_load_dwordx4 v7, %s, s%d offen lds' % (sr(SD, 4), sA))
            vm.issue(f)
        if f & 3 == 3:
            a('s_add_u32 s%d, s%d, 4096' % (sA0, sA0))
            a('s_add_u32 s%d, s%d, 4096' % (sA1, sA1))
    for f in range(PD): issue(f)
    a.srd(SO, 6, 2048 * 1024)
    a('s_lshr_b32 s%d, s%d, 1' % (sA, sW))
    a('s_lshl_b32 s%d, s%d, 8' % (sC, sA))
    a('s_add_u32 s%d, s%d, s%d' % (sC, sC, sLB))
    a('v_lshlrev_b32 v8, 9, v3')
    a('v_lshl_add_u32 v8, v5, 6, v8')
    a('v_lshl_add_u32 v8, v4, 5, v8')
    a('v_lshl_add_u32 v8, v6, 3, v8')
    a('v_add_u32 v8, s%d, v8' % sC)
    a('v_xor_b32 v9, 256, v8')
    a('s_lshl_b32 s%d, s%d, 16' % (sC, sB))
    a('s_lshl_b32 s29, s%d, 13' % sDT)
    a('s_add_u32 s%d, s%d, s29' % (sC, sC))
    a('s_lshl_b32 s29, s%d, 12' % sA)
    a('s_add_u32 s%d, s%d, s29' % (sC, sC))
    a('s_add_u32 s32, s%d, %d' % (sC, HB_OFF))
    a('v_lshlrev_b32 v10, 9, v3')
    a('v_lshl_add_u32 v10, v2, 2, v10')
    def trread(f):
        if f >= 28: return
        vm.wait(f)
        for db in range(2):
            for n in range(2):
                a('ds_read_b64_tr_b16 %s, v%d offset:%d' % (vr(AF + 8 * (f % 3) + 4 * db + 2 * n, 2), 8 + db, (f % NL) * 2048 + n * 1024))
                lg.issue(f)
    st.mark()
    if stamps: a('s_waitcnt lgkmcnt(0)')
    trread(0)
    st.mark()
    if stamps: a('s_waitcnt lgkmcnt(0)')
    for f in range(28):
        issue(f + PD)
        if f + PD == 28:
            for r in range(16):
                a('buffer_load_dword v%d, v10, %s, s32 offen offset:%d' % (HR + r, sr(SW, 4), (8 * (r >> 2) + (r & 3)) * 128)); vm.issue('h')
        trread(f + 1)
        lg.wait(f)
        for db in range(2):
            for tg in range(2):
                acc = vr(ACC + 32 * db + 16 * tg, 16)
                a('v_mfma_f32_32x32x16_bf16 %s, %s, %s, %s' % (acc, vr(AF + 8 * (f % 3) + 4 * db, 4), vr(BR + 8 * (f % NB) + 4 * tg, 4), acc if f else '0'))
    st.mark()
    PW = 64 * 272
    a('s_mul_i32 s%d, s%d, %d' % (sC, sW, PW))
    a('s_and_b32 s%d, s%d, 1' % (sB, sW))
    a('s_lshr_b32 s%d, s%d, 1' % (sA, sW))
    a('v_mul_u32_u24 v11, 272, v2')
    a('v_lshl_add_u32 v11, v3, 4, v11')
    a('v_add_u32 v11, s%d, v11' % sC)
    for db in range(2):
        for tg in range(2):
            a('s_xor_b32 s29, s%d, %d' % (sB, tg))
            a('s_mul_i32 s29, s29, %d' % (32 * 272))
            a('s_xor_b32 s33, s%d, %d' % (sA, db))
            a('s_lshl_b32 s33, s33, 7')
            a('s_add_u32 s29, s29, s33')
            a('v_add_u32 v%d, s29, v11' % (4 + 2 * db + tg))
    vm.wait('h')
    a('s_barrier')
    for db, tg in ((0, 1), (1, 0), (1, 1), (0, 0)):
        acc = ACC + 32 * db + 16 * tg
        if (db, tg) == (0, 0):
            for r in range(16): a('v_add_f32 v%d, v%d, v%d' % (acc + r, acc + r, HR + r))
        for q in range(4):
            a('ds_write_b128 v%d, %s offset:%d' % (4 + 2 * db + tg, vr(acc + 4 * q, 4), 32 * q))
    a('v_lshrrev_b32 v12, 3, v15')
    a('v_and_b32 v13, 7, v15')
    a('v_mul_u32_u24 v14, 272, v12')
    a('v_lshl_add_u32 v14, v13, 5, v14')
    a('v_lshlrev_b32 v12, 16, v12')
    a('v_lshl_add_u32 v12, v13, 4, v12')
    a('s_lshl_b32 s%d, s%d, 10' % (sA, sG0))
    a('s_lshl_b32 s%d, s%d, 7' % (sB, sDT))
    a('s_add_u32 s%d, s%d, s%d' % (sA, sA, sB))
    a('s_waitcnt lgkmcnt(0)')
    a('s_barrier')
    for ps in range(2):
        for w in range(4):
            for q in range(2):
                a('ds_read_b128 %s, v14 offset:%d' % (vr(128 + 32 * ps + 8 * w + 4 * q, 4), w * PW + ps * 32 * 272 + 16 * q))
    for ps in range(2):
        a('s_waitcnt lgkmcnt(%d)' % (8 - 8 * ps))
        b = 128 + 32 * ps
        for i in range(8):
            a('v_add_f32 v%d, v%d, v%d' % (b + i, b + i, b + 8 + i))
            a('v_add_f32 v%d, v%d, v%d' % (b + 16 + i, b + 16 + i, b + 24 + i))
        for i in range(8):
            a('v_add_f32 v%d, v%d, v%d' % (b + i, b + i, b + 16 + i))
        for n in range(4):
            a('v_cvt_pk_bf16_f32 v%d, v%d, v%d' % (b + 8 + n, b + 2 * n, b + 2 * n + 1))
        a('buffer_store_dwordx4 %s, v12, %s, s%d offen offset:%d' % (vr(b + 8, 4), sr(SO, 4), sA, 1024 * ps))
    st.mark()
    st.flush(SW, sW)
    a.label('%s_end' % name)
    a('s_endpgm')
    return a.text(), descriptor(name, 256, 256), (name, 256, 256, LDS)

def build(path, stamps, verbose=False, extra=None):
    header = ''.join(l for l in open('sequential_preLN__spectral_fnet__swiglu_ffn__prompt.s.ref') if l.startswith(';') and 'launch' not in l and 'grid=' not in l)
    body, descs, launches = '', [], []
    for g, nm in ((gen_k1, 'fnet_dft_a_kernel'), (gen_k23, 'fnet_dft_b_glu_kernel'), (gen_k4, 'fnet_down_kernel')):
        t, d, l = g(nm, stamps)
        t, n = hazard.fix(t, verbose)
        body += t + '\n'; descs.append(d); launches.append(l)
    if extra: body, descs, launches = extra(body, descs, launches)
    open(path, 'w').write(build_file(launches, body, descs, header))

if __name__ == '__main__':
    build('v1_dbg.s', True, '-v' in sys.argv)
    build('v1.s', False)
```

```python
import sys, struct
from asmlib import *
import hazard
from gen1 import VM, LG, Stamps, fl

WS_BYTES = 268435456
Z_OFF = 0
WP_OFF = 1 << 20
WD_OFF = WP_OFF + 112 * 32768
ZC_OFF = WD_OFF + 8 * 229376
MX_OFF = ZC_OFF + 4096
FLAG_OFF = MX_OFF + 16384
NFLAG = 4
FG, FK = 8448, 128
ACT_OFF = 8 << 20
STAMP_OFF = 128 << 20
OOB = 0x20000000
OPT = dict(map=0, st_w='sc1', st_z='sc1', st_s='', pf_self=True, pf_next=True, burst=4, pre=1, prio=1, nlast=6, wbar=6)

def weave(a, valu, dma, pre, burst, after_pre):
    for o in valu[:pre]: a(o)
    valu = valu[pre:]
    after_pre()
    for g in dma[:burst]:
        for o in g: a(o)
    dma = dma[burst:]
    step = max(1, min(12, len(valu) // (len(dma) + 1)))
    for g in dma:
        for o in valu[:step]: a(o)
        valu = valu[step:]
        for o in g: a(o)
    for o in valu: a(o)

def gen_k1(name, stamps, next_kernel=None, nstub=0):
    a = Asm()
    L_WF = 0
    L_X = 16384
    L_WST = L_X + 65536
    L_EX = L_WST + 16384
    EXW = 32 * 144
    L_R = L_EX + 4 * EXW
    LDS = L_R + 1024
    SX, SG, SD, SW = 8, 12, 16, 20
    sW8, sP, sJ, sPS, sT0, sT1, sT2, sLAM, sPHI, sPB, sPHB = 3, 24, 25, 26, 27, 28, 29, 30, 31, 40, 41
    sTAU, sPHA, sSC, sROW, sSTEP = 57, 58, 59, 60, 61
    a.kernel_begin(name)
    st = Stamps(a, stamps, OPT.get('slot', 0))
    st.mark()
    a('s_load_dwordx2 s[4:5], s[0:1], 0')
    a('s_load_dwordx4 s[32:35], s[0:1], 48')
    a('s_load_dwordx2 s[36:37], s[0:1], 64')
    a('s_load_dwordx2 s[6:7], s[0:1], 88')
    a('s_cmp_ge_u32 s2, 256')
    a('s_cbranch_scc1 %s_end' % name)
    a('v_lshrrev_b32 v2, 6, v0')
    if OPT['pf_self']:
        a('s_getpc_b64 s[42:43]')
        a('v_lshlrev_b32 v4, 7, v0')
        a('v_min_u32 v4, %s_end - %s - 64, v4' % (name, name))
        a('v_add_co_u32 v4, vcc, s42, v4')
        a('v_mov_b32 v5, s43')
        a('v_and_b32 v0, 63, v0')
        a('v_addc_co_u32 v5, vcc, 0, v5, vcc')
        a('global_load_dword v62, v[4:5], off')
    else:
        a('v_and_b32 v0, 63, v0')
    a('v_readfirstlane_b32 s%d, v2' % sW8)
    a('v_lshlrev_b32 v1, 4, v0')
    if OPT['map'] < 2:
        a('s_and_b32 s%d, s2, 6' % sT0)
        a('s_lshl_b32 s%d, s%d, 1' % (sT0, sT0))
        a('s_bfe_u32 s%d, s2, 0x20003' % sT1)
        a('s_add_u32 s%d, s%d, s%d' % (sTAU, sT0, sT1))
        a('s_and_b32 s%d, s2, 32' % sT0)
    else:
        a('s_and_b32 s%d, s2, 4' % sT0)
        a('s_lshl_b32 s%d, s%d, 1' % (sT0, sT0))
        a('s_bfe_u32 s%d, s2, 0x30003' % sT1)
        a('s_add_u32 s%d, s%d, s%d' % (sTAU, sT0, sT1))
        a('s_and_b32 s%d, s2, 64' % sT0)
        a('s_lshr_b32 s%d, s%d, 1' % (sT0, sT0))
    a('s_add_u32 s%d, s%d, s%d' % (sP, sT0, sTAU))
    a('s_cmp_eq_u32 s%d, 32' % sP)
    a('s_cselect_b32 s%d, 48, s%d' % (sP, sP))
    a('s_sub_u32 s%d, 64, s%d' % (sT0, sP))
    a('s_cmp_eq_u32 s%d, 0' % sP)
    a('s_cselect_b32 s%d, 32, s%d' % (sPB, sT0))
    a('s_bitcmp1_b32 s%d, 1' % sW8)
    a('s_cselect_b32 s%d, s%d, s%d' % (sPS, sPB, sP))
    a('s_and_b32 s%d, s2, %d' % (sT0, 1 if OPT['map'] < 2 else 3))
    a('s_lshl_b32 s%d, s%d, %d' % (sT0, sT0, 2 if OPT['map'] < 2 else 1))
    a('s_lshr_b32 s%d, s2, %d' % (sT1, 6 if OPT['map'] < 2 else 7))
    a('s_add_u32 s%d, s%d, s%d' % (sJ, sT0, sT1))
    a('v_and_b32 v2, 15, v0')
    a('v_lshrrev_b32 v3, 4, v0')
    a('v_lshrrev_b32 v4, 3, v0')
    a('v_and_b32 v5, 7, v0')
    PAR = ['s_cmp_eq_u32 s%d, 0' % sP, 's_cselect_b32 s%d, 0, 1.0' % sLAM, 's_cselect_b32 s%d, 0, %s' % (sPHB, fl(-0.25)),
           's_cmp_eq_u32 s%d, 48' % sP, 's_cselect_b32 s%d, %s, s%d' % (sPHB, fl(-0.125), sPHB), 's_cselect_b32 s%d, %s, 0' % (sPHA, fl(-0.125)),
           's_cselect_b32 s%d, %s, 1.0' % (sSC, fl(0.5 ** 0.5)),
           's_add_u32 s%d, s%d, s%d' % (sROW, sP, sTAU), 's_cmp_eq_u32 s%d, 48' % sP, 's_cselect_b32 s%d, 1, s%d' % (sROW, sROW),
           's_cmp_eq_u32 s%d, 0' % sTAU, 's_cselect_b32 s%d, 32, 1' % sSTEP]
    a('s_cmp_lt_u32 s%d, 4' % sW8)
    a('s_cbranch_scc1 %s_main' % name)
    a('s_lshl_b32 s%d, s%d, 5' % (sT0, sJ))
    a('v_lshl_add_u32 v8, v2, 1, s%d' % sT0)
    a('v_mov_b32 v9, 0x100')
    a('v_cmp_eq_u32 vcc, 0, v8')
    a('s_and_b32 s44, s%d, 3' % sW8)
    a('s_lshl_b32 s%d, s44, 5' % sT0)
    a('v_cndmask_b32 v9, v8, v9, vcc')
    a('v_or_b32 v8, 1, v8')
    a('v_lshl_add_u32 v10, v3, 3, s%d' % sT0)
    a('v_cvt_f32_u32 v10, v10')
    a('s_lshl_b32 s%d, s44, 12' % sT0)
    a('v_add_u32 v13, s%d, v1' % sT0)
    for cb in range(2):
        e = (9, 8)[cb]
        a('v_cvt_f32_u32 v%d, v%d' % (e, e))
        a('v_mul_f32 v%d, %s, v%d' % (e, fl(-1 / 512), e))
        a('v_mul_f32 v11, v10, v%d' % e)
        for n in range(4):
            a('v_add_f32 v12, v11, v%d' % e)
            a('v_cos_f32 v14, v11')
            a('v_sin_f32 v16, v11')
            a('v_cos_f32 v15, v12')
            a('v_sin_f32 v17, v12')
            a('v_add_f32 v11, v12, v%d' % e)
            a('v_cvt_pk_bf16_f32 v%d, v14, v15' % (32 + 8 * cb + n))
            a('v_cvt_pk_bf16_f32 v%d, v16, v17' % (36 + 8 * cb + n))
        for part in range(2):
            a('ds_write_b128 v13, %s offset:%d' % (vr(32 + 8 * cb + 4 * part, 4), L_WF + (2 * cb + part) * 1024))
    a('s_waitcnt lgkmcnt(0)')
    if OPT.get('tlb'):
        a.srd(SW, 6, WS_BYTES)
        a('v_and_b32 v18, %d, v0' % (OPT['tlb'] - 1))
        a('v_lshlrev_b32 v18, %d, v18' % OPT.get('tlbsh', 20))
        a('buffer_load_dword v63, v18, %s, 0 offen' % sr(SW, 4))
    a('s_barrier')
    a('s_branch %s_mover' % name)
    a.label('%s_main' % name)

    if OPT['prio']: a('s_setprio 1')
    X, W = 128, 192
    AE, AO = 64, 80
    TK, TD = 112, 120
    GQ, GS, ONE = 20, 24, 28
    P = 32
    sXS = 45
    vm = VM(a)
    if OPT['pf_self']: vm.issue('pf')
    a('v_lshrrev_b32 v6, 1, v4')
    a('v_xor_b32 v6, v5, v6')
    a('v_lshlrev_b32 v6, 4, v6')
    a('v_lshl_add_u32 v6, v4, 16, v6')
    a('v_xor_b32 v17, 0x80040, v6')
    a('s_add_u32 s44, s%d, 1' % sW8)
    a('s_lshl_b32 s44, s44, 14')
    a('s_and_b32 s%d, s%d, 1' % (sT0, sW8))
    a('s_lshl_b32 s%d, s%d, 10' % (sT0, sT0))
    a('s_add_u32 s46, s%d, s%d' % (sT0, sPS))
    a('s_lshl_b32 s%d, s46, 10' % sXS)
    dma = []
    for i in range(16):
        c, q = i >> 1, i & 1
        dma.append(['s_add_u32 m0, s44, %d' % (c * (2048 - 128) + q * 1024), 's_nop 0',
                    'buffer_load_dwordx4 v%d, %s, s%d offen offset:%d lds' % ((6, 17)[q], sr(SX, 4), sXS, c * 128)])
        vm.issue(('x', c))
    lg = LG(a)
    wrd = []
    for i in range(16):
        wrd.append('ds_read_b128 %s, v1 offset:%d' % (vr(W + 4 * i, 4), i * 1024)); lg.issue(('w', i >> 2))
    nb = OPT['wbar']
    dma[nb - 1] = dma[nb - 1] + ['s_barrier']
    per = -(-16 // (17 - nb))
    for i in range(nb - 1, 16):
        dma[i] = dma[i] + wrd[:per]; wrd = wrd[per:]
    V = ['\n'.join(PAR + ['s_bitcmp1_b32 s%d, 1' % sW8, 's_cselect_b32 s%d, s%d, s%d' % (sPHI, sPHB, sPHA),
                          's_cmp_eq_u32 s%d, 0' % sP, 's_cselect_b32 s47, 0, -1']),
         'v_lshlrev_b32 v7, 31, v2', 'v_or_b32 v7, 1.0, v7',
         'v_lshl_add_u32 v8, v3, 8, s46', 'v_cvt_f32_u32 v8, v8', 'v_cvt_f32_u32 v10, v2']
    for tb in range(2):
        V += ['v_add_f32 v11, %s, v10' % fl(16.0 * tb), 'v_mul_f32 v11, %s, v11' % fl(1 / 2048), 'v_fma_f32 v12, v11, v8, s%d' % sPHI]
        for n in range(2):
            V += ['v_fmamk_f32 v13, v11, %s, v12' % fl(128.0 * n), 'v_fmamk_f32 v14, v11, %s, v12' % fl(128.0 * n + 64),
                  'v_cos_f32 v15, v13', 'v_cos_f32 v16, v14', 'v_sin_f32 v13, v13', 'v_sin_f32 v14, v14',
                  'v_cvt_pk_f16_f32 v%d, v15, v16' % (TK + 4 * tb + n), 'v_cvt_pk_f16_f32 v%d, v13, v14' % (TK + 4 * tb + 2 + n),
                  'v_cvt_pk_f16_f32 v%d, -v13, -v14' % (TD + 4 * tb + n), 'v_and_b32 v%d, s47, v%d' % (TD + 4 * tb + 2 + n, TK + 4 * tb + n),
                  'v_and_b32 v%d, s47, v%d' % (TD + 4 * tb + n, TD + 4 * tb + n)]
    V += ['v_mov_b32 v%d, 0x3f803f80' % (ONE + i) for i in range(4)]
    V += ['v_lshrrev_b32 v18, 1, v2', 'v_xor_b32 v18, v3, v18', 'v_lshlrev_b32 v18, 4, v18', 'v_lshl_add_u32 v18, v2, 7, v18',
          'v_add_u32 v18, s44, v18', 'v_xor_b32 v19, 64, v18',
          's_lshl_b32 s%d, s%d, 6' % (sT0, sW8), 's_add_u32 s%d, s%d, %d' % (sT0, sT0, L_R),
          'v_lshl_add_u32 v8, v2, 2, s%d' % sT0,
          'v_mul_u32_u24 v9, 80, v3',
          's_mul_i32 s%d, s%d, %d' % (sT0, sW8, EXW), 's_lshr_b32 s%d, s%d, 1' % (sT1, sW8), 's_lshl_b32 s%d, s%d, 6' % (sT1, sT1),
          's_add_u32 s%d, s%d, %d' % (sT0, sT0, L_EX), 'v_mul_u32_u24 v10, 144, v2', 'v_lshl_add_u32 v10, v3, 4, v10',
          'v_add_u32 v10, s%d, v10' % sT0, 's_xor_b32 s%d, s%d, 64' % (sT2, sT1), 'v_add_u32 v11, s%d, v10' % sT2, 'v_add_u32 v10, s%d, v10' % sT1,
          'v_and_b32 v12, 1, v0', 'v_cmp_eq_u32 s[50:51], 1, v12', 'v_and_b32 v12, 2, v0', 'v_cmp_eq_u32 s[52:53], 2, v12',
          'v_lshrrev_b32 v12, 2, v2', 'v_cmp_eq_u32 s[54:55], v12, v3',
          's_lshl_b32 s%d, s%d, 3' % (sT0, sW8), 'v_add_u32 v12, s%d, v4' % sT0, 'v_mul_u32_u24 v13, 144, v12',
          'v_lshl_add_u32 v13, v5, 4, v13', 'v_add_u32 v13, %d, v13' % L_EX,
          'v_lshlrev_b32 v12, 15, v12', 'v_and_b32 v14, 3, v0', 'v_lshl_add_u32 v12, v14, 4, v12',
          'v_lshrrev_b32 v14, 2, v5', 's_lshl_b32 s%d, s%d, 6' % (sT0, sSTEP), 'v_mad_u32_u24 v12, v14, s%d, v12' % sT0,
          's_lshl_b32 s%d, s%d, 12' % (sT1, sJ), 's_lshl_b32 s%d, s%d, 6' % (sT2, sROW), 's_add_u32 s38, s%d, s%d' % (sT1, sT2),
          's_add_u32 s38, s38, %d' % Z_OFF,
          's_mov_b32 s%d, s6' % SW, 's_and_b32 s%d, s7, 0xffff' % (SW + 1), 's_mov_b32 s%d, 0x%x' % (SW + 2, WS_BYTES), 's_mov_b32 s%d, 0x20000' % (SW + 3)]
    def after_pre():
        a('s_waitcnt lgkmcnt(0)')
        st.mark()
        a.srd(SX, 4, 2048 * 1024)
    weave(a, V, dma, OPT['pre'], OPT['burst'], after_pre)
    T = []
    def fill(n):
        for o in T[:n]: a(o)
        del T[:n]
    st.mark()
    seen = set()
    def main_mfma(ks, nf):
        q, kb = ks >> 2, ks & 3
        lg.wait(('w', kb))
        for cb in range(2):
            for part in range(2):
                r0 = AE + 8 * (q & 1) + 4 * part if cb == 0 else AO + 8 * q + 4 * part
                acc = vr(r0, 4)
                a('v_mfma_f32_16x16x32_bf16 %s, %s, %s, %s' % (acc, vr(X + 4 * ks, 4), vr(W + 16 * kb + 8 * cb + 4 * part, 4), acc if r0 in seen else '0'))
                seen.add(r0)
                fill(nf)
    def stat_mfma(ks):
        lg.wait(ks)
        f = vr(X + 4 * ks, 4)
        for G, B in ((GQ, f), (GS, vr(ONE, 4))):
            a('v_mfma_f32_16x16x32_bf16 %s, %s, %s, %s' % (vr(G, 4), f, B, vr(G, 4) if G in seen else '0'))
            seen.add(G)
    def rd(c):
        if c >= 8: return
        vm.wait(('x', c))
        for ks in (2 * c, 2 * c + 1):
            a('ds_read_b128 %s, v%d offset:%d' % (vr(X + 4 * ks, 4), 18 + (ks & 1), c * 2048)); lg.issue(ks)
    if stamps: a('s_waitcnt lgkmcnt(0)')
    rd(0)
    st.mark()
    if stamps: a('s_waitcnt lgkmcnt(0)')
    NL = OPT['nlast']
    mains = list(range(16))
    for c in range(8):
        stat_mfma(2 * c)
        rd(c + 1)
        stat_mfma(2 * c + 1)
        if c < 7:
            want = min(2 * c + 2, ((16 - NL) * (c + 1) + 6) // 7)
            while 16 - len(mains) < want: main_mfma(mains.pop(0), 0)
    st.mark()
    if stamps: a('s_waitcnt lgkmcnt(0)')
    a('s_mov_b64 exec, 0xffff')
    a('ds_write2st64_b32 v8, v%d, v%d offset0:1 offset1:3' % (X, X + 32))
    a('s_mov_b64 exec, -1')
    main_mfma(mains.pop(0), 0)
    for G in (GQ, GS):
        T += ['v_cndmask_b32 v%d, v%d, v%d, s[50:51]' % (G, G, G + 1), 'v_cndmask_b32 v%d, v%d, v%d, s[50:51]' % (G + 2, G + 2, G + 3),
              'v_cndmask_b32 v%d, v%d, v%d, s[52:53]' % (G, G, G + 2)]
    T += ['v_mul_f32 v%d, %s, v%d' % (GS, fl(-1 / 512), GS), 'v_mul_f32 v%d, %s, v%d' % (GQ, fl(1 / 512), GQ),
          'v_fma_f32 v%d, -v%d, v%d, v%d' % (GQ, GS, GS, GQ), 'v_max_f32 v%d, 0, v%d' % (GQ, GQ),
          'v_add_f32 v%d, %s, v%d' % (GQ, fl(1e-5), GQ), 'v_rsq_f32 v%d, v%d' % (GQ, GQ), 's_nop 0', 'v_mul_f32 v%d, s%d, v%d' % (GQ, sSC, GQ)]
    T += ['ds_bpermute_b32 v%d, v9, v%d offset:%d' % (ONE + r, GQ, 4 * r) for r in range(4)]
    SR = 48

    E1 = ['v_fmac_f32 v%d, v7, v%d' % (AO + i, AO + 12 + i) for i in range(4)]
    E1 += ['v_fma_f32 v%d, -v7, v%d, v%d' % (AO + 4 + i, AO + 8 + i, AO + 4 + i) for i in range(4)]
    E2 = ['v_sub_f32 v%d, v%d, v%d' % (AO + i, AO + i, AO + 16 + i) for i in range(8)]
    E2 += ['s_waitcnt lgkmcnt(0)']
    E2 += ['v_mul_f32 v%d, v7, v%d' % (SR + i, ONE + i) for i in range(4)]
    E2 += ['v_mul_f32 v%d, v%d, v%d' % (AE + i, AE + i, ONE + (i & 3)) for i in range(8)]
    E2 += ['v_mul_f32 v%d, v%d, v%d' % (AO + i, AO + i, ONE + (i & 3)) for i in range(8)]
    T += E1
    assert mains[0] <= 13
    while mains:
        ks = mains.pop(0)
        if ks == 13: T += E2
        main_mfma(ks, 2)
    fill(len(T))
    a('s_mov_b64 exec, s[54:55]')
    a('ds_write2st64_b32 v8, v%d, v%d offset0:0 offset1:2' % (GQ, GS))
    a('s_mov_b64 exec, -1')
    st.mark()
    A2, OUT = P, X
    for i in range(8): a('v_fmac_f32 v%d, v%d, v%d' % (AE + i, SR + (i & 3), AE + 8 + i))
    for n in range(4): a('v_cvt_pk_f16_f32 v%d, v%d, v%d' % (A2 + n, AE + 2 * n, AE + 2 * n + 1))
    T += ['v_fma_f32 v%d, -v%d, v%d, v%d' % (AO + i, SR + i, AO + 28 + i, AO + i) for i in range(4)]
    T += ['v_fmac_f32 v%d, v%d, v%d' % (AO + 4 + i, SR + i, AO + 24 + i) for i in range(4)]
    T += ['v_cvt_pk_f16_f32 v%d, v%d, v%d' % (A2 + 4 + n, AO + 2 * n, AO + 2 * n + 1) for n in range(4)]
    fill(2)
    for cb in range(2):
        for kind, M in enumerate((TK, TD)):
            for tb in range(2):
                a('v_mfma_f32_16x16x32_f16 %s, %s, %s, 0' % (vr(OUT + 16 * kind + 8 * tb + 4 * cb, 4), vr(A2 + 4 * cb, 4), vr(M + 4 * tb, 4)))
                fill(4)
        fill(len(T))
    for kind in range(2):
        for tb in range(2):
            o = OUT + 16 * kind + 8 * tb; d = AE + 8 * kind + 4 * tb
            for r in range(4): a('v_cvt_pk_f16_f32 v%d, v%d, v%d' % (d + r, o + r, o + 4 + r))
            a('ds_write_b128 v%d, %s offset:%d' % (10 + kind, vr(d, 4), tb * 16 * 144))
    a('s_waitcnt lgkmcnt(0)')
    a('s_barrier')
    for w in range(4): a('ds_read_b128 %s, v13 offset:%d' % (vr(P + 4 * w, 4), w * EXW))
    a('s_waitcnt lgkmcnt(2)')
    for i in range(4): a('v_pk_add_f16 v%d, v%d, v%d' % (P + i, P + i, P + 4 + i))
    a('s_waitcnt lgkmcnt(0)')
    for i in range(4): a('v_pk_add_f16 v%d, v%d, v%d' % (P + 8 + i, P + 8 + i, P + 12 + i))
    for i in range(4): a('v_pk_add_f16 v%d, v%d, v%d' % (P + i, P + i, P + 8 + i))
    a('s_cmp_eq_u32 s%d, 0' % sTAU)
    a('s_cbranch_scc1 %s_zhalf' % name)
    a('buffer_store_dwordx4 %s, v12, %s, s38 offen %s' % (vr(P, 4), sr(SW, 4), OPT['st_z']))
    a('s_branch %s_zdone' % name)
    a.label('%s_zhalf' % name)
    a('buffer_store_dwordx4 %s, v12, %s, s38 offen' % (vr(P, 4), sr(SW, 4)))
    a.label('%s_zdone' % name)
    st.mark()
    st.flush(SW, sW8)
    a.label('%s_walk' % name)
    if nstub:
        a('s_mov_b64 exec, 0')
        for k in range(min(nstub, 8)):
            a('s_cmp_eq_u32 s%d, %d' % (sW8, k))
            a('s_cbranch_scc1 %s_stub%d' % (next_kernel, k))
    a.label('%s_fin' % name)
    a('s_endpgm')

    a.label('%s_mover' % name)
    st.n = 1
    vm = VM(a)
    sHW, sWO1, sWO2, sST = 44, 47, 48, 49
    a('s_and_b32 s%d, s2, 7' % sT0)
    a('s_lshl_b32 s%d, s%d, 2' % (sT0, sT0))
    a('s_add_u32 s%d, s%d, s%d' % (sT0, sT0, sHW))
    a('s_lshl_b32 s%d, s%d, 10' % (sWO1, sT0))
    a('s_lshr_b32 s%d, s%d, 1' % (sT0, sT0))
    a('s_lshl_b32 s%d, s%d, 5' % (sT0, sT0))
    a('s_sub_u32 s%d, 768, s%d' % (sT1, sT0))
    a('s_cmp_ge_u32 s%d, 256' % sT0)
    a('s_cselect_b32 s%d, s%d, s%d' % (sT0, sT1, sT0))
    a('s_cselect_b32 s%d, -1, 1' % sT1)
    a('v_mov_b32 v8, s%d' % sT0)
    a('v_mad_i32_i24 v8, v4, s%d, v8' % sT1)
    a('s_mul_i32 s50, s%d, %d' % (sT1, 8 * 3584))
    a('s_movk_i32 s%d, 3584' % sT2)
    a('v_lshlrev_b32 v5, 4, v5')
    a('v_mad_u32_u24 v9, v8, s%d, v5' % sT2)
    a('v_cmp_eq_u32 vcc, 0x200, v8')
    a('v_subrev_u32 v8, %d, v9' % (256 * 3584))
    a('v_cndmask_b32 v8, v9, v8, vcc')
    a('v_add_u32 v9, s50, v9')
    a('v_add_u32 v10, s50, v9')
    a('v_add_u32 v11, s50, v10')
    a('s_lshr_b32 s%d, s2, 3' % sT0)
    a('s_lshl_b32 s56, s%d, 7' % sT0)
    a('s_lshl_b32 s%d, s%d, 17' % (sT0, sT0))
    a('s_add_u32 s%d, s%d, s%d' % (sWO1, sWO1, sT0))
    a('s_add_u32 s%d, s%d, %d' % (sWO1, sWO1, WP_OFF))
    a('s_cmp_ge_u32 s2, %d' % (0 if OPT.get('now') == 1 else 224))
    a('s_cselect_b32 s56, %d, s56' % OOB)
    if OPT.get('now') == 2: a('s_cmp_ge_u32 s2, 0')
    a('s_cselect_b32 s%d, %d, s%d' % (sWO1, OOB, sWO1))
    a('s_lshl_b32 s%d, s%d, 12' % (sST, sHW))
    a('s_add_u32 s%d, s%d, %d' % (sST, sST, L_WST))
    a('s_sub_u32 s%d, 255, s2' % sT0)
    a('s_lshl_b32 s%d, s%d, 1' % (sT0, sT0))
    a('s_and_b32 s%d, s%d, 1' % (sT1, sHW))
    a('s_add_u32 s%d, s%d, s%d' % (sT0, sT0, sT1))
    a('s_and_b32 s%d, s%d, 7' % (sT1, sT0))
    a('s_lshr_b32 s%d, s%d, 3' % (sT2, sT0))
    a('s_mul_i32 s%d, s%d, 229376' % (sWO2, sT1))
    a('s_lshl_b32 s50, s%d, 12' % sT2)
    a('s_add_u32 s%d, s%d, s50' % (sWO2, sWO2))
    a('s_add_u32 s%d, s%d, %d' % (sWO2, sWO2, WD_OFF))
    a('s_cmp_ge_u32 s%d, 48' % sT2)
    a('s_cselect_b32 s51, 14, 7')
    a('s_cselect_b32 s54, 1, 4')
    a('s_cselect_b32 s55, 8, 4')
    a('s_cselect_b32 s45, 56, 4')
    a('v_and_b32 v12, 1, v3')
    a('v_mul_u32_u24 v12, s55, v12')
    a('v_and_b32 v13, 2, v3')
    a('v_mad_u32_u24 v12, v13, s45, v12')
    a('v_lshlrev_b32 v12, 10, v12')
    a('v_lshl_add_u32 v12, v2, 3, v12')
    a('s_and_b32 s50, s%d, 15' % sT2)
    a('s_mul_i32 s50, s50, s51')
    a('s_lshr_b32 s%d, s%d, 4' % (sT2, sT2))
    a('s_lshl_b32 s%d, s%d, 1' % (sT2, sT2))
    a('s_add_u32 s50, s50, s%d' % sT2)
    a('s_lshl_b32 s50, s50, 14')
    a('s_lshl_b32 s%d, s%d, 7' % (sT1, sT1))
    a('s_add_u32 s50, s50, s%d' % sT1)
    a('s_lshl_b32 s54, s54, 12')
    a('s_cmp_ge_u32 s%d, %d' % (sT0, 0 if OPT.get('now') in (1, 3) else 448))
    a('s_cselect_b32 s50, %d, s50' % OOB)
    if OPT.get('now') == 2: a('s_cmp_ge_u32 s2, 0')
    a('s_cselect_b32 s%d, %d, s%d' % (sWO2, OOB, sWO2))
    a('v_bfe_u32 v32, v0, 2, 2')
    a('v_and_b32 v33, 3, v0')
    a('v_lshlrev_b32 v32, 7, v32')
    a('v_add_u32 v32, s%d, v32' % sST)
    a('v_lshl_add_u32 v32, v33, 3, v32')
    a('v_lshl_add_u32 v32, v3, 9, v32')
    a('s_bitcmp1_b32 s%d, 0' % sHW)
    a('s_cselect_b32 s%d, s34, s32' % SG)
    a('s_cselect_b32 s%d, s35, s33' % (SG + 1))
    a('s_and_b32 s%d, s%d, 0xffff' % (SG + 1, SG + 1))
    a('s_mov_b32 s%d, %d' % (SG + 2, 512 * 3584))
    a('s_mov_b32 s%d, 0x20000' % (SG + 3))
    a.srd(SD, 36, 1792 * 1024)
    a.srd(SW, 6, WS_BYTES)
    for n in range(4):
        a('s_add_u32 m0, s%d, %d' % (sST, n * 1024))
        a('buffer_load_dwordx4 v%d, %s, s56 offen lds' % (8 + n, sr(SG, 4)))
    def w1_part(nafter):
        a('s_waitcnt vmcnt(%d)' % nafter)
        for f in range(4):
            for n in range(2):
                a('ds_read_b64_tr_b16 %s, v32 offset:%d' % (vr(64 + 4 * f + 2 * n, 2), n * 2048 + f * 32))
        for f in range(4):
            a('s_waitcnt lgkmcnt(%d)' % (6 - 2 * f))
            a('buffer_store_dwordx4 %s, v1, %s, s%d offen %s' % (vr(64 + 4 * f, 4), sr(SW, 4), sWO1, OPT['st_w']))
            if f < 3: a('s_add_u32 s%d, s%d, 32768' % (sWO1, sWO1))
    a('s_cmp_lt_u32 s%d, 2' % sHW)
    a('s_cbranch_scc1 %s_h01' % name)
    a('s_add_u32 s51, s50, s54')
    for jj in range(8):
        a('buffer_load_dwordx2 %s, v12, %s, s%d offen offset:%d' % (vr(96 + 2 * jj, 2), sr(SD, 4), 50 + (jj >> 2), (jj & 3) * 1024))
    a('s_mov_b32 s52, 0x05040100')
    a('s_mov_b32 s53, 0x07060302')
    st.mark()
    if stamps: a('s_waitcnt lgkmcnt(0)')
    w1_part(8)
    a('s_waitcnt vmcnt(4)')
    for db in range(4):
        for t in range(4):
            a('v_perm_b32 v%d, v%d, v%d, s%d' % (80 + 4 * db + t, 96 + 4 * t + 2 + (db >> 1), 96 + 4 * t + (db >> 1), 52 + (db & 1)))
        a('buffer_store_dwordx4 %s, v1, %s, s%d offen offset:%d %s' % (vr(80 + 4 * db, 4), sr(SW, 4), sWO2, 1024 * db, OPT['st_w']))
    st.mark()
    a('s_barrier')
    st.flush(SW, sW8)
    a('s_branch %s_walk' % name)
    a.label('%s_h01' % name)
    st.n = 1
    npf = 0
    for i in range(4): a('v_mov_b32 v%d, 0' % (40 + i))
    a('s_lshr_b32 s%d, s2, 2' % sT0)
    a('s_mul_i32 s%d, s%d, %d' % (sT0, sT0, FG))
    a('s_and_b32 s%d, s2, 3' % sT1)
    a('s_lshl_b32 s%d, s%d, 1' % (sT1, sT1))
    a('s_add_u32 s%d, s%d, s%d' % (sT1, sT1, sHW))
    a('s_lshl_b32 s%d, s%d, 10' % (sT1, sT1))
    a('s_add_u32 s%d, s%d, s%d' % (sT0, sT0, sT1))
    a('s_add_u32 s%d, s%d, %d' % (sT0, sT0, FLAG_OFF))
    a('buffer_store_dwordx4 v[40:43], v1, %s, s%d offen sc1' % (sr(SW, 4), sT0)); npf += 1
    if OPT.get('tact'):
        a('s_lshr_b32 s%d, s2, 3' % sT0)
        a('s_lshl_b32 s%d, s%d, 18' % (sT0, sT0))
        a('s_add_u32 s%d, s%d, %d' % (sT0, sT0, ACT_OFF))
        a('s_cmp_eq_u32 s%d, 0' % sHW)
        a('s_cselect_b32 s%d, s%d, %d' % (sT0, sT0, OOB))
        a('v_and_b32 v44, %d, v0' % (64 - OPT['tact']))
        a('v_lshlrev_b32 v44, 12, v44')
        a('buffer_load_dword v49, v44, %s, s%d offen' % (sr(SW, 4), sT0)); npf += 1
    if next_kernel and OPT['pf_next']:
        a('s_getpc_b64 s[42:43]')
        a.label('%s_pc' % name)
        a('s_add_u32 s42, s42, %s - %s_pc' % (next_kernel, name))
        a('s_addc_u32 s43, s43, 0')
        a('s_lshr_b32 s%d, s2, 3' % sT0)
        a('s_lshl_b32 s%d, s%d, 1' % (sT0, sT0))
        a('s_add_u32 s%d, s%d, s%d' % (sT0, sT0, sHW))
        a('s_lshl_b32 s%d, s%d, 10' % (sT0, sT0))
        a('v_add_u32 v44, s%d, v1' % sT0)
        a('v_min_u32 v44, %s_end - %s, v44' % (next_kernel, next_kernel))
        a('v_add_co_u32 v44, vcc, s42, v44')
        a('v_mov_b32 v45, s43')
        a('v_addc_co_u32 v45, vcc, 0, v45, vcc')
        a('global_load_dword v46, v[44:45], off'); npf += 1
    for o in PAR: a(o)
    a('s_lshl_b32 s%d, s%d, 2' % (sT0, sJ))
    a('v_add_u32 v41, s%d, v3' % sT0)
    a('v_cvt_f32_u32 v42, v41')
    a('v_mul_f32 v42, %s, v42' % fl(1 / 2048))
    for sg, (sres, sph) in enumerate(((sP, sPHA), (sPB, sPHB))):
        a('v_lshl_add_u32 v43, v2, 6, s%d' % sres)
        a('v_cvt_f32_u32 v43, v43')
        if sph: a('v_fma_f32 v43, v43, v42, s%d' % sph)
        else: a('v_mul_f32 v43, v43, v42')
        a('v_fmamk_f32 v48, v42, %s, v43' % fl(1024.0))
        a('v_cos_f32 v%d, v43' % (50 + 4 * sg))
        a('v_cos_f32 v%d, v48' % (51 + 4 * sg))
        a('v_sin_f32 v%d, v43' % (52 + 4 * sg))
        a('v_sin_f32 v%d, v48' % (53 + 4 * sg))
    a('v_lshlrev_b32 v40, 2, v2')
    a('v_add_u32 v40, %d, v40' % L_R)
    for q in range(4): a('v_add_u32 v%d, %d, v40' % (104 + q, 64 * q))
    a('v_lshlrev_b32 v47, 2, v0')
    a('v_add_u32 v47, %d, v47' % (L_R + 512))
    st.mark()
    if stamps: a('s_waitcnt lgkmcnt(0)')
    w1_part(npf)
    st.mark()
    a('s_cmp_eq_u32 s%d, 0' % sHW)
    a('s_cbranch_scc1 %s_h0' % name)
    a('v_mov_b32 v62, s%d' % sP)
    a('v_mov_b32 v63, s%d' % sPB)
    a('v_cmp_gt_u32 vcc, 32, v0')
    a('v_and_b32 v59, 31, v0')
    a('v_lshlrev_b32 v59, 3, v59')
    a('v_cndmask_b32 v62, v63, v62, vcc')
    a('v_lshl_add_u32 v59, v62, 8, v59')
    a('s_cmp_eq_u32 s%d, 0' % sJ)
    a('s_mov_b32 s%d, %d' % (sT0, MX_OFF))
    a('s_cselect_b32 s%d, s%d, %d' % (sT0, sT0, OOB))
    a('s_barrier')
    a('ds_read2st64_b32 v[60:61], v47 offset0:0 offset1:1')
    a('s_waitcnt lgkmcnt(0)')
    a('v_lshlrev_b32 v61, 16, v61')
    a('buffer_store_dwordx2 v[60:61], v59, %s, s%d offen %s' % (sr(SW, 4), sT0, OPT['st_s']))
    a('s_branch %s_hend' % name)
    a.label('%s_h0' % name)
    a('s_barrier')
    for q in range(4):
        a('ds_read_b32 v%d, v40 offset:%d' % (60 + q, 256 + 64 * q))
        a('ds_read2st64_b32 %s, v%d offset0:0 offset1:2' % (vr(96 + 2 * q, 2), 104 + q))
    a('s_waitcnt lgkmcnt(0)')
    for q in range(4):
        a('v_lshlrev_b32 v%d, 16, v%d' % (60 + q, 60 + q))
        a('v_add_f32 v%d, v%d, v%d' % (60 + q, 60 + q, 97 + 2 * q))
        a('v_mul_f32 v%d, v%d, v%d' % (60 + q, 60 + q, 96 + 2 * q))
    a('v_mul_f32 v58, v56, v62')
    a('v_mul_f32 v59, v52, v60')
    a('v_fmac_f32 v58, v57, v63')
    a('v_fmac_f32 v59, v53, v61')
    a('v_mul_f32 v58, s%d, v58' % sLAM)
    a('v_mul_f32 v59, s%d, v59' % sLAM)
    a('v_fma_f32 v58, -v50, v60, v58')
    a('v_fma_f32 v59, -v54, v62, v59')
    a('v_fma_f32 v58, -v51, v61, v58')
    a('v_fma_f32 v59, -v55, v63, v59')
    for rot in (8, 4, 2, 1):
        a('v_add_f32_dpp v58, v58, v58 row_ror:%d row_mask:0xf bank_mask:0xf' % rot)
        a('v_add_f32_dpp v59, v59, v59 row_ror:%d row_mask:0xf bank_mask:0xf' % rot)
    a('v_cvt_pk_f16_f32 v58, v58, v59')
    a('v_lshlrev_b32 v41, 7, v41')
    a('s_lshl_b32 s%d, s%d, 1' % (sT0, sROW))
    a('s_add_u32 s%d, s%d, %d' % (sT0, sT0, ZC_OFF))
    a('s_lshl_b32 s%d, s%d, 1' % (sT1, sSTEP))
    a('s_add_u32 s%d, s%d, s%d' % (sT1, sT1, sT0))
    a('s_mov_b32 exec_lo, 0x10001')
    a('s_mov_b32 exec_hi, 0x10001')
    a('buffer_store_short v58, v41, %s, s%d offen' % (sr(SW, 4), sT0))
    a('buffer_store_short_d16_hi v58, v41, %s, s%d offen' % (sr(SW, 4), sT1))
    a.label('%s_hend' % name)
    a('s_mov_b64 exec, -1')
    st.flush(SW, sW8)
    a('s_branch %s_walk' % name)
    a.label('%s_end' % name)
    a('s_endpgm')
    return a.text(), descriptor(name, 256, 256), (name, 256, 512, LDS)

if __name__ == '__main__':
    from gen2 import gen_empty
    K2 = [0, 1, 4, 5, 8, 9, 12, 13, 2, 3, 6, 7, 10, 11, 14, 15]
    for tag, o in (('a', dict()), ('b', dict(stamp=2)), ('c', dict(wbar=8)), ('d', dict(nlast=8, burst=8, wbar=8))):
        save = dict(OPT); OPT.update(o)
        t, d, l = gen_k1('k1_kernel', OPT.get('stamp', 1), 'k2_kernel')
        t, n = hazard.fix(t, '-v' in sys.argv and tag == 'a')
        t2, d2, l2 = gen_empty('k2_kernel', 1)
        open('k1v6%s.s' % tag, 'w').write(build_file([l, l2], t + '\n' + t2, [d, d2]))
        OPT.clear(); OPT.update(save)
```

```python
import sys
from asmlib import *
import hazard, align
from gen1 import VM, LG, Stamps, fl
from gen6 import weave

WS_BYTES = 268435456
Z_OFF = 0
WP_OFF = 1 << 20
WD_OFF = WP_OFF + 112 * 32768
SF_OFF = WD_OFF + 8 * 229376
MX_OFF = SF_OFF + 32768
FLAG_OFF = MX_OFF + 16384
ACT_OFF = 8 << 20
STAMP_OFF = 128 << 20
OOB = 0x20000000
FG, FK, FL, NPL = 8448, 128, 512, 4
GRP, JS = 112 * 1024, 16384
U = 16384
CU_ = lambda c: c + 2
ZU = [0, 1, 2, 0]
WU = [(9, 3), (1, 8), (4, 2), (7, 5), (0, 6), (9, 3), (1, 8)]
DU = [(4, 2), (7, 5), (0, 6)]
PU = [9, 3, 1, 8]
OPT = dict(spin=1 << 20, prio=1, burst=4, pre=1, nlast=6, wbar=6, xo=1, sw=30, glc1=1,
           wpd=8, cap_pre=12, cap_p=[6, 5, 10, 5, 10, 5, 10, 8], cap_b=[13, 13, 12, 13, 12, 100], st_o='',
           espan=[0, 58.0, 60.0, 58.0, 60.0, 58.0, 24.0], fb=((3, 15), (5, 15)), fbp=0, fcp=1000, n45=16, xj=0, pbp=100, dtail=12,
           g1p=2, pcs=(7, 9), hb='B5', npre=0, bcut=12, pw=[2, 5, 5, 5, 4, 4, 4, 4], ord='Z00 Z10 Z20 X50 Z30 X30 X40')

def gen(name, stamps, nstub):
    a = Asm()
    tail = Asm()
    LDS = 163840
    SW, SX, SO, SG, SD = 8, 12, 16, 16, 96
    sW8, sW, sTAU, sSL, sT1, sPAR, sPP, sG, sGM, sA, sB, sC = 3, 20, 21, 22, 23, 24, 25, 26, 27, 28, 29, 30
    sT1G1, sGT, sDT, sCNT = 31, 32, 33, 35
    sP, sPB, sPS, sPHI, sLAM, sPHA, sPHB, sSC, sUU, sXD, sXS, sO0, sO1, sR0 = 48, 49, 36, 37, 58, 59, 60, 61, 34, 100, 101, 92, 93, 94
    sT0, sT2 = sA, sC
    sJ = sDT
    a.kernel_begin(name)
    st = Stamps(a, stamps, 0)
    def mk(*tags):
        if OPT.get('st', 'all') in tags: st.mark()
    def mkw(*tags):
        if OPT.get('st', 'all') in tags:
            st.mark()
            if stamps: a('s_waitcnt lgkmcnt(0)')
    st.mark()
    a('s_load_dwordx2 s[12:13], s[0:1], 0')
    a('s_load_dwordx4 s[4:7], s[0:1], 80')
    a('s_load_dwordx8 s[40:47], s[0:1], 48')
    a('s_cmp_ge_u32 s2, 256')
    a('s_cbranch_scc1 %s_end' % name)
    a('v_lshrrev_b32 v2, 6, v0')
    a('s_getpc_b64 s[52:53]')
    a('v_lshlrev_b32 v4, 7, v0')
    a('v_min_u32 v4, %s_g2 - %s, v4' % (name, name))
    a('v_add_co_u32 v4, vcc, s52, v4')
    a('v_mov_b32 v5, s53')
    a('v_and_b32 v0, 63, v0')
    a('v_addc_co_u32 v5, vcc, 0, v5, vcc')
    a('global_load_dword v62, v[4:5], off')
    a('v_readfirstlane_b32 s%d, v2' % sW8)
    a('v_lshlrev_b32 v1, 4, v0')
    a('s_and_b32 s%d, s2, 4' % sA)
    a('s_lshl_b32 s%d, s%d, 1' % (sA, sA))
    a('s_bfe_u32 s%d, s2, 0x30003' % sB)
    a('s_add_u32 s%d, s%d, s%d' % (sTAU, sA, sB))
    a('s_bfe_u32 s%d, s2, 0x10001' % sGT)
    a('s_sub_u32 s%d, 32, s%d' % (sA, sTAU))
    a('s_cmp_eq_u32 s%d, 0' % sTAU)
    a('s_cselect_b32 s%d, 16, s%d' % (sT1G1, sA))
    a('s_cselect_b32 s%d, 1, 3' % sUU)
    a('s_lshr_b32 s%d, s%d, 2' % (sA, sW8))
    a('s_xor_b32 s%d, s%d, s%d' % (sA, sA, sGT))
    a('s_sub_u32 s%d, 4, s%d' % (sB, sUU))
    a('s_bitcmp1_b32 s%d, 1' % sW8)
    a('s_cselect_b32 s%d, 2, s%d' % (sB, sB))
    a('s_cselect_b32 s%d, s%d, 0' % (sC, sUU))
    a('s_cmp_eq_u32 s%d, 0' % sA)
    a('s_cselect_b32 s%d, s%d, s%d' % (sA, sC, sB))
    a('s_bitcmp1_b32 s%d, 1' % sA)
    a('s_cselect_b32 s%d, s%d, s%d' % (sB, sT1G1, sTAU))
    a('s_and_b32 s%d, s%d, 1' % (sC, sA))
    a('s_lshl_b32 s%d, s%d, 5' % (sC, sC))
    a('s_add_u32 s%d, s%d, s%d' % (sB, sB, sC))
    a('s_and_b32 s%d, s%d, 1' % (sPAR, sW8))
    a('s_lshl1_add_u32 s%d, s%d, s%d' % (sA, sA, sPAR))
    a('s_lshl_b32 s%d, s%d, 11' % (sXD, sA))
    a('s_lshl_b32 s%d, s%d, 10' % (sC, sPAR))
    a('s_add_u32 s%d, s%d, s%d' % (sPS, sB, sC))
    a('s_lshl_b32 s%d, s%d, 10' % (sXS, sPS))
    a('s_and_b32 s%d, s2, 1' % sA)
    a('s_lshr_b32 s%d, s2, 6' % sB)
    a('s_lshl2_add_u32 s%d, s%d, s%d' % (sDT, sA, sB))
    a('s_and_b32 s%d, s%d, 3' % (sW, sW8))
    a('v_and_b32 v2, 15, v0')
    a('v_lshrrev_b32 v3, 4, v0')
    a('v_lshrrev_b32 v4, 3, v0')
    a('v_and_b32 v5, 7, v0')
    a('v_lshrrev_b32 v6, 1, v4')
    a('v_xor_b32 v6, v5, v6')
    a('v_lshlrev_b32 v6, 4, v6')
    a('v_lshl_add_u32 v6, v4, 16, v6')
    a('v_xor_b32 v7, 0x80040, v6')
    a('s_mov_b32 s14, 0x200000')
    a('s_mov_b32 s15, 0x20000')
    def xdma(c, q):
        return ['s_add_u32 m0, s%d, %d' % (sXD, CU_(c) * U - c * 128 + q * 1024), 's_nop 0',
                'buffer_load_dwordx4 v%d, %s, s%d offen offset:%d lds' % (6 + q, sr(SX, 4), sXS, c * 128)]
    PAR = ['s_lshl_b32 s%d, s%d, 5' % (sA, sGT), 's_add_u32 s%d, s%d, s%d' % (sP, sA, sTAU),
           's_cmp_eq_u32 s%d, 0' % sP, 's_cselect_b32 s%d, 0, 1.0' % sLAM, 's_cselect_b32 s%d, 0, %s' % (sPHB, fl(-0.25)),
           's_cmp_eq_u32 s%d, 32' % sP, 's_cselect_b32 s%d, %s, s%d' % (sPHB, fl(-0.125), sPHB), 's_cselect_b32 s%d, %s, 0' % (sPHA, fl(-0.125)),
           's_cselect_b32 s%d, %s, 1.0' % (sSC, fl(0.5 ** 0.5)), 's_cselect_b32 s%d, 48, s%d' % (sP, sP),
           's_sub_u32 s%d, 4, s%d' % (sA, sUU), 's_cmp_eq_u32 s%d, 0' % sGT, 's_cselect_b32 s%d, s%d, 0' % (sO0, sA), 's_cselect_b32 s%d, 2, s%d' % (sO1, sUU),
           's_lshl_b32 s%d, s%d, 12' % (sO0, sO0), 's_lshl_b32 s%d, s%d, 12' % (sO1, sO1), 's_add_u32 s%d, s%d, %d' % (sR0, sO0, CU_(5) * U)]
    KFS = ['s_lshl3_add_u32 s%d, s%d, s%d' % (sSL, sGT, sDT), 's_lshr_b32 s%d, s%d, 1' % (sG, sW), 's_xor_b32 s%d, s%d, 1' % (sB, sG),
           's_cmp_eq_u32 s%d, 0' % sTAU, 's_cselect_b32 s%d, s%d, s%d' % (sGM, sG, sB), 's_cmp_eq_u32 s%d, 0' % sG,
           's_cselect_b32 s%d, s%d, s%d' % (sT1, sTAU, sT1G1), 's_lshl_b32 s%d, s%d, 5' % (sA, sPAR), 's_add_u32 s%d, s%d, s%d' % (sPP, sT1, sA),
           's_mov_b32 s%d, 0' % sCNT]
    a('s_cmp_lt_u32 s%d, 4' % sW8)
    a('s_cbranch_scc1 %s_main' % name)
    a('s_lshl_b32 s%d, s%d, 5' % (sT0, sJ))
    a('v_lshl_add_u32 v8, v2, 1, s%d' % sT0)
    a('v_mov_b32 v9, 0x100')
    a('v_cmp_eq_u32 vcc, 0, v8')
    a('s_lshl_b32 s%d, s%d, 5' % (sT0, sW))
    a('v_cndmask_b32 v9, v8, v9, vcc')
    a('v_or_b32 v8, 1, v8')
    a('v_lshl_add_u32 v10, v3, 3, s%d' % sT0)
    a('v_cvt_f32_u32 v10, v10')
    a('s_lshl_b32 s%d, s%d, 12' % (sT0, sW))
    a('v_add_u32 v13, s%d, v1' % sT0)
    for cb in range(2):
        e = (9, 8)[cb]
        a('v_cvt_f32_u32 v%d, v%d' % (e, e))
        a('v_mul_f32 v%d, %s, v%d' % (e, fl(-1 / 512), e))
        a('v_mul_f32 v11, v10, v%d' % e)
        for n in range(4):
            a('v_add_f32 v12, v11, v%d' % e)
            a('v_cos_f32 v14, v11')
            a('v_sin_f32 v16, v11')
            a('v_cos_f32 v15, v12')
            a('v_sin_f32 v17, v12')
            a('v_add_f32 v11, v12, v%d' % e)
            a('v_cvt_pk_bf16_f32 v%d, v14, v15' % (32 + 8 * cb + n))
            a('v_cvt_pk_bf16_f32 v%d, v16, v17' % (36 + 8 * cb + n))
        for part in range(2):
            a('ds_write_b128 v13, %s offset:%d' % (vr(32 + 8 * cb + 4 * part, 4), (2 * cb + part) * 1024))
    a('s_waitcnt lgkmcnt(0)')
    a('s_barrier')
    a('s_branch %s_mover' % name)
    a.label('%s_main' % name)

    if OPT['prio']: a('s_setprio 1')
    X, W = 128, 192
    AE, AO = 64, 80
    TK, TD = 112, 120
    GQ, GS, ONE = 20, 24, 28
    P = 32
    vm = VM(a)
    vm.issue('pf')
    dma = []
    for i in range(16):
        dma.append(xdma(i >> 1, i & 1)); vm.issue(('x', i >> 1))
    lg = LG(a)
    wrd = []
    for i in range(16):
        wrd.append('ds_read_b128 %s, v1 offset:%d' % (vr(W + 4 * i, 4), i * 1024)); lg.issue(('w', i >> 2))
    nb = OPT['wbar']
    dma[nb - 1] = dma[nb - 1] + ['s_barrier']
    per = -(-16 // (17 - nb))
    for i in range(nb - 1, 16):
        dma[i] = dma[i] + wrd[:per]; wrd = wrd[per:]
    V = ['\n'.join(PAR + ['s_bitcmp1_b32 s%d, 1' % sW8, 's_cselect_b32 s%d, s%d, s%d' % (sPHI, sPHB, sPHA),
                          's_cmp_eq_u32 s%d, 0' % sP, 's_cselect_b32 s56, 0, -1']),
         'v_lshlrev_b32 v17, 31, v2', 'v_or_b32 v17, 1.0, v17',
         'v_lshl_add_u32 v8, v3, 8, s%d' % sPS + '', 'v_cvt_f32_u32 v8, v8', 'v_cvt_f32_u32 v10, v2']
    for tb in range(2):
        V += ['v_add_f32 v11, %s, v10' % fl(16.0 * tb), 'v_mul_f32 v11, %s, v11' % fl(1 / 2048), 'v_fma_f32 v12, v11, v8, s%d' % sPHI]
        for n in range(2):
            V += ['v_fmamk_f32 v13, v11, %s, v12' % fl(128.0 * n), 'v_fmamk_f32 v14, v11, %s, v12' % fl(128.0 * n + 64),
                  'v_cos_f32 v15, v13', 'v_cos_f32 v16, v14', 'v_sin_f32 v13, v13', 'v_sin_f32 v14, v14',
                  'v_cvt_pk_f16_f32 v%d, v15, v16' % (TK + 4 * tb + n), 'v_cvt_pk_f16_f32 v%d, v13, v14' % (TK + 4 * tb + 2 + n),
                  'v_cvt_pk_f16_f32 v%d, -v13, -v14' % (TD + 4 * tb + n), 'v_and_b32 v%d, s56, v%d' % (TD + 4 * tb + 2 + n, TK + 4 * tb + n),
                  'v_and_b32 v%d, s56, v%d' % (TD + 4 * tb + n, TD + 4 * tb + n)]
    V += ['v_mov_b32 v%d, 0x3f803f80' % (ONE + i) for i in range(4)]
    V += ['v_lshrrev_b32 v18, 1, v2', 'v_xor_b32 v18, v3, v18', 'v_lshlrev_b32 v18, 4, v18', 'v_lshl_add_u32 v18, v2, 7, v18',
          's_add_u32 s%d, s%d, %d' % (sA, sXD, CU_(0) * U), 'v_add_u32 v18, s%d, v18' % sA, 'v_xor_b32 v19, 64, v18',
          'v_add_u32 v60, 65536, v18', 'v_add_u32 v61, 65536, v19',
          's_lshl_b32 s%d, s%d, 6' % (sA, sW8), 's_add_u32 s%d, s%d, s%d' % (sA, sA, sR0),
          'v_lshl_add_u32 v8, v2, 2, s%d' % sA,
          'v_mul_u32_u24 v9, 80, v3',
          's_bitcmp1_b32 s%d, 0\ns_cselect_b32 s%d, s%d, s%d' % (sW8, sA, sO1, sO0), 's_lshr_b32 s%d, s%d, 1' % (sB, sW8),
          's_lshl_b32 s%d, s%d, 14' % (sC, sB), 's_add_u32 s%d, s%d, s%d' % (sA, sA, sC), 's_add_u32 s%d, s%d, %d' % (sA, sA, CU_(3) * U),
          's_lshl_b32 s%d, s%d, 2' % (sB, sB), 'v_xor_b32 v10, v3, v5', 'v_xor_b32 v10, s%d, v10' % sB, 'v_lshlrev_b32 v10, 4, v10',
          'v_lshl_add_u32 v10, v2, 7, v10', 'v_add_u32 v10, s%d, v10' % sA, 'v_xor_b32 v11, 64, v10',
          'v_and_b32 v12, 1, v0', 'v_cmp_eq_u32 s[50:51], 1, v12', 'v_and_b32 v12, 2, v0', 'v_cmp_eq_u32 s[52:53], 2, v12',
          'v_lshrrev_b32 v12, 2, v2', 'v_cmp_eq_u32 s[54:55], v12, v3',
          's_lshl_b32 s%d, s%d, 3' % (sA, sW8), 'v_add_u32 v12, s%d, v4' % sA, 'v_xor_b32 v13, v4, v5', 'v_lshlrev_b32 v13, 4, v13',
          'v_lshl_add_u32 v13, v12, 7, v13', 'v_add_u32 v13, %d, v13' % (CU_(3) * U), 'v_add_u32 v14, s%d, v13' % sO1, 'v_add_u32 v13, s%d, v13' % sO0,
          'v_lshlrev_b32 v12, 15, v12', 'v_lshl_add_u32 v12, v5, 4, v12',
          's_lshl4_add_u32 s%d, s%d, s%d' % (sA, sGT, sTAU), 's_lshl_b32 s%d, s%d, 7' % (sA, sA), 's_lshl_b32 s%d, s%d, 12' % (sB, sJ),
          's_add_u32 s57, s%d, s%d' % (sA, sB),
          's_mov_b32 s%d, s6' % SW, 's_and_b32 s%d, s7, 0xffff' % (SW + 1), 's_mov_b32 s%d, 0x%x' % (SW + 2, WS_BYTES), 's_mov_b32 s%d, 0x20000' % (SW + 3)]
    assert Z_OFF == 0
    def after_pre():
        a('s_waitcnt lgkmcnt(0)')
        mk('pa')
        a('s_and_b32 s13, s13, 0xffff')
    weave(a, V, dma, OPT['pre'], OPT['burst'], after_pre)
    T = []
    def fill(n):
        for o in T[:n]: a(o)
        del T[:n]
    mkw('pa')
    seen = set()
    def main_mfma(ks, nf):
        q, kb = ks >> 2, ks & 3
        lg.wait(('w', kb))
        for cb in range(2):
            for part in range(2):
                r0 = AE + 8 * (q & 1) + 4 * part if cb == 0 else AO + 8 * q + 4 * part
                acc = vr(r0, 4)
                a('v_mfma_f32_16x16x32_bf16 %s, %s, %s, %s' % (acc, vr(X + 4 * ks, 4), vr(W + 16 * kb + 8 * cb + 4 * part, 4), acc if r0 in seen else '0'))
                seen.add(r0)
                fill(nf)
    def stat_mfma(ks):
        lg.wait(ks)
        f = vr(X + 4 * ks, 4)
        for G, B in ((GQ, f), (GS, vr(ONE, 4))):
            a('v_mfma_f32_16x16x32_bf16 %s, %s, %s, %s' % (vr(G, 4), f, B, vr(G, 4) if G in seen else '0'))
            seen.add(G)
    def rd(c):
        if c >= 8: return
        vm.wait(('x', c))
        for ks in (2 * c, 2 * c + 1):
            a('ds_read_b128 %s, v%d offset:%d' % (vr(X + 4 * ks, 4), (18 if c < 4 else 60) + (ks & 1), (c & 3) * U)); lg.issue(ks)
    rd(0)
    mkw('pa')
    NL = OPT['nlast']
    mains = list(range(16))
    for c in range(8):
        stat_mfma(2 * c)
        rd(c + 1)
        stat_mfma(2 * c + 1)
        if c < 7:
            want = min(2 * c + 2, ((16 - NL) * (c + 1) + 6) // 7)
            while 16 - len(mains) < want: main_mfma(mains.pop(0), 0)
    mkw('pa')
    a('s_mov_b64 exec, 0xffff')
    a('ds_write2st64_b32 v8, v%d, v%d offset0:1 offset1:3' % (X, X + 32))
    a('s_mov_b64 exec, -1')
    main_mfma(mains.pop(0), 0)
    for G in (GQ, GS):
        T += ['v_cndmask_b32 v%d, v%d, v%d, s[50:51]' % (G, G, G + 1), 'v_cndmask_b32 v%d, v%d, v%d, s[50:51]' % (G + 2, G + 2, G + 3),
              'v_cndmask_b32 v%d, v%d, v%d, s[52:53]' % (G, G, G + 2)]
    T += ['v_mul_f32 v%d, %s, v%d' % (GS, fl(-1 / 512), GS), 'v_mul_f32 v%d, %s, v%d' % (GQ, fl(1 / 512), GQ),
          'v_fma_f32 v%d, -v%d, v%d, v%d' % (GQ, GS, GS, GQ), 'v_max_f32 v%d, 0, v%d' % (GQ, GQ),
          'v_add_f32 v%d, %s, v%d' % (GQ, fl(1e-5), GQ), 'v_rsq_f32 v%d, v%d' % (GQ, GQ), 's_nop 0', 'v_mul_f32 v%d, s%d, v%d' % (GQ, sSC, GQ)]
    T += ['ds_bpermute_b32 v%d, v9, v%d offset:%d' % (ONE + r, GQ, 4 * r) for r in range(4)]
    SR = 48

    E1 = ['v_fmac_f32 v%d, v17, v%d' % (AO + i, AO + 12 + i) for i in range(4)]
    E1 += ['v_fma_f32 v%d, -v17, v%d, v%d' % (AO + 4 + i, AO + 8 + i, AO + 4 + i) for i in range(4)]
    E2 = ['v_sub_f32 v%d, v%d, v%d' % (AO + i, AO + i, AO + 16 + i) for i in range(8)]
    E2 += ['s_waitcnt lgkmcnt(0)']
    E2 += ['v_mul_f32 v%d, v17, v%d' % (SR + i, ONE + i) for i in range(4)]
    E2 += ['v_mul_f32 v%d, v%d, v%d' % (AE + i, AE + i, ONE + (i & 3)) for i in range(8)]
    E2 += ['v_mul_f32 v%d, v%d, v%d' % (AO + i, AO + i, ONE + (i & 3)) for i in range(8)]
    T += E1
    assert mains[0] <= 13
    while mains:
        ks = mains.pop(0)
        if ks == 13: T += E2
        main_mfma(ks, 2)
    fill(len(T))
    a('s_mov_b64 exec, s[54:55]')
    a('ds_write2st64_b32 v8, v%d, v%d offset0:0 offset1:2' % (GQ, GS))
    a('s_mov_b64 exec, -1')
    mk('pa')
    A2, OUT = P, X
    for i in range(8): a('v_fmac_f32 v%d, v%d, v%d' % (AE + i, SR + (i & 3), AE + 8 + i))
    for n in range(4): a('v_cvt_pk_f16_f32 v%d, v%d, v%d' % (A2 + n, AE + 2 * n, AE + 2 * n + 1))
    T += ['v_fma_f32 v%d, -v%d, v%d, v%d' % (AO + i, SR + i, AO + 28 + i, AO + i) for i in range(4)]
    T += ['v_fmac_f32 v%d, v%d, v%d' % (AO + 4 + i, SR + i, AO + 24 + i) for i in range(4)]
    T += ['v_cvt_pk_f16_f32 v%d, v%d, v%d' % (A2 + 4 + n, AO + 2 * n, AO + 2 * n + 1) for n in range(4)]
    fill(2)
    for cb in range(2):
        for kind, M in enumerate((TK, TD)):
            for tb in range(2):
                a('v_mfma_f32_16x16x32_f16 %s, %s, %s, 0' % (vr(OUT + 16 * kind + 8 * tb + 4 * cb, 4), vr(A2 + 4 * cb, 4), vr(M + 4 * tb, 4)))
                fill(4)
        fill(len(T))
    for kind in range(2):
        for tb in range(2):
            o = OUT + 16 * kind + 8 * tb; d = AE + 8 * kind + 4 * tb
            for r in range(4): a('v_cvt_pk_f16_f32 v%d, v%d, v%d' % (d + r, o + r, o + 4 + r))
            a('ds_write_b128 v%d, %s offset:%d' % (10 + kind, vr(d, 4), tb * 2048))
    a('s_waitcnt lgkmcnt(0)')
    a('s_barrier')
    for w in range(4): a('ds_read_b128 %s, v%d offset:%d' % (vr(P + 4 * w, 4), 13 + (w & 1), (w >> 1) * U))
    a('s_waitcnt lgkmcnt(2)')
    for i in range(4): a('v_pk_add_f16 v%d, v%d, v%d' % (P + i, P + i, P + 4 + i))
    a('s_waitcnt lgkmcnt(0)')
    for i in range(4): a('v_pk_add_f16 v%d, v%d, v%d' % (P + 8 + i, P + 8 + i, P + 12 + i))
    for i in range(4): a('v_pk_add_f16 v%d, v%d, v%d' % (P + i, P + i, P + 8 + i))
    a('buffer_store_dwordx4 %s, v12, %s, s57 offen sc1' % (vr(P, 4), sr(SW, 4)))
    mk('pa', 'all')
    main_n = st.n
    a('s_branch %s_g1' % name)

    a.label('%s_mover' % name)
    st.n = 1
    a('s_lshl4_add_u32 s%d, s2, s%d' % (sA, sW8))
    a('s_cmp_lg_u32 s%d, 7' % sA)
    a('s_cbranch_scc1 %s_notag' % name)
    a('s_memrealtime s[50:51]')
    a.srd(SD, 4, 256)
    a('v_lshlrev_b32 v9, 8, v0')
    a('s_waitcnt lgkmcnt(0)')
    a('v_mov_b32 v8, s50')
    a('v_or_b32 v8, 1, v8')
    a('buffer_store_dword v8, v9, %s, 0 offen sc1' % sr(SD, 4))
    a.label('%s_notag' % name)
    vm = VM(a)
    sHW, sWO1, sWO2, sST, sNON = sW, 57, 36, 37, 95
    pass
    a('s_and_b32 s%d, s2, 7' % sT0)
    a('s_lshl_b32 s%d, s%d, 2' % (sT0, sT0))
    a('s_add_u32 s%d, s%d, s%d' % (sT0, sT0, sHW))
    a('s_lshl_b32 s%d, s%d, 10' % (sWO1, sT0))
    a('s_lshr_b32 s%d, s%d, 1' % (sT0, sT0))
    a('s_lshl_b32 s%d, s%d, 5' % (sT0, sT0))
    a('s_sub_u32 s%d, 768, s%d' % (sB, sT0))
    a('s_cmp_ge_u32 s%d, 256' % sT0)
    a('s_cselect_b32 s%d, s%d, s%d' % (sT0, sB, sT0))
    a('s_cselect_b32 s%d, -1, 1' % sB)
    a('v_mov_b32 v8, s%d' % sT0)
    a('v_mad_i32_i24 v8, v4, s%d, v8' % sB)
    a('s_mul_i32 s50, s%d, %d' % (sB, 8 * 3584))
    a('s_movk_i32 s%d, 3584' % sT2)
    a('v_lshlrev_b32 v18, 4, v5')
    a('v_mad_u32_u24 v9, v8, s%d, v18' % sT2)
    a('v_cmp_eq_u32 vcc, 0x200, v8')
    a('v_subrev_u32 v8, %d, v9' % (256 * 3584))
    a('v_cndmask_b32 v8, v9, v8, vcc')
    a('v_add_u32 v9, s50, v9')
    a('v_add_u32 v10, s50, v9')
    a('v_add_u32 v11, s50, v10')
    a('s_lshr_b32 s%d, s2, 3' % sT0)
    a('s_lshl_b32 s56, s%d, 7' % sT0)
    a('s_lshl_b32 s%d, s%d, 17' % (sT0, sT0))
    a('s_add_u32 s%d, s%d, s%d' % (sWO1, sWO1, sT0))
    a('s_add_u32 s%d, s%d, %d' % (sWO1, sWO1, WP_OFF))
    a('s_cmp_ge_u32 s2, %d' % 224)
    a('s_cselect_b32 s56, %d, s56' % OOB)
    a('s_cselect_b32 s%d, %d, s%d' % (sWO1, OOB, sWO1))
    a('s_lshl_b32 s%d, s%d, 12' % (sST, sHW))
    a('s_add_u32 s%d, s%d, %d' % (sST, sST, U))
    a('s_sub_u32 s%d, 255, s2' % sT0)
    a('s_lshl_b32 s%d, s%d, 1' % (sT0, sT0))
    a('s_and_b32 s%d, s%d, 1' % (sB, sHW))
    a('s_add_u32 s%d, s%d, s%d' % (sT0, sT0, sB))
    a('s_and_b32 s%d, s%d, 7' % (sB, sT0))
    a('s_lshr_b32 s%d, s%d, 3' % (sT2, sT0))
    a('s_mul_i32 s%d, s%d, 229376' % (sWO2, sB))
    a('s_lshl_b32 s50, s%d, 12' % sT2)
    a('s_add_u32 s%d, s%d, s50' % (sWO2, sWO2))
    a('s_add_u32 s%d, s%d, %d' % (sWO2, sWO2, WD_OFF))
    a('s_cmp_ge_u32 s%d, 48' % sT2)
    a('s_cselect_b32 s51, 14, 7')
    a('s_cselect_b32 s54, 1, 4')
    a('s_cselect_b32 s55, 8, 4')
    a('s_cselect_b32 s53, 56, 4')
    a('v_and_b32 v12, 1, v3')
    a('v_mul_u32_u24 v12, s55, v12')
    a('v_and_b32 v13, 2, v3')
    a('v_mad_u32_u24 v12, v13, s53, v12')
    a('v_lshlrev_b32 v12, 10, v12')
    a('v_lshl_add_u32 v12, v2, 3, v12')
    a('s_and_b32 s50, s%d, 15' % sT2)
    a('s_mul_i32 s50, s50, s51')
    a('s_lshr_b32 s%d, s%d, 4' % (sT2, sT2))
    a('s_lshl_b32 s%d, s%d, 1' % (sT2, sT2))
    a('s_add_u32 s50, s50, s%d' % sT2)
    a('s_lshl_b32 s50, s50, 14')
    a('s_lshl_b32 s%d, s%d, 7' % (sB, sB))
    a('s_add_u32 s50, s50, s%d' % sB)
    a('s_lshl_b32 s54, s54, 12')
    a('s_cmp_ge_u32 s%d, %d' % (sT0, 448))
    a('s_cselect_b32 s50, %d, s50' % OOB)
    a('s_cselect_b32 s%d, %d, s%d' % (sWO2, OOB, sWO2))
    a('v_bfe_u32 v32, v0, 2, 2')
    a('v_and_b32 v33, 3, v0')
    a('v_lshlrev_b32 v32, 7, v32')
    a('v_add_u32 v32, s%d, v32' % sST)
    a('v_lshl_add_u32 v32, v33, 3, v32')
    a('v_lshl_add_u32 v32, v3, 9, v32')
    a('s_bitcmp1_b32 s%d, 0' % sHW)
    a('s_cselect_b32 s%d, s42, s40' % SG)
    a('s_cselect_b32 s%d, s43, s41' % (SG + 1))
    a('s_and_b32 s%d, s%d, 0xffff' % (SG + 1, SG + 1))
    a('s_mov_b32 s%d, %d' % (SG + 2, 512 * 3584))
    a('s_mov_b32 s%d, 0x20000' % (SG + 3))
    a('s_mov_b64 s[38:39], s[46:47]')
    a('s_and_b32 s13, s13, 0xffff')
    a.srd(SD, 44, 1792 * 1024)
    a.srd(SW, 6, WS_BYTES)
    for n in range(4):
        a('s_add_u32 m0, s%d, %d' % (sST, n * 1024))
        a('buffer_load_dwordx4 v%d, %s, s56 offen lds' % (8 + n, sr(SG, 4)))
    XO = [o for c in (0, 7, 1, 6, 2) for q in range(2) for o in xdma(c, q)]
    def xo(when):
        if OPT['xo'] == when:
            for o in XO: a(o)
    NX = 10 if OPT['xo'] == 0 else 0
    TAG = 'buffer_load_dword v10, off, %s, 0 sc1' % sr(SD, 4)
    def tagld():
        a.srd(SD, 4, 256)
        a(TAG)
    def w1_part(nafter):
        xo(0)
        a('s_waitcnt vmcnt(%d)' % (nafter + NX))
        for f in range(4):
            for n in range(2):
                a('ds_read_b64_tr_b16 %s, v32 offset:%d' % (vr(64 + 4 * f + 2 * n, 2), n * 2048 + f * 32))
        for f in range(4):
            a('s_waitcnt lgkmcnt(%d)' % (6 - 2 * f))
            a('buffer_store_dwordx4 %s, v1, %s, s%d offen %s' % (vr(64 + 4 * f, 4), sr(SW, 4), sWO1, 'sc1'))
            if f < 3: a('s_add_u32 s%d, s%d, 32768' % (sWO1, sWO1))
    a('s_cmp_lt_u32 s%d, 2' % sHW)
    a('s_cbranch_scc1 %s_h01' % name)
    a('s_add_u32 s51, s50, s54')
    for jj in range(8):
        a('buffer_load_dwordx2 %s, v12, %s, s%d offen offset:%d' % (vr(96 + 2 * jj, 2), sr(SD, 4), 50 + (jj >> 2), (jj & 3) * 1024))
    a('s_mov_b32 s52, 0x05040100')
    a('s_mov_b32 s53, 0x07060302')
    mkw('pa')
    w1_part(8)
    a('s_waitcnt vmcnt(%d)' % (4 + NX))
    for db in range(4):
        for t in range(4):
            a('v_perm_b32 v%d, v%d, v%d, s%d' % (80 + 4 * db + t, 96 + 4 * t + 2 + (db >> 1), 96 + 4 * t + (db >> 1), 52 + (db & 1)))
        a('buffer_store_dwordx4 %s, v1, %s, s%d offen offset:%d %s' % (vr(80 + 4 * db, 4), sr(SW, 4), sWO2, 1024 * db, 'sc1'))
    xo(1)
    tagld()
    mk('pa')
    a('s_barrier')
    a('s_branch %s_g2' % name)
    a.label('%s_h01' % name)
    st.n = 1
    npf = 0
    a('v_mov_b32 v40, 0')
    a('s_lshr_b32 s%d, s2, 2' % sA)
    a('s_mul_i32 s%d, s%d, %d' % (sA, sA, FG))
    a('s_and_b32 s%d, s2, 3' % sB)
    a('s_lshl1_add_u32 s%d, s%d, s%d' % (sB, sB, sHW))
    a('s_lshl_b32 s%d, s%d, 8' % (sB, sB))
    a('s_add_u32 s%d, s%d, s%d' % (sA, sA, sB))
    a('s_add_u32 s%d, s%d, %d' % (sA, sA, FLAG_OFF))
    a('v_lshlrev_b32 v47, 2, v0')
    a('buffer_store_dword v40, v47, %s, s%d offen sc1' % (sr(SW, 4), sA)); npf += 1
    a('s_getpc_b64 s[52:53]')
    a.label('%s_pc' % name)
    a('s_lshr_b32 s%d, s2, 3' % sA)
    a('s_lshl1_add_u32 s%d, s%d, s%d' % (sA, sA, sHW))
    a('s_lshl_b32 s%d, s%d, 10' % (sA, sA))
    a('v_add_u32 v44, s%d, v1' % sA)
    a('v_min_u32 v44, %s_end - %s_pc, v44' % (name, name))
    a('v_add_co_u32 v44, vcc, s52, v44')
    a('v_mov_b32 v45, s53')
    a('v_addc_co_u32 v45, vcc, 0, v45, vcc')
    a('global_load_dword v46, v[44:45], off'); npf += 1
    for o in PAR: a(o)
    a('s_sub_u32 s%d, 64, s%d' % (sA, sP))
    a('s_cmp_eq_u32 s%d, 0' % sP)
    a('s_cselect_b32 s%d, 32, s%d' % (sPB, sA))
    a('s_lshl_b32 s%d, s%d, 2' % (sT0, sJ))
    a('v_add_u32 v41, s%d, v3' % sT0)
    a('v_cvt_f32_u32 v42, v41')
    a('v_mul_f32 v42, %s, v42' % fl(1 / 2048))
    for sg, (sres, sph) in enumerate(((sP, sPHA), (sPB, sPHB))):
        a('v_lshl_add_u32 v43, v2, 6, s%d' % sres)
        a('v_cvt_f32_u32 v43, v43')
        if sph: a('v_fma_f32 v43, v43, v42, s%d' % sph)
        else: a('v_mul_f32 v43, v43, v42')
        a('v_fmamk_f32 v48, v42, %s, v43' % fl(1024.0))
        a('v_cos_f32 v%d, v43' % (50 + 4 * sg))
        a('v_cos_f32 v%d, v48' % (51 + 4 * sg))
        a('v_sin_f32 v%d, v43' % (52 + 4 * sg))
        a('v_sin_f32 v%d, v48' % (53 + 4 * sg))
    a('v_lshlrev_b32 v40, 2, v2')
    a('v_add_u32 v40, s%d, v40' % sR0)
    for q in range(4): a('v_add_u32 v%d, %d, v40' % (104 + q, 64 * q))
    a('v_add_u32 v47, s%d, v47' % sR0)
    mkw('pa')
    w1_part(npf)
    xo(1)
    tagld()
    mk('pa')
    a('s_cmp_eq_u32 s%d, 0' % sHW)
    a('s_cbranch_scc1 %s_h0' % name)
    a('v_mov_b32 v62, s%d' % sP)
    a('v_mov_b32 v63, s%d' % sPB)
    a('v_cmp_gt_u32 vcc, 32, v0')
    a('v_and_b32 v59, 1, v3')
    a('v_lshlrev_b32 v59, 3, v59')
    a('v_lshl_add_u32 v59, v2, 4, v59')
    a('v_cndmask_b32 v62, v63, v62, vcc')
    a('v_lshl_add_u32 v59, v62, 8, v59')
    a('s_cmp_eq_u32 s%d, 0' % sJ)
    a('s_mov_b32 s%d, %d' % (sT0, MX_OFF))
    a('s_cselect_b32 s%d, s%d, %d' % (sT0, sT0, OOB))
    a('s_barrier')
    a('ds_read2st64_b32 v[60:61], v47 offset0:2 offset1:3')
    a('s_waitcnt lgkmcnt(0)')
    a('v_lshlrev_b32 v61, 16, v61')
    a('buffer_store_dwordx2 v[60:61], v59, %s, s%d offen %s' % (sr(SW, 4), sT0, 'sc1'))
    a('s_branch %s_g2' % name)
    a.label('%s_h0' % name)
    a('s_barrier')
    for q in range(4):
        a('ds_read_b32 v%d, v40 offset:%d' % (60 + q, 256 + 64 * q))
        a('ds_read2st64_b32 %s, v%d offset0:0 offset1:2' % (vr(96 + 2 * q, 2), 104 + q))
    a('s_waitcnt lgkmcnt(0)')
    for q in range(4):
        a('v_lshlrev_b32 v%d, 16, v%d' % (60 + q, 60 + q))
        a('v_add_f32 v%d, v%d, v%d' % (60 + q, 60 + q, 97 + 2 * q))
        a('v_mul_f32 v%d, v%d, v%d' % (60 + q, 60 + q, 96 + 2 * q))
    a('v_mul_f32 v58, v56, v62')
    a('v_mul_f32 v59, v52, v60')
    a('v_fmac_f32 v58, v57, v63')
    a('v_fmac_f32 v59, v53, v61')
    a('v_mul_f32 v58, s%d, v58' % sLAM)
    a('v_mul_f32 v59, s%d, v59' % sLAM)
    a('v_fma_f32 v58, -v50, v60, v58')
    a('v_fma_f32 v59, -v54, v62, v59')
    a('v_fma_f32 v58, -v51, v61, v58')
    a('v_fma_f32 v59, -v55, v63, v59')
    for rot in (8, 4, 2, 1):
        a('v_add_f32_dpp v58, v58, v58 row_ror:%d row_mask:0xf bank_mask:0xf' % rot)
        a('v_add_f32_dpp v59, v59, v59 row_ror:%d row_mask:0xf bank_mask:0xf' % rot)
    a('v_cvt_pk_f16_f32 v58, v58, v59')
    a('v_lshlrev_b32 v41, 2, v3')
    a('s_lshl4_add_u32 s%d, s%d, s%d' % (sA, sGT, sTAU))
    a('s_lshl3_add_u32 s%d, s%d, s%d' % (sA, sA, sJ))
    a('s_lshl_b32 s%d, s%d, 7' % (sA, sA))
    a('s_add_u32 s%d, s%d, %d' % (sA, sA, SF_OFF))
    a('s_mov_b32 exec_lo, 0x10001')
    a('s_mov_b32 exec_hi, 0x10001')
    a('buffer_store_dword v58, v41, %s, s%d offen sc1' % (sr(SW, 4), sA))
    a('s_mov_b64 exec, -1')

    def fpos(k): return (k // NPL) * FL + (k % NPL) * 4
    sPV = 40
    def poll_ops(offs, kind):
        w = 16 // len(offs)
        return ['s_load_dword%s %s, s[%d:%d], 0x%x glc' % ('x%d' % w if w > 1 else '', sr(sPV + w * j, w), b, b + 1, o + kind * FK) for j, (b, o) in enumerate(offs)]
    def poll_fold():
        o = ['s_waitcnt lgkmcnt(0)']
        for step in (2, 4, 8):
            o += ['s_and_b64 s[%d:%d], s[%d:%d], s[%d:%d]' % (k, k + 1, k, k + 1, k + step, k + step + 1) for k in range(40, 56, 2 * step)]
        return o + ['s_and_b32 s40, s40, s41']
    def poll_issue(offs, kind):
        for o in poll_ops(offs, kind): a(o if OPT['glc1'] else o.replace(' glc', ''))
    def poll_check(offs, kind, who, slow_first=(), slow_last=(), fast=()):
        lab = '%s_%s_p%d' % (name, who, kind)
        for o in poll_fold(): a(o)
        a('s_cbranch_scc0 %s_slow' % lab)
        for o in fast: a(o)
        a.label('%s_ok' % lab)
        tail.label('%s_slow' % lab)
        tail.raw(';STUB')
        for o in slow_first: tail(o)
        tail.label('%s_spin' % lab)
        for o in poll_ops(offs, kind): tail(o)
        tail('s_add_u32 s%d, s%d, 1' % (sCNT, sCNT))
        tail('s_cmp_gt_u32 s%d, %d' % (sCNT, OPT['spin']))
        tail('s_cselect_b32 s57, 1, 0')
        for o in poll_fold(): tail(o)
        tail('s_or_b32 s40, s40, s57')
        tail('s_cbranch_scc0 %s_spin' % lab)
        for o in slow_last: tail(o)
        tail('s_branch %s_ok' % lab)

    a.label('%s_g2' % name)
    sL0, sZS, sWS, sDS, sRS, sM, sN = 92, 93, 37, 96, 97, 98, 99
    G2ACC, G2ST, G2W = 16, 80, 128
    a('s_lshl4_add_u32 s%d, s%d, s%d' % (sA, sGT, sTAU))
    a('s_lshl3_add_u32 s%d, s%d, s%d' % (sA, sA, sJ))
    a('s_lshl_b32 s%d, s%d, 7' % (sA, sA))
    a('s_add_u32 s%d, s%d, %d' % (sA, sA, SF_OFF + 64))
    a('s_cmp_eq_u32 s%d, 0' % sW)
    a('s_cselect_b32 s94, s%d, %d' % (sA, OOB))
    for o in KFS: a(o)
    a('s_waitcnt vmcnt(0)')
    a('v_cmp_eq_u32 vcc, 0, v10')
    a('s_nop 1')
    a('s_cbranch_vccnz %s_tag_slow' % name)
    a.label('%s_tag_ok' % name)
    tail.label('%s_tag_slow' % name)
    tail(TAG)
    tail('s_add_u32 s%d, s%d, 1' % (sCNT, sCNT))
    tail('s_waitcnt vmcnt(0)')
    tail('v_cmp_eq_u32 vcc, 0, v10')
    tail('s_cmp_gt_u32 s%d, %d' % (sCNT, OPT['spin']))
    tail('s_cbranch_scc1 %s_tag_ok' % name)
    tail('s_cbranch_vccnz %s_tag_slow' % name)
    tail('s_branch %s_tag_ok' % name)
    mk('pa', 'all')
    a('s_mov_b64 exec, 1')
    a('s_barrier')
    a('buffer_store_dword v10, v1, %s, s94 offen sc1' % sr(SW, 4))
    a('s_mov_b64 exec, -1')
    mk('pa', 'all')
    xo(2)
    a('s_lshl_b32 s%d, s%d, 12' % (sL0, sW))
    a('s_lshl_b32 s%d, s%d, 15' % (sA, sT1))
    a('s_lshl_b32 s%d, s%d, 12' % (sB, sPAR))
    a('s_add_u32 s%d, s%d, s%d' % (sZS, sA, sB))
    a('v_and_b32 v8, 16, v0')
    a('v_lshlrev_b32 v8, 1, v8')
    a('v_xor_b32 v8, v8, v1')
    a('v_lshrrev_b32 v11, 2, v0')
    a('v_cmp_eq_u32 vcc, 1, v11')
    a('v_cmp_eq_u32 s[40:41], 0, v11')
    a('v_add_u32 v2, 1984, v8')
    a('v_add_u32 v3, 2048, v8')
    a('v_add_u32 v11, 64, v8')
    a('v_cndmask_b32 v2, v8, v2, vcc')
    a('v_cndmask_b32 v3, v3, v11, s[40:41]')
    a('s_mul_i32 s%d, s%d, %d' % (sWS, sSL, 7 * 32768))
    a('s_add_u32 s%d, s%d, s%d' % (sWS, sWS, sL0))
    a('s_mul_i32 s%d, s%d, 229376' % (sA, sDT))
    a('s_add_u32 s%d, s%d, s%d' % (sDS, sA, sL0))
    a('s_lshl_b32 s%d, s%d, 14' % (sB, sW))
    a('s_add_u32 s%d, s%d, s%d' % (sRS, sA, sB))
    a('s_lshl_b32 s%d, s%d, 13' % (sA, sW))
    a('s_add_u32 s94, s%d, %d' % (sA, SF_OFF + 64))
    a('v_lshlrev_b32 v9, 7, v0')
    if nstub:
        a('s_mov_b64 exec, 0')
        for k in range(min(nstub, 4)):
            a('s_cmp_eq_u32 s%d, %d' % (sW, k))
            a('s_cbranch_scc1 %s_stub%d' % (name, k))
    a.label('%s_ret' % name)
    a('s_mov_b64 exec, -1')
    a.label('%s_s1' % name)
    a('buffer_load_dword v11, v9, %s, s94 offen sc1' % sr(SW, 4))
    a('s_add_u32 s%d, s%d, 1' % (sCNT, sCNT))
    a('s_waitcnt vmcnt(0)')
    a('v_cmp_ne_u32 vcc, v10, v11')
    a('s_cmp_gt_u32 s%d, %d' % (sCNT, OPT['spin']))
    a('s_cbranch_scc1 %s_s1ok' % name)
    a('s_cbranch_vccz %s_s1ok' % name)
    a('s_and_b64 exec, exec, vcc')
    a('s_branch %s_s1' % name)
    a.label('%s_s1ok' % name)
    a('s_mov_b64 exec, -1')
    mk('pa', 'all')
    a('s_barrier')
    vm = VM(a)
    bars = ['pre'] + ['P%d' % k for k in range(8)] + ['B%d' % i for i in range(6)]
    early = {('Z', 2, 0): 'P2', ('Z', 3, 0): 'P3', ('W', 0, 0): 'P3', ('W', 0, 1): 'P4', ('W', 1, 0): 'P5', ('W', 1, 1): 'P5',
             ('W', 2, 0): 'P6', ('W', 2, 1): 'P7', ('W', 3, 0): 'P7', ('W', 3, 1): 'B0', ('W', 4, 0): 'B0', ('W', 4, 1): 'B0',
             ('W', 5, 0): 'B1', ('W', 5, 1): 'B1', ('W', 6, 0): 'B2', ('W', 6, 1): 'B2',
             ('D', 0, 0): 'B3', ('D', 0, 1): 'B3', ('D', 1, 0): 'B4', ('D', 1, 1): 'B4', ('D', 2, 0): 'B5', ('D', 2, 1): 'B5'}
    items = [(c, int(i), int(h)) for c, i, h in OPT['ord'].split()]
    for i in range(7): items += [('W', i, 0), ('W', i, 1)]
    for r in range(3): items += [('D', r, 0), ('D', r, 1)]
    lq = [(it, q) for it in items for q in range(2 if it[0] == 'X' else 4)]
    rq = [(('R', s, 0), q) for s in range(8) for q in range(4)]
    need = {'P%d' % k: [] if k & 1 else [('Z', k >> 1, 0)] for k in range(8)}
    need['P5'] += [('X', 5, 0)]; need['P6'] += [('X', 3, 0)]; need['P7'] += [('X', 4, 0)]
    need.update({'B%d' % i: [('W', i + 1, 0), ('W', i + 1, 1)] for i in range(6)})
    def emit(it, q):
        k, i, h = it
        if k == 'R':
            if q == 0: a('s_add_u32 s%d, s%d, %d' % (sN, sRS, WD_OFF + ((i >> 2) * 16 + (i & 3)) * 4096))
            a('buffer_load_dwordx4 %s, v1, %s, s%d offen offset:%d sc1' % (vr(G2W + 16 * i + 4 * q, 4), sr(SW, 4), sN, 1024 * q))
        elif k == 'X':
            for o in xdma(i, q): a(o)
        elif k == 'Z':
            if q == 0: a('s_add_u32 s%d, s%d, %d' % (sM, sZS, Z_OFF + 8192 * i))
            if q != 1: a('s_add_u32 m0, s%d, %d' % (sL0, ZU[i] * U + (2048 if q == 2 else 0)))
            a('buffer_load_dwordx4 v%d, %s, s%d offen offset:%d sc1 lds' % ((2, 8, 3, 8)[q], sr(SW, 4), sM, (0, 1024, 0, 3072)[q]))
        else:
            if q == 0:
                a('s_add_u32 m0, s%d, %d' % (sL0, (WU if k == 'W' else DU)[i][h] * U))
                base, off = {'W': (sWS, WP_OFF + 32768 * i + 16384 * h), 'D': (sDS, WD_OFF + (32 + 8 * i + 4 * h) * 4096)}[k]
                a('s_add_u32 s%d, s%d, %d' % (sM, base, off))
            a('buffer_load_dwordx4 v1, %s, s%d offen offset:%d sc1 lds' % (sr(SW, 4), sM, 1024 * q))
        vm.issue(it)
    OF2 = [(58 + 2 * (j >> 1), (j & 1) * 32 * FG + fpos(k)) for j in range(4) for k in range(0, 4, min(4, NPL))]
    g2map = [G2ST, G2ST + 16, G2ST + 32, G2ST, G2W, G2ST + 16, G2W + 16, G2ST + 32]
    def g2load(s):
        if s >= 8: return []
        pre = 's_add_u32 s%d, s56, %d\n' % (sN, (s >> 2) * JS + (s & 3) * 1024)
        return [((pre if j == 0 else '') + 'buffer_load_dwordx4 %s, v%d, %s, s%d offen sc1' % (vr(g2map[s] + 4 * j, 4), 12 + j, sr(SW, 4), sN), ('act', s, j)) for j in range(4)]
    head = [x for s in range(3) for x in g2load(s)]
    cnt = {}
    for bi, b in enumerate(bars):
        if b != 'pre':
            for it in need[b]:
                assert all(x[0] != it for x in lq), (b, it)
                vm.wait(it)
            if b[0] == 'P' or b == 'B0': mk('pro')
            if b[0] == 'B': mk('b')
            if b != 'P1': a('s_barrier')
            if b in ('P0', 'B0'): mk('all')
        cap = OPT['cap_pre'] if b == 'pre' else OPT['cap_p'] if b[0] == 'P' else OPT['cap_b']
        if isinstance(cap, list): cap = cap[int(b[1])]
        if b == OPT['hb']: poll_issue(OF2, 0)
        nxt = need[bars[bi + 1]] if b != 'B5' else [('D', r, h) for r in range(3) for h in range(2)]
        while True:
            must = any(x[0] in nxt for x in lq) or (b == 'B5' and rq)
            if cap <= 0 and not must: break
            ok = [k for k, x in enumerate(lq) if bars.index(early.get(x[0], 'pre')) <= bi and (k == 0 or (x[0][0] == 'X' and lq[0][1] == 0))]
            if ok: emit(*lq.pop(ok[0]))
            elif rq: emit(*rq.pop(0))
            else: break
            cap -= 1; cnt[b] = cnt.get(b, 0) + 1
        if b == OPT['hb']: poll_check(OF2, 0, 'g2')
        while bi >= bars.index(OPT['hb']) and not rq and head and cap >= 4:
            for o, t in head[:4]: a(o); vm.issue(t)
            del head[:4]; cap -= 4; cnt[b] += 4
        if b == 'B1':
            a('s_mul_i32 s%d, s%d, %d' % (sB, sW, fpos(4)))
            a('s_add_u32 s%d, s%d, %d' % (sB, sB, FLAG_OFF))
            for k, t in enumerate((sTAU, sT1G1)):
                a('s_mul_i32 s%d, s%d, %d' % (sA, t, FG))
                a('s_add_u32 s%d, s%d, s%d' % (sA, sA, sB))
                a('s_add_u32 s%d, s6, s%d' % (58 + 2 * k, sA))
                a('s_addc_u32 s%d, s7, 0' % (59 + 2 * k))
            a('s_add_u32 s%d, s%d, s%d' % (sA, sTAU, sT1G1))
            a('s_sub_u32 s%d, s%d, s%d' % (sA, sA, sT1))
            a('s_lshl_b32 s%d, s%d, 5' % (sB, sPAR))
            a('s_add_u32 s%d, s%d, s%d' % (sC, sA, sB))
            for k, g in enumerate((sPP, sC)):
                a('s_mul_i32 s%d, s%d, %d' % (sA, g, GRP))
                a('v_add_u32 v%d, s%d, v1' % (12 + 2 * k, sA))
                a('s_xor_b32 s%d, s%d, 32' % (sA, g))
                a('s_mul_i32 s%d, s%d, %d' % (sA, sA, GRP))
                a('v_add_u32 v%d, s%d, v1' % (13 + 2 * k, sA))
            a('s_mul_i32 s%d, s%d, %d' % (sA, sGT, GRP // 2))
            a('s_add_u32 s%d, s%d, %d' % (sA, sA, ACT_OFF))
            a('s_add_u32 s56, s%d, s%d' % (sA, sL0))
            a('s_mul_i32 s%d, s%d, %d' % (sB, sPP, GRP))
            a('s_add_u32 s%d, s%d, s%d' % (sA, sA, sB))
            a('s_add_u32 s93, s%d, %d' % (sA, 3 * JS))
            a('s_add_u32 s94, s%d, %d' % (sA, 3 * JS + 4096))
        if b == 'B3':
            assert all(x[0][0] == 'D' for x in lq)
            for k in range(4):
                a('s_xor_b32 s%d, s%d, %d' % (sA, sW, k))
                a('s_lshl_b32 s%d, s%d, 2' % (sA, sA))
                a('s_lshr_b32 s%d, 0x%x, s%d' % (sA, PU[0] | PU[1] << 4 | PU[2] << 8 | PU[3] << 12, sA))
                a('s_and_b32 s%d, s%d, 15' % (sA, sA))
                a('s_lshl_b32 s%d, s%d, 14' % (sA, sA))
                a('v_add_u32 v%d, s%d, v1' % (4 + k, sA))
            a('s_mul_i32 s%d, s%d, %d' % (sA, sPP, FG))
            a('s_add_u32 s%d, s%d, %d' % (sA, sA, FLAG_OFF))
            a('s_add_u32 s36, s6, s%d' % sA)
            a('s_addc_u32 s37, s7, 0')
            a('s_lshl_b32 s%d, s%d, 10' % (sA, sPP))
            a('s_lshl_b32 s%d, s%d, 7' % (sB, sDT))
            a('s_add_u32 s%d, s%d, s%d' % (sA, sA, sB))
            a('s_lshl_b32 s%d, s%d, 20' % (sB, sGT))
            a('s_add_u32 s34, s%d, s%d' % (sA, sB))
            a.srd(SO, 38, 2048 * 1024)
            a('v_lshrrev_b32 v9, 4, v0')
            a('v_lshlrev_b32 v9, 18, v9')
            a('v_and_b32 v10, 15, v0')
            a('v_lshl_add_u32 v9, v10, 3, v9')
            a('v_add_u32 v10, 65536, v1')
    assert not rq and not lq
    if OPT.get('show'): print(cnt, 'head left', len(head))
    vm.wait(('D', 2, 1))
    poll_issue(OF2, 1)
    mk('b')
    a('s_barrier')
    for o, t in head: a(o); vm.issue(t)
    mk('all', 'end')
    if OPT['prio']: a('s_setprio 1')
    OF6 = [(36, fpos(k)) for k in range(0, 16, NPL)]
    A6 = G2W + 32
    L6 = [('buffer_load_dwordx4 %s, v1, %s, s%d offen offset:%d sc1' % (vr(A6 + 4 * j, 4), sr(SW, 4), 93 + (j >> 2), 1024 * (j & 3)), ('a6', j)) for j in range(8)]
    L6ops = [o for o, t in L6]
    pcs = OPT['pcs']
    def wr(k): return ['ds_write_b128 v4, %s offset:%d' % (vr(G2ACC + 16 * k + 4 * j, 4), 4096 * k + 1024 * j) for j in range(4)]
    dblk = [(4, G2ST), (5, G2W), (5, G2W + 64), (6, G2ST + 16), (6, G2W + 80), (7, G2W + 16), (7, G2W + 96), (8, G2ST + 32)]
    dreg = [b + 4 * j for s, b in dblk for j in range(4)]
    D2 = {'f': 0}
    def d2rd(s):
        f = D2['f']
        if f >= 32 or dblk[f >> 2][0] > s: return
        D2['f'] += 1
        u = DU[2][f >> 4]
        a('ds_read_b128 %s, v%d offset:%d' % (vr(dreg[f], 4), (1, 10)[u >> 2], (u & 3) * U + (f & 15) * 1024))
    for s in range(8):
        pend = []
        if 1 <= s <= 3: pend = g2load(2 * s + 1) + g2load(2 * s + 2)
        if s == pcs[0]: poll_issue(OF6, 3)
        if s == pcs[1]:
            poll_check(OF6, 3, 'g2'); pend = L6; L6 = []
        R = g2map[s]
        for tg in ((1, 2, 3, 0) if s == 7 else range(4)):
            vm.wait(('act', s, tg))
            if tg == 3 and s in (0, 2, 4): mk('end')
            for db in range(4):
                if pend and db % 2 == 0:
                    if s == 1 and len(pend) == 4: poll_check(OF2, 1, 'g2')
                    o, t = pend.pop(0)
                    a(o); vm.issue(t)
                acc = vr(G2ACC + 16 * tg + 4 * db, 4)
                a('v_mfma_f32_16x16x32_bf16 %s, %s, %s, %s' % (acc, vr(R + 4 * tg, 4), vr(G2W + 16 * s + 4 * db, 4), acc if s else '0'))
                if db & 1: d2rd(s)
        assert not pend
    mk('end')
    def l6():
        poll_check(OF6, 3, 'g2')
        for o, t in L6: a(o); vm.issue(t)
    if pcs[0] == 8: poll_issue(OF6, 3)
    if pcs[1] == 8: l6()
    for o in wr(1) + wr(2) + wr(3): a(o)
    while D2['f'] < 32: d2rd(8)
    if pcs[1] == 9: l6()
    a('s_waitcnt lgkmcnt(0)')
    mk('end')
    if OPT['prio']: a('s_setprio 3')
    F = []
    for j in range(9):
        if j == OPT['xj']:
            a('s_barrier')
            mkw('all', 'end')
            for k in (1, 2, 3, 0):
                for db in range(4): a('ds_read_b128 %s, v%d offset:%d' % (vr((G2ACC + 16 * k if k else 240) + 4 * db, 4), 4 + k, 4096 * k + 1024 * db))
            for n, src in enumerate((G2ACC + 32, G2ACC + 48, 240)):
                F += ['s_waitcnt lgkmcnt(%d)' % (8 - 4 * n)] + ['v_add_f32 v%d, v%d, v%d' % (G2ACC + 16 + i, G2ACC + 16 + i, src + i) for i in range(16)]
            for o in F[:OPT['npre']]: a(o)
            del F[:OPT['npre']]
        if j == 8: break
        vm.wait(('a6', j))
        for db in range(4):
            acc = vr(G2ACC + 4 * db, 4)
            a('v_mfma_f32_16x16x32_bf16 %s, %s, %s, %s' % (acc, vr(A6 + 4 * j, 4), vr(dreg[4 * j + db], 4), acc))
            if j > OPT['xj'] or OPT['npre']:
                for o in F[:2]: a(o)
                del F[:2]
    for o in F: a(o)
    mk('end')
    for r in range(4):
        for db in range(4): a('v_add_f32 v%d, v%d, v%d' % (G2ACC + 4 * db + r, G2ACC + 4 * db + r, G2ACC + 16 + 4 * db + r))
        for t in range(2): a('v_cvt_pk_bf16_f32 v%d, v%d, v%d' % (64 + 2 * r + t, G2ACC + 8 * t + r, G2ACC + 8 * t + 4 + r))
        a('buffer_store_dwordx2 %s, v9, %s, s34 offen %s' % (vr(64 + 2 * r, 2), sr(SO, 4), OPT['st_o']))
        if r < 3: a('s_add_u32 s34, s34, 65536')
    mk('end')
    assert st.n <= 13
    st.flush(SW, sW8)
    a('s_endpgm')

    a.raw('.p2align 12')
    a.label('%s_g1' % name)
    st.n = main_n
    if OPT['prio']: a('s_setprio 2')
    XH, DR, PA, CM, vDON, ACC, RG, NR = 128, 16, 24, 32, 40, 56, 88, 10
    DL, PI = XH + 112, XH + 120
    vZ, vX, vVA, vDM, vMSK = 2, 6, 8, 10, 11
    T = ACC
    vN, vG = 12, 13
    n_setup = len(a.lines)
    for o in KFS: a(o)
    a('v_and_b32 v%d, 15, v0' % vN)
    a('v_lshrrev_b32 v%d, 4, v0' % vG)
    a('v_lshlrev_b32 v%d, 3, v%d' % (T, vG))
    a('s_cmp_eq_u32 s%d, 0' % sT1)
    a('s_cselect_b32 s%d, 64, 63' % sC)
    a('v_cvt_f32_u32 v%d, v%d' % (T + 2, vG))
    a('v_add_f32 v%d, v%d, v%d' % (T + 2, T + 2, T + 2))
    a('v_cmp_eq_u32 vcc, 0, v%d' % vG)
    def dmat(D, tb, mirror):
        a('v_lshl_add_u32 v%d, v%d, 1, s%d' % (T + 3, vN, sPAR))
        if tb: a('v_add_u32 v%d, 32, v%d' % (T + 3, T + 3))
        if mirror: a('v_sub_u32 v%d, s%d, v%d' % (T + 3, sC, T + 3))
        a('v_lshlrev_b32 v%d, 30, v%d' % (T + 4, T + 3))
        a('v_cvt_f32_u32 v%d, v%d' % (T + 3, T + 3))
        a('v_and_or_b32 v%d, v%d, s34, 1.0' % (T + 4, T + 4))
        a('v_mul_f32 v%d, %s, v%d' % (T + 3, fl(1 / 64), T + 3))
        a('v_mul_f32 v%d, v%d, v%d' % (T + 5, T + 3, T + 2))
        a('v_add_f32 v%d, v%d, v%d' % (T + 6, T + 5, T + 3))
        a('v_fmamk_f32 v%d, v%d, %s, v%d' % (T + 7, T + 3, fl(8.0), T + 5))
        a('v_fmamk_f32 v%d, v%d, %s, v%d' % (T + 8, T + 3, fl(8.0), T + 6))
        for t in range(4): a('v_sin_f32 v%d, v%d' % (T + 9 + t, T + 5 + t))
        for t in range(4): a('v_cos_f32 v%d, v%d' % (T + 5 + t, T + 5 + t))
        a('v_cndmask_b32 v%d, v%d, v%d, vcc' % (T + 9, T + 9, T + 4))
        for t in range(4): a('v_cvt_pk_f16_f32 v%d, v%d, v%d' % (D + 4 * tb + t, T + 5 + t, T + 9 + t))
    a('s_brev_b32 s34, 1')
    dmat(DL, 0, 0); dmat(DL, 1, 0); dmat(DR, 0, 1); dmat(DR, 1, 1)
    a('v_mov_b32 v%d, 0x10000' % (T + 3))
    a('v_cndmask_b32 v%d, 0, v%d, vcc' % (vDM, T + 3))
    def onehot(dst, vIdx, sgn):
        a('v_lshlrev_b32 v%d, 4, v%d' % (T + 5, vIdx))
        a('v_mov_b32 v%d, 0x3f80' % (T + 6))
        a('v_lshlrev_b32 v%d, v%d, v%d' % (T + 5, T + 5, T + 6))
        a('v_ashrrev_i32 v%d, 1, v%d' % (T + 4, vIdx))
        for i in range(8): a('v_cmp_eq_u32 s[%d:%d], %d, v%d' % (40 + 2 * i, 41 + 2 * i, sgn * 8 * (i >> 2) + (i & 3), T + 4))
        for i in range(8): a('v_cndmask_b32 v%d, 0, v%d, s[%d:%d]' % (dst + i, T + 5, 40 + 2 * i, 41 + 2 * i))
    a('v_sub_u32 v%d, v%d, v%d' % (T + 3, vN, T))
    onehot(PI, T + 3, -1)
    a('v_add_u32 v%d, v%d, v%d' % (T + 3, vN, T))
    a('v_sub_u32 v%d, 32, v%d' % (T + 3, T + 3))
    onehot(PA, T + 3, 1)
    a('v_cmp_ne_u32 vcc, 0, v%d' % vN)
    a('v_lshrrev_b32 v%d, 2, v0' % (T + 3))
    a('v_lshlrev_b32 v%d, 6, v%d' % (T + 3, T + 3))
    a('v_cndmask_b32 v%d, 0, -1, vcc' % vMSK)
    a('v_and_b32 v%d, 3, v0' % (T + 4))
    a('v_lshl_add_u32 v%d, v%d, 3, v%d' % (T + 3, T + 4, T + 3))
    a('v_and_b32 v%d, 1, v%d' % (T + 4, vG))
    a('v_lshl_add_u32 v%d, v%d, 5, v%d' % (T + 3, T + 4, T + 3))
    a('s_lshl_b32 s%d, s%d, 13' % (sA, sG))
    a('v_add_u32 v%d, s%d, v%d' % (vZ, sA, T + 3))
    a('s_lshl_b32 s%d, s%d, 13' % (sA, sGM))
    a('v_add_u32 v%d, s%d, v%d' % (vZ + 2, sA, T + 3))
    a('s_mul_i32 s92, s%d, 0x80008000' % sPAR)
    a('s_or_b32 s92, s92, 0x3c003c00')
    a('s_and_b32 s%d, s%d, 1' % (sB, sC))
    a('s_mul_i32 s%d, s%d, 0x80008000' % (sB, sB))
    a('s_xor_b32 s93, s92, s%d' % sB)
    a('v_xor_b32 v%d, 32, v%d' % (vZ + 1, vZ))
    a('v_xor_b32 v%d, 32, v%d' % (vZ + 3, vZ + 2))
    a('v_lshrrev_b32 v%d, 1, v%d' % (T + 3, vN))
    a('v_xor_b32 v%d, v%d, v%d' % (T + 3, vG, T + 3))
    a('v_lshlrev_b32 v%d, 4, v%d' % (T + 3, T + 3))
    a('v_lshl_add_u32 v%d, v%d, 7, v%d' % (T + 3, vN, T + 3))
    a('s_lshl_b32 s%d, s%d, 12' % (sA, sW))
    a('s_add_u32 s%d, s%d, %d' % (sA, sA, CU_(0) * U))
    a('v_add_u32 v%d, s%d, v%d' % (vX, sA, T + 3))
    a('v_xor_b32 v%d, 64, v%d' % (vX + 1, vX))
    vXR = 44
    for t in range(2): a('v_add_u32 v%d, 65536, v%d' % (vXR + t, vX + t))
    a('v_mov_b32 v%d, 0' % vVA)
    a('v_mov_b32 v%d, 0' % (vVA + 1))
    sAS, sFO, sAL, sPB = 36, 56, 59, 60
    a('s_mul_i32 s%d, s%d, %d' % (sA, sPP, GRP))
    a('s_add_u32 s%d, s%d, %d' % (sA, sA, ACT_OFF))
    a('s_lshl_b32 s%d, s%d, 10' % (sB, sSL))
    a('s_add_u32 s%d, s%d, s%d' % (sAS, sA, sB))
    a('s_add_u32 s%d, s%d, %d' % (sAS + 1, sAS, GRP // 2))
    a('s_mul_i32 s%d, s%d, %d' % (sB, sGT, GRP // 2))
    a('s_add_u32 s%d, s%d, s%d' % (sAL, sA, sB))
    a('s_mul_i32 s%d, s%d, %d' % (sA, sPP, FG))
    a('s_add_u32 s%d, s%d, %d' % (sA, sA, FLAG_OFF))
    a('s_add_u32 s%d, s6, s%d' % (sPB, sA))
    a('s_addc_u32 s%d, s7, 0' % (sPB + 1))
    a('s_lshr_b32 s%d, s%d, %d' % (sB, sSL, NPL.bit_length() - 1))
    a('s_mul_i32 s%d, s%d, %d' % (sB, sB, FL))
    a('s_add_u32 s%d, s%d, s%d' % (sFO, sA, sB))
    a('s_and_b32 s%d, s%d, %d' % (sB, sSL, NPL - 1))
    a('s_lshl_b32 s%d, s%d, 2' % (sB, sB))
    a('s_add_u32 s%d, s%d, s%d' % (sFO, sFO, sB))
    sI0, sI1, sSG, sS0, sDU = 12, 13, 14, 15, 63
    a('s_lshl_b32 s%d, s%d, 4' % (sA, sDT))
    a('s_sub_u32 s%d, 176, s%d' % (sB, sA))
    a('s_cmp_ge_u32 s%d, 4' % sDT)
    a('s_cselect_b32 s%d, s%d, s%d' % (sA, sB, sA))
    a('s_cselect_b32 s%d, -1, 1' % sSG)
    a('s_cselect_b32 s%d, 64, 0' % sS0)
    a('s_add_u32 s%d, s%d, 16' % (sB, sA))
    a('s_cmp_eq_u32 s%d, 4' % sDT)
    a('s_cselect_b32 s%d, 64, s%d' % (sB, sB))
    a('s_lshl_b32 s%d, s%d, 2' % (sC, sGT))
    a('s_add_u32 s%d, s%d, s%d' % (sI0, sA, sC))
    a('s_add_u32 s%d, s%d, s%d' % (sI1, sB, sC))
    for Q in range(4): a('s_add_u32 s%d, s%d, %d' % (94 + Q, sAL, 2 * JS + 4096 * Q))
    a('s_lshl_b32 s%d, s%d, 2' % (sA, sW))
    a('s_lshr_b32 s%d, 0x%x, s%d' % (sA, PU[0] | PU[1] << 4 | PU[2] << 8 | PU[3] << 12, sA))
    a('s_and_b32 s%d, s%d, 15' % (sA, sA))
    a('s_lshl_b32 s98, s%d, 14' % sA)
    def a6off(v, t):
        return ['v_lshrrev_b32 v%d, 1, v%d' % (v, vG), 'v_lshlrev_b32 v%d, 8, v%d' % (v, v), 'v_lshl_add_u32 v%d, v%d, 4, v%d' % (v, vN, v),
                'v_and_b32 v%d, 1, v%d' % (t, vG), 'v_mul_u32_u24 v%d, %d, v%d' % (t, GRP // 2, t), 'v_add_u32 v%d, v%d, v%d' % (v, v, t)]
    a('s_lshl_b32 s%d, s%d, 9' % (sA, sSL))
    a('s_sub_u32 s99, s%d, s%d' % (sAS, sA))
    a('s_add_u32 s99, s99, %d' % (3 * JS))
    a('v_add_u32 v14, 65536, v1')
    a('v_add_u32 v15, 131072, v1')
    a('v_and_b32 v%d, 31, v0' % (T + 1))
    a('v_lshlrev_b32 v%d, 10, v%d' % (T + 1, T + 1))
    a('v_lshlrev_b32 v%d, 4, v%d' % (T + 2, vN))
    a('s_lshr_b32 s%d, s%d, 2' % (sA, sT1))
    a('s_lshl_b32 s%d, s%d, 7' % (sA, sA))
    a('s_and_b32 s%d, s%d, 3' % (sB, sT1))
    a('s_lshl2_add_u32 s%d, s%d, s%d' % (sA, sB, sA))
    a('s_add_u32 s%d, s%d, %d' % (sA, sA, SF_OFF))
    a('s_lshl_b32 s%d, s%d, 8' % (sB, sPP))
    a('s_add_u32 s%d, s%d, %d' % (sB, sB, MX_OFF))
    a('s_mov_b32 s40, 0x05040100')
    a('s_mov_b32 s41, 0x07060302')
    k = n_setup + OPT['sw']
    a.lines[k:k] = ['    s_waitcnt vmcnt(0)', '    s_barrier']
    mk('pa', 'all')
    a('s_barrier')
    ZC, MX = RG + 32, T + 8
    a('buffer_load_dword v%d, v%d, %s, s%d offen sc1' % (T + 4, T + 1, sr(SW, 4), sA))
    a('buffer_load_dwordx4 %s, v%d, %s, s%d offen sc1' % (vr(MX, 4), T + 2, sr(SW, 4), sB))
    a('s_waitcnt vmcnt(1)')
    a('v_mov_b32 v%d, v%d' % (T + 5, T + 4))
    a('v_permlane16_swap_b32 v%d, v%d' % (T + 4, T + 5))
    a('v_perm_b32 v%d, v%d, v%d, s40' % (T + 6, T + 5, T + 4))
    a('v_perm_b32 v%d, v%d, v%d, s41' % (T + 7, T + 5, T + 4))
    a('v_cndmask_b32 v%d, v%d, v%d, vcc' % (T + 4, T + 6, T + 4))
    a('v_cndmask_b32 v%d, v%d, v%d, vcc' % (T + 5, T + 7, T + 5))
    a('v_pk_fma_f16 v%d, v%d, s92, v%d' % (T + 4, T + 5, T + 4))
    for t in range(4): a('ds_bpermute_b32 v%d, v%d, v%d offset:%d' % (ZC + t, T, T + 4, 32 * (t >> 1) + 4 * (t & 1)))
    a('s_waitcnt vmcnt(0)')
    for tb in range(2):
        for i in range(4): a('v_mov_b32 v%d, v%d' % (CM + 4 * tb + i, MX + 2 * tb))
    for tb in range(2):
        a('v_lshrrev_b32 v%d, 16, v%d' % (MX + 1 + 2 * tb, MX + 1 + 2 * tb))
        a('v_mul_u32_u24 v%d, v%d, v%d' % (vDON + tb, MX + 1 + 2 * tb, vDM))
    a('s_waitcnt lgkmcnt(0)')
    for tb in range(2):
        a('v_mfma_f32_16x16x32_f16 %s, %s, %s, %s' % (vr(CM + 4 * tb, 4), vr(ZC, 4), vr(DL + 4 * tb, 4), vr(CM + 4 * tb, 4)))
    vm = VM(a)
    lg = LG(a)
    order = []
    for L in range(4): order += [2 * L, 2 * L + 1, 8 + 2 * L, 9 + 2 * L]
    S = {'rd': 0, 'win': 1}
    vB1, vB2 = 14, 15
    LO, HI, XS = (RG, RG + 8), (RG + 16, 48), (RG + 24, RG + 32)
    def slot(f): return RG + 4 * (0, 1, 4, 5, 6, 7, 2, 3, 8, 9)[f % NR]
    def pbar(k):
        mk('pro')
        if k != 1: a('s_barrier')
        if k == 0: mkw('all', 'pa')
    def zrd(n, j):
        if n >= 16: return
        beta = order[n]; L = n >> 2; half = beta >> 3; u, hi = j >> 1, j & 1
        if n % 4 == 0 and j == 0: pbar(2 * L)
        for q in range(2):
            a('ds_read_b64_tr_b16 %s, v%d offset:%d' % (vr((HI if hi else LO)[n & 1] + 4 * u + 2 * q, 2), vZ + 2 * half + u,
                                                       ZU[L] * U + (beta & 1) * 4096 + hi * 2048 + q * 1024))
            lg.issue(('z', n, u))
    def xrd(n, tb):
        if n >= 16: return
        beta = order[n]; L = n >> 2; half = beta >> 3
        if n % 4 == 2 and tb == 0: pbar(2 * L + 1)
        a('ds_read_b128 %s, v%d offset:%d' % (vr(XS[n & 1] + 4 * tb, 4), (vXR if half else vX) + ((beta & 1) ^ half), (3 - L if half else L) * U + tb * 2048)); lg.issue(('x', n))
    def bfly(n):
        if n >= 16: return []
        return [('lw', ('z', n, 1))] + ['v_pk_fma_f16 v%d, v%d, s%d, v%d' % (LO[n & 1] + i, HI[n & 1] + i, 92 + (order[n] >> 3), LO[n & 1] + i) for i in range(8)]
    def putl(o):
        if isinstance(o, str): a(o)
        else: lg.wait(o[1])
    def rd():
        g = S['rd']
        if g >= 224: return
        S['rd'] += 1
        i, j = divmod(g, 32)
        u = WU[i][j >> 4]
        a('ds_read_b128 %s, v%d offset:%d' % (vr(slot(g), 4), (1, vB1, vB2)[u >> 2], (u & 3) * U + (j & 15) * 1024)); lg.issue(g)
    def post(n):
        beta = order[n]; acc = ACC + 16 * (n & 1); ops = []
        for tb in range(2):
            if beta >= 8: ops.append('v_add_f32 v%d, v%d, v%d' % (acc + 4 * tb, acc + 4 * tb, vDON + 2 * (beta & 1) + tb))
            for u in range(2):
                for t in range(2):
                    r = acc + 8 * u + 4 * tb + 2 * t
                    ops += ['v_fmac_f32 v%d, v%d, v%d' % (vVA + tb, r, r), 'v_cvt_pk_bf16_f32 v%d, v%d, v%d' % (XH + 8 * beta + 4 * tb + 2 * u + t, r, r + 1),
                            'v_fmac_f32 v%d, v%d, v%d' % (vVA + tb, r + 1, r + 1)]
        return ops
    for j in range(4): zrd(0, j)
    for tb in range(2): xrd(0, tb)
    for j in range(2): zrd(1, j)
    for o in bfly(0): putl(o)
    for j in range(2, 4): zrd(1, j)
    for i in range(4): a('v_and_b32 v%d, v%d, v%d' % (LO[0] + i, vMSK, LO[0] + i))
    for n in range(16):
        beta = order[n]; acc = ACC + 16 * (n & 1); half = beta >> 3
        pp_ = post(n - 1) if n else []
        cut = OPT['bcut'] if n else 0
        pend = pp_[:cut] + bfly(n + 1) + pp_[cut:]
        tot = len(pend)
        W8 = OPT['pw']
        for j in range(8):
            if j == 4: lg.wait(('x', n))
            if j < 4:
                u, tb = j >> 1, j & 1
                a('v_mfma_f32_16x16x32_f16 %s, %s, %s, %s' % (vr(acc + 8 * u + 4 * tb, 4), vr(LO[n & 1] + 4 * u, 4), vr((DR if half else DL) + 4 * tb, 4), vr(CM + 4 * tb, 4)))
            else:
                tb, u = (j - 4) >> 1, j & 1
                d = vr(acc + 8 * u + 4 * tb, 4)
                a('v_mfma_f32_16x16x32_bf16 %s, %s, %s, %s' % (d, vr((PA if half else PI) + 4 * u, 4), vr(XS[n & 1] + 4 * tb, 4), d))
            if j == 0:
                for tb in range(2): xrd(n + 1, tb)
            if j >= 4: zrd(n + 2, j - 4)
            if n == 15 and j == 4:
                mk('b', 'pro')
                a('s_barrier')
            if n == 15 and j >= 4:
                for _ in range(2):
                    if S['rd'] < OPT['wpd'] - 2: rd()
            k = -(-tot * sum(W8[:j + 1]) // sum(W8)) - (tot - len(pend))
            if n == 0 and j < 3: k = 0
            for o in pend[:k]: putl(o)
            pend = pend[k:]
            if j == 7 and half and beta < 15:
                for tb in range(2): a('v_mul_u32_u24 v%d, v%d, v%d' % (vDON + 2 * ((beta + 1) & 1) + tb, XS[n & 1] + 4 * tb, vDM))
        assert not pend
    mk('all')
    TMP, OUT, vC1, vIR, vM, vFO, vONE, vL8 = 16, 48, 2, 4, 6, 7, 10, 11
    first = ['s_cmp_eq_u32 s%d, 0' % sGT, 's_cselect_b64 s[40:41], -1, 0', 'v_cmp_eq_u32 vcc, 0, v0'] + post(15)
    first += ['v_cndmask_b32 v%d, v%d, v%d, s[40:41]' % (vM, CM + 4, CM), 'v_mov_b32 v%d, %d' % (vFO, OOB)]
    for op in ('v_permlane32_swap_b32', 'v_permlane16_swap_b32'):
        first += ['v_mov_b32 v%d, v%d' % (vIR + tb, vVA + tb) for tb in range(2)]
        first += ['v_mov_b32 v%d, 1' % vONE if '32' in op[:13] else 's_nop 0']
        first += ['%s v%d, v%d' % (op, vIR + tb, vVA + tb) for tb in range(2)]
        first += ['v_add_f32 v%d, v%d, v%d' % (vVA + tb, vVA + tb, vIR + tb) for tb in range(2)]
    first += ['v_mov_b32 v%d, %s' % (vC1, fl(1e-5)), 'v_cndmask_b32 v%d, v%d, 0, vcc' % (vFO, vFO)]
    first += ['v_fmamk_f32 v%d, v%d, %s, v%d' % (vIR + tb, vVA + tb, fl(1 / 512), vC1) for tb in range(2)]
    first += ['v_rsq_f32 v%d, v%d' % (vC1 + tb, vIR + tb) for tb in range(2)]
    first += ['v_sub_f32 v%d, 0, v%d' % (vM, vM)]
    first += ['v_mul_f32 v%d, %s, v%d' % (vC1 + tb, fl(-1.4426950408889634), vC1 + tb) for tb in range(2)]
    first += a6off(vL8, vVA)
    def flag(kind): return 'buffer_store_dword v%d, v%d, %s, s%d offen offset:%d sc1' % (vONE, vFO, sr(SW, 4), sFO, kind * FK)
    def outb(i): return OUT
    def store(i, tb):
        if i < 6:
            o = 'buffer_store_dwordx4 %s, v1, %s, s%d offen %s' % (vr(outb(i) + 4 * tb, 4), sr(SW, 4), sAS + tb, 'sc1')
            return [('vm', o, ('st', i)), 's_add_u32 s%d, s%d, %d' % (sAS + tb, sAS + tb, JS)]
    def epi(i):
        acc = ACC + 16 * (i & 1); ops = []
        for tb in range(2):
            R = range(4 * tb, 4 * tb + 4)
            ops += ['v_mul_f32 v%d, v%d, v%d' % (TMP + r, vC1 + tb, acc + r) for r in R]
            for r in R: ops += ['v_exp_f32 v%d, v%d' % (TMP + r, TMP + r), 'v_mul_f32 v%d, v%d, v%d' % (TMP + 8 + r, acc + r, acc + 8 + r)]
            ops += ['v_fma_f32 v%d, v%d, v%d, v%d' % (TMP + r, TMP + r, vIR + tb, vIR + tb) for r in R]
            ops += ['v_rcp_f32 v%d, v%d' % (TMP + r, TMP + r) for r in R]
            ops += ['v_mul_f32 v%d, v%d, v%d' % (TMP + r, TMP + r, TMP + 8 + r) for r in R]
            o = outb(i) + 4 * tb + 2 * (i & 1) if i < 6 else OUT + 2 * tb
            ops += ['v_cvt_pk_bf16_f32 v%d, v%d, v%d' % (o + t, TMP + 4 * tb + 2 * t, TMP + 4 * tb + 2 * t + 1) for t in range(2)]
        if i & 1: ops += store(i, 0) + store(i, 1)
        if i == 6:
            ops += ['v_permlane16_swap_b32 v%d, v%d' % (OUT + t, OUT + 2 + t) for t in range(2)]
            ops += [('vm', 'buffer_store_dwordx4 %s, v%d, %s, s99 offen sc1' % (vr(OUT, 4), vL8, sr(SW, 4)), ('st', 6))]
        return ops
    def put(o):
        if isinstance(o, tuple): a(o[1]); vm.issue(o[2])
        else: a(o)
    cost = lambda o: 2 if isinstance(o, str) and o.startswith(('v_exp', 'v_rcp', 'v_rsq', 'v_perml')) else 1
    for i in range(7):
        pend = epi(i - 1) if i else first
        total = sum(map(cost, pend)); done = 0; gap = 0
        for beta in range(16):
            f = 32 * i + 2 * beta
            lg.wait(f + 1)
            if (i and beta == 0) or (i, beta) == (6, 15): mk('b')
            if (1 <= i <= 5 and beta == 0) or (i, beta) == (6, 15): a('s_barrier')
            for mat, tb in ((0, 0), (0, 1), (1, 1), (1, 0)):
                acc = vr(ACC + 16 * (i & 1) + 8 * mat + 4 * tb, 4)
                a('v_mfma_f32_16x16x32_bf16 %s, %s, %s, %s' % (acc, vr(slot(f + mat), 4), vr(XH + 8 * beta + 4 * tb, 4), acc if beta else '0'))
                gap += 1
                if tb == mat: rd()
                lim = total * (gap - (3 if i else 0)) / (50.0 if i == 0 else OPT['espan'][i])
                while pend and done + cost(pend[0]) <= lim + 0.5:
                    done += cost(pend[0]); put(pend.pop(0))
            if (i, beta) in OPT['fb']:
                a('s_waitcnt vmcnt(0)'); vm.q = []
                a(flag(i >= 5)); vm.issue('fl')
        assert not pend
    mk('all', 'end', 'b')
    A45, HC, A2 = XH + 64, 16, 32
    SEL = XH
    ring = list(range(56, 124, 4)) + list(range(XH + 32, XH + 64, 4))
    NW = len(ring)
    OF1 = [(sPB, fpos(k)) for k in range(0, 16, NPL)]
    lg = LG(a)
    D = {'rd': 0}
    def drd():
        f = D['rd']
        if f >= 64: return
        D['rd'] += 1
        u = DU[f >> 5][(f >> 4) & 1]
        a('ds_read_b128 %s, v%d offset:%d' % (vr(ring[f % NW], 4), (1, vB1, vB2)[u >> 2], (u & 3) * U + (f & 15) * 1024))
        lg.issue(f)
    E = epi(6)
    def fB():
        vm.wait(('st', 5)); a(flag(2)); vm.issue('fl')
    for k, o in enumerate(E):
        if k - len(E) == OPT['fbp']: fB()
        put(o)
    mk('end')
    Fl = ['v_lshlrev_b32 v2, 4, v%d' % vG]
    Fl += ['ds_bpermute_b32 v%d, v2, v%d offset:%d' % (28 + r, vM, 4 * r) for r in range(4)]
    Fl += ['\n'.join(['s_set_gpr_idx_on s%d, gpr_idx(SRC0)' % sI0] + ['v_mov_b32 v%d, v%d' % (HC + i, XH + (i & 3) + 8 * (i >> 2)) for i in range(8)]
                     + ['s_set_gpr_idx_off', 's_set_gpr_idx_on s%d, gpr_idx(SRC0)' % sI1]
                     + ['v_mov_b32 v%d, v%d' % (HC + 8 + i, XH + i) for i in range(4)] + ['s_set_gpr_idx_off'])]
    Fl += ['v_lshlrev_b32 v2, 2, v%d' % vN, 'v_mov_b32 v3, s%d' % sS0, 'v_mad_i32_i24 v2, v2, s%d, v3' % sSG, 'v_mov_b32 v9, 0x3f80']
    SP = (22, 26, 30, 92)
    for db in range(4):
        if db: Fl += ['v_add_u32 v2, s%d, v2' % sSG]
        Fl += ['v_bfe_u32 v3, v2, 2, 2', 'v_cmp_eq_u32 vcc, v3, v%d' % vG, 'v_lshlrev_b32 v4, 4, v2', 'v_lshlrev_b32 v4, v4, v9',
               'v_lshrrev_b32 v3, 4, v2', 'v_bfe_u32 v5, v2, 1, 1', 'v_cndmask_b32 v4, 0, v4, vcc', 'v_lshl_or_b32 v3, v3, 1, v5']
        if db == 0: Fl += ['v_cmp_eq_u32 vcc, 8, v3']
        for h in range(2):
            Fl += ['v_cmp_eq_u32 s[%d:%d], %d, v3' % (SP[i], SP[i] + 1, 4 * h + i) for i in range(4)]
            Fl += ['v_cndmask_b32 v%d, 0, v4, s[%d:%d]' % (SEL + 8 * db + 4 * h + i, SP[i], SP[i] + 1) for i in range(4)]
        if db == 0: Fl += ['v_cndmask_b32 v124, 0, v4, vcc'] + ['v_mov_b32 v%d, 0' % (124 + i) for i in range(1, 4)]
    Fl += ['v_add_u32 v8, s98, v1']
    RM = ['v_mfma_f32_16x16x32_bf16 %s, %s, %s, v[28:31]' % (vr(A2 + 4 * db, 4), vr(HC, 4), vr(SEL + 8 * db, 4)) for db in range(4)]
    RM += ['v_mfma_f32_16x16x32_bf16 %s, %s, %s, %s' % (vr(A2 + 4 * db, 4), vr(HC + 4, 4), vr(SEL + 8 * db + 4, 4), vr(A2 + 4 * db, 4)) for db in range(4)]
    RM += ['v_mfma_f32_16x16x32_bf16 %s, %s, v[124:127], %s' % (vr(A2, 4), vr(HC + 8, 4), vr(A2, 4))]
    if stamps: a('s_waitcnt lgkmcnt(0)')
    Fl.insert(30, 's_waitcnt lgkmcnt(0)')
    Fl += RM
    ev = {}
    for key, fn in ((OPT['fbp'], fB), (OPT['fcp'], lambda: (vm.wait(('st', 6)), a(flag(3)), vm.issue('fl'))), (OPT['pbp'], lambda: poll_issue(OF1, 2))):
        if key >= 0: ev.setdefault(min(key, len(Fl)), []).append(fn)
    for k, o in enumerate(Fl + [None]):
        for fn in ev.get(k, []): fn()
        if o: a(o)
        if k > 30 and k % 3 == 0 and D['rd'] < NW - 1: drd()
    mk('end')
    poll_check(OF1, 2, 'g1')
    lg.q = []
    mk('end')
    L45 = ['buffer_load_dwordx4 %s, v1, %s, s%d offen offset:%d sc1' % (vr(A45 + 4 * j, 4), sr(SW, 4), 94 + (j >> 2), 1024 * (j & 3)) for j in range(16)]
    nb = OPT['n45']
    for j in range(nb):
        a(L45[j]); vm.issue(('a', j))
    if OPT['prio'] and nb == 16: a('s_setprio %d' % OPT['g1p'])
    mkw('end')
    for j in range(16):
        if nb + j < 16:
            a(L45[nb + j]); vm.issue(('a', nb + j))
        vm.wait(('a', j))
        for db in range(4):
            f = 4 * j + db
            if db == 0: lg.wait(f + 3)
            acc = vr(A2 + 4 * db, 4)
            a('v_mfma_f32_16x16x32_bf16 %s, %s, %s, %s' % (acc, vr(A45 + 4 * j, 4), vr(ring[f % NW], 4), acc))
            want = min(64, (NW - 1) + -(-(f + 1) * (64 - (NW - 1)) // (64 - OPT['dtail'])))
            while D['rd'] < min(want, f + NW): drd()
    mk('end')
    for db in range(4): a('ds_write_b128 v8, %s offset:%d' % (vr(A2 + 4 * db, 4), 1024 * db))
    a('s_waitcnt lgkmcnt(0)')
    a('s_barrier')
    mk('end')
    assert st.n <= 13
    st.flush(SW, sW8)
    a('s_endpgm')
    a.lines += tail.lines
    a.label('%s_end' % name)
    a('s_endpgm')
    return a.text(), descriptor(name, 256, 256), (name, 256, 512, LDS)

PAGE = '.text\n.p2align 12\n.fill %d, 4, 0xbf800000\n' % ((4096 - 0x300) // 4)
NAME = 'sequential_preLN__spectral_fnet__swiglu_ffn__prompt_kernel'

def build(path, stamps, verbose=False, extra=None, o={}, al=1, stubs=True, plain=False):
    header = ''.join(l for l in open('sequential_preLN__spectral_fnet__swiglu_ffn__prompt.s.ref') if l.startswith(';') and '@launch' not in l and 'grid=' not in l and 'Override' not in l)
    Stamps.LITE = stamps == 3
    if stamps == 3: stamps = 0
    save = dict(OPT); OPT.update(o)
    t, d, l = gen(NAME, stamps, 4 if stubs else 0)
    OPT.clear(); OPT.update(save)
    t = t.replace(NAME + '_', 'L_')
    t, nstub = align.layout(hazard.fix(t, verbose, ext=True)[0], al, ('L', 'L_ret', 4, 'L_g2') if stubs else None)
    if verbose: print('stubs', nstub)
    body, descs, launches = PAGE + t + '\n', [d], [l]
    if extra: body, descs, launches = extra(body, descs, launches)
    txt = build_file(launches, body, descs, header)
    if plain: txt = txt.replace('; @launch kernel=%s ' % NAME, '; @launch ')
    open(path, 'w').write(txt)

if __name__ == '__main__':
    build('s_dbg.s', 1, '-v' in sys.argv, o=dict(spin=20000))
    build('s.s', 0, plain=True)
    build('s_list.s', 0)
```

```python
import gens as G
for i, v in enumerate([dict(xo=1), dict(xo=0), dict(xo=2), dict(xo=0, glc1=0)]):
    G.build('v%d.s' % i, 3, o=dict(v, spin=20000))
    G.build('e%d.s' % i, 1, o=dict(v, spin=20000, st='pa'))
```

```python
import sys
from asmlib import *
import hazard, align
from gen1 import VM, LG, Stamps, fl
from gen6 import weave

WS_BYTES = 268435456
Z_OFF = 0
WP_OFF = 1 << 20
WD_OFF = WP_OFF + 112 * 32768
SF_OFF = WD_OFF + 8 * 229376
S1_OFF = SF_OFF + 32768
EP_OFF = S1_OFF + 65536 - 128
S2_OFF = S1_OFF + 65536
S3_OFF = S2_OFF + 65536
MX_OFF = S3_OFF + 131072
FLAG_OFF = MX_OFF + 32768
ACT_OFF = 8 << 20
STAMP_OFF = 128 << 20
OOB = 0x20000000
FG, FK, FL, NPL = 8448, 128, 512, 4
GRP, JS = 112 * 1024, 16384
U = 16384
CU_ = lambda c: c + 2
ZU = [0, 1, 2, 3]
WU = [(4, 7), (8, 9), (0, 1), (2, 3), (5, 6), (4, 7), (8, 9)]
DU = [(0, 1), (2, 3), (5, 6)]
PU = [4, 7, 8, 9]
OPT = dict(spin=1 << 20, prio=1, pf2=3, ep=1, wearly=0, wdl='A', nb=8, vw=8, zl=300, nlast=6, vpre=0, nf=1, xo=2, wds='pre', f2='P2a', f2e=1, p2=('P6a', 'P6'), xs=12, sxl=1, lay=1, st5=0, zfirst=1, sxn=8, rep=1, tries=35, sl0=0, fwp=0, walk2=None, epm=1, dpp=1, w1p=1, mp=0, xa=0, xc=0, xpd=2, msk=1, w2=1, xb=0, b9=None, w0e='P2', pwi='P0', fs=2, zw=0, vp='', sw=120, glc1=1, fw=2, sl1=0, sl2=0, walk='S0', l1=8, sx=1000, pbi='pre',
           wpd=8, cap_pre=10, cap_p=[6, 9, 9, 14], cap_b=[15, 15, 13, 15, 13, 100], st_o='',
           espan=[0, 58.0, 60.0, 58.0, 60.0, 58.0, 24.0], fb=((3, 15), (5, 11)), fbp=0, fcp=1000, fcj=-1, nfill=1000, n45=12, xj=0, ne=2, nep=0, nel=0, b7p=0, drop=(), dk=3, big=2, jx=16, g2p=3, pbp=85, dtail=12,
           g1p=2, pcs=(8, 9), hb='B5', npre=0, bcut=10, pw=[2, 3, 3, 3, 3, 3, 1, 1, 1, 1], ord='Z00 Z10 Z20 Z30 X30 X40')

def gen(name, stamps, nstub):
    a = Asm()
    tail = Asm()
    LDS = 163840
    SW, SX, SO, SG, SD = 8, 12, 16, 16, 16
    sW8, sW, sTAU, sSL, sT1, sPAR, sPP, sG, sGM, sA, sB, sC = 3, 20, 21, 22, 23, 24, 25, 26, 27, 28, 29, 30
    sT1G1, sGT, sDT, sCNT = 31, 32, 33, 35
    sP, sPB, sPS, sPHI, sLAM, sPHA, sPHB, sSC, sUU, sXD, sXS, sO0, sO1, sR0 = 48, 49, 36, 37, 58, 59, 60, 61, 34, 100, 101, 92, 93, 94
    sT0, sT2 = sA, sC
    sJ = sDT
    a.kernel_begin(name)
    st = Stamps(a, stamps, 0)
    def mk(*tags):
        if OPT.get('st', 'all') in tags: st.mark()
    def mkw(*tags):
        if OPT.get('st', 'all') in tags:
            st.mark()
            if stamps: a('s_waitcnt lgkmcnt(0)')
    st.mark()
    a('s_load_dwordx2 s[12:13], s[0:1], 0')
    a('s_load_dwordx2 s[6:7], s[0:1], 88')
    a('s_load_dwordx8 s[40:47], s[0:1], 48')
    a('s_cmp_ge_u32 s2, 256')
    a('s_cbranch_scc1 %s_end' % name)
    a('v_lshrrev_b32 v2, 6, v0')
    a('s_getpc_b64 s[52:53]')
    a('v_lshlrev_b32 v4, 7, v0')
    a('v_min_u32 v4, %s_g2 - %s, v4' % (name, name))
    a('v_add_co_u32 v4, vcc, s52, v4')
    a('v_mov_b32 v5, s53')
    a('v_and_b32 v0, 63, v0')
    a('v_addc_co_u32 v5, vcc, 0, v5, vcc')
    a('global_load_dword v62, v[4:5], off')
    a('v_readfirstlane_b32 s%d, v2' % sW8)
    a('v_lshlrev_b32 v1, 4, v0')
    a('s_and_b32 s%d, s2, 4' % sA)
    a('s_lshl_b32 s%d, s%d, 1' % (sA, sA))
    a('s_bfe_u32 s%d, s2, 0x30003' % sB)
    a('s_add_u32 s%d, s%d, s%d' % (sTAU, sA, sB))
    a('s_bfe_u32 s%d, s2, 0x10001' % sGT)
    a('s_sub_u32 s%d, 32, s%d' % (sA, sTAU))
    a('s_cmp_eq_u32 s%d, 0' % sTAU)
    a('s_cselect_b32 s%d, 16, s%d' % (sT1G1, sA))
    a('s_cselect_b32 s%d, 1, 3' % sUU)
    a('s_lshr_b32 s%d, s%d, 2' % (sA, sW8))
    a('s_xor_b32 s%d, s%d, s%d' % (sA, sA, sGT))
    a('s_sub_u32 s%d, 4, s%d' % (sB, sUU))
    a('s_bitcmp1_b32 s%d, 1' % sW8)
    a('s_cselect_b32 s%d, 2, s%d' % (sB, sB))
    a('s_cselect_b32 s%d, s%d, 0' % (sC, sUU))
    a('s_cmp_eq_u32 s%d, 0' % sA)
    a('s_cselect_b32 s%d, s%d, s%d' % (sA, sC, sB))
    a('s_bitcmp1_b32 s%d, 1' % sA)
    a('s_cselect_b32 s%d, s%d, s%d' % (sB, sT1G1, sTAU))
    a('s_and_b32 s%d, s%d, 1' % (sC, sA))
    a('s_lshl_b32 s%d, s%d, 5' % (sC, sC))
    a('s_add_u32 s%d, s%d, s%d' % (sB, sB, sC))
    a('s_and_b32 s%d, s%d, 1' % (sPAR, sW8))
    a('s_lshl1_add_u32 s%d, s%d, s%d' % (sA, sA, sPAR))
    a('s_lshl_b32 s%d, s%d, 11' % (sXD, sA))
    a('s_lshl_b32 s%d, s%d, 10' % (sC, sPAR))
    a('s_add_u32 s%d, s%d, s%d' % (sPS, sB, sC))
    a('s_lshl_b32 s%d, s%d, 10' % (sXS, sPS))
    a('s_and_b32 s%d, s2, 1' % sA)
    a('s_lshr_b32 s%d, s2, 6' % sB)
    a('s_lshl2_add_u32 s%d, s%d, s%d' % (sDT, sA, sB))
    a('s_and_b32 s%d, s%d, 3' % (sW, sW8))
    a('v_and_b32 v2, 15, v0')
    a('v_lshrrev_b32 v3, 4, v0')
    a('v_lshrrev_b32 v4, 3, v0')
    a('v_and_b32 v5, 7, v0')
    a('v_lshrrev_b32 v6, 1, v4')
    a('v_xor_b32 v6, v5, v6')
    a('v_lshlrev_b32 v6, 4, v6')
    a('v_lshl_add_u32 v6, v4, 16, v6')
    a('v_xor_b32 v7, 0x80040, v6')
    a('s_mov_b32 s14, 0x200000')
    a('s_mov_b32 s15, 0x20000')
    def xdma(c, q):
        return ['s_add_u32 m0, s%d, %d' % (sXD, CU_(c) * U - c * 128 + q * 1024), 's_nop 0',
                'buffer_load_dwordx4 v%d, %s, s%d offen offset:%d lds' % (6 + q, sr(SX, 4), sXS, c * 128)]
    PAR = ['s_lshl_b32 s%d, s%d, 5' % (sA, sGT), 's_add_u32 s%d, s%d, s%d' % (sP, sA, sTAU),
           's_cmp_eq_u32 s%d, 0' % sP, 's_cselect_b32 s%d, 0, 1.0' % sLAM, 's_cselect_b32 s%d, 0, %s' % (sPHB, fl(-0.25)),
           's_cmp_eq_u32 s%d, 32' % sP, 's_cselect_b32 s%d, %s, s%d' % (sPHB, fl(-0.125), sPHB), 's_cselect_b32 s%d, %s, 0' % (sPHA, fl(-0.125)),
           's_cselect_b32 s%d, %s, 0.5' % (sSC, fl(0.5 ** 1.5)), 's_cselect_b32 s%d, 48, s%d' % (sP, sP),
           's_sub_u32 s%d, 4, s%d' % (sA, sUU), 's_cmp_eq_u32 s%d, 0' % sGT, 's_cselect_b32 s%d, s%d, 0' % (sO0, sA), 's_cselect_b32 s%d, 2, s%d' % (sO1, sUU),
           's_lshl_b32 s%d, s%d, 12' % (sO0, sO0), 's_lshl_b32 s%d, s%d, 12' % (sO1, sO1), 's_add_u32 s%d, s%d, %d' % (sR0, sO0, CU_(5) * U)]
    def walk():
        if nstub:
            a('s_mov_b64 exec, 0')
            for k in range(1 if OPT['walk2'] else 0, nstub):
                a('s_cmp_eq_u32 s%d, %d' % (sW, k))
                a('s_cbranch_scc1 %s_stub%d' % (name, k))
        a.label('%s_ret' % name)
        a('s_mov_b64 exec, -1')
    def tagops(d, e): return ['s_mov_b32 s%d, 0x9e3779b1' % sA, 'v_mul_lo_u32 v%d, v%d, s%d' % (d, e, sA), 'v_add_u32 v%d, 0x7f4a7c15, v%d' % (d, d)]
    KFS = ['s_lshl3_add_u32 s%d, s%d, s%d' % (sSL, sGT, sDT), 's_lshr_b32 s%d, s%d, 1' % (sG, sW), 's_xor_b32 s%d, s%d, 1' % (sB, sG),
           's_cmp_eq_u32 s%d, 0' % sTAU, 's_cselect_b32 s%d, s%d, s%d' % (sGM, sG, sB), 's_cmp_eq_u32 s%d, 0' % sG,
           's_cselect_b32 s%d, s%d, s%d' % (sT1, sTAU, sT1G1), 's_lshl_b32 s%d, s%d, 5' % (sA, sPAR), 's_add_u32 s%d, s%d, s%d' % (sPP, sT1, sA),
           's_mov_b32 s%d, 0' % sCNT, 's_and_b32 s%d, s2, %d' % (sA, OPT['rep'] - 1), 's_lshl_b32 s%d, s%d, 11' % (sA, sA),
           's_add_u32 s6, s6, s%d' % sA, 's_addc_u32 s7, s7, 0']
    a('s_cmp_ge_u32 s%d, 4' % sW8)
    a('s_cbranch_scc1 %s_mover' % name)
    if OPT['prio']: a('s_setprio 1')
    a('v_lshrrev_b32 v18, 1, v2')
    a('v_xor_b32 v18, v3, v18')
    a('v_lshlrev_b32 v18, 4, v18')
    a('v_lshl_add_u32 v18, v2, 7, v18')
    a('s_add_u32 m0, s%d, %d' % (sXD, CU_(0) * U))
    a('v_add_u32 v18, m0, v18')
    a('v_mov_b32 v28, 0x3f803f80')
    a('s_waitcnt lgkmcnt(0)')
    mk('pa')
    a('s_and_b32 s13, s13, 0xffff')
    gapf = ['v_xor_b32 v19, 64, v18', 'v_mov_b32 v29, v28', 'v_mov_b32 v30, v28', 'v_mov_b32 v31, v28', 'v_lshlrev_b32 v17, 31, v2',
            'v_or_b32 v17, 1.0, v17', 'v_cvt_f32_u32 v10, v2', 'v_and_b32 v12, 1, v0', 'v_and_b32 v13, 2, v0', 'v_lshrrev_b32 v14, 2, v2',
            's_mov_b32 s%d, s6' % SW]
    def xburst(i, fillers, n):
        a('buffer_load_dwordx4 v%d, %s, s%d offen offset:%d lds' % (6 + (i & 1), sr(SX, 4), sXS, (i >> 1) * 128))
        if i < 15:
            a('s_addk_i32 m0, %d' % (U - 128 - 1024 if i & 1 else 1024))
            if not fillers: a('s_nop 0')
            for o in fillers[:n]: a(o)
            del fillers[:n]
    for i in range(OPT['nb']): xburst(i, gapf, 1)
    a('s_branch %s_main' % name)
    main_n0 = st.n
    a.label('%s_mover' % name)
    st.n = 1
    def pf2():
        n = 4 if OPT['pf2'] == 1 else 2
        a('s_lshr_b32 s%d, s2, 3' % sA)
        a('s_lshl%d_add_u32 s%d, s%d, s%d' % (4 // n, sA, sA, sW))
        a('s_lshl_b32 s%d, s%d, %d' % (sA, sA, 7 + n // 2))
        a('s_add_u32 s%d, s%d, %s_g2 - %s' % (sA, sA, name, name))
        a('v_lshl_add_u32 v22, v0, %d, s%d' % (1 + n // 2, sA))
        a('v_min_u32 v22, %s_end - %s - 64, v22' % (name, name))
        a('v_add_co_u32 v22, vcc, s52, v22')
        a('v_mov_b32 v23, s53')
        a('v_addc_co_u32 v23, vcc, 0, v23, vcc')
        if OPT['pf2'] < 3: a(PF2)
    PF2 = 'global_load_dword v24, v[22:23], off'
    if OPT['pf2'] == 0: pf2()
    def wgen():
        a('s_lshl_b32 s%d, s%d, 5' % (sT0, sJ))
        a('v_lshl_add_u32 v112, v2, 1, s%d' % sT0)
        a('v_mov_b32 v113, 0x100')
        a('v_cmp_eq_u32 vcc, 0, v112')
        a('s_lshl_b32 s%d, s%d, 5' % (sT0, sW))
        a('v_cndmask_b32 v113, v112, v113, vcc')
        a('v_or_b32 v112, 1, v112')
        a('v_lshl_add_u32 v114, v3, 3, s%d' % sT0)
        a('v_cvt_f32_u32 v114, v114')
        a('s_lshl_b32 s%d, s%d, 12' % (sT0, sW))
        a('v_add_u32 v117, s%d, v1' % sT0)
        for cb in range(2):
            e = (113, 112)[cb]
            a('v_cvt_f32_u32 v%d, v%d' % (e, e))
            a('v_mul_f32 v%d, %s, v%d' % (e, fl(-1 / 512), e))
            a('v_mul_f32 v115, v114, v%d' % e)
            for n in range(4):
                a('v_add_f32 v116, v115, v%d' % e)
                a('v_cos_f32 v14, v115')
                a('v_sin_f32 v16, v115')
                a('v_cos_f32 v15, v116')
                a('v_sin_f32 v17, v116')
                a('v_add_f32 v115, v116, v%d' % e)
                a('v_cvt_pk_bf16_f32 v%d, v14, v15' % (128 + 8 * cb + n))
                a('v_cvt_pk_bf16_f32 v%d, v16, v17' % (132 + 8 * cb + n))
            for part in range(2):
                a('ds_write_b128 v117, %s offset:%d' % (vr(128 + 8 * cb + 4 * part, 4), (2 * cb + part) * 1024))
    wgen()
    vm = VM(a)
    sHW, sWO1, sWO2, sST, sF2, sDEF = sW, 4, 36, 37, 95, 5
    pass
    a('s_and_b32 s%d, s2, 7' % sA)
    a('s_lshl2_add_u32 s%d, s%d, s%d' % (sWO1, sA, sHW))
    a('s_lshr_b32 s%d, s%d, 1' % (sA, sWO1))
    a('s_lshl_b32 s%d, s%d, 5' % (sA, sA))
    a('s_sub_u32 s%d, 768, s%d' % (sB, sA))
    a('s_cmp_ge_u32 s%d, 16' % sWO1)
    a('s_cselect_b32 s%d, s%d, s%d' % (sA, sB, sA))
    a('s_cselect_b32 s%d, -1, 1' % sB)
    a('v_mov_b32 v8, s%d' % sA)
    a('v_mad_i32_i24 v8, v4, s%d, v8' % sB)
    a('s_mul_i32 s50, s%d, %d' % (sB, 8 * 3584))
    a('s_movk_i32 s%d, 3584' % sC)
    a('v_lshlrev_b32 v18, 4, v5')
    a('v_mad_u32_u24 v9, v8, s%d, v18' % sC)
    a('v_cmp_eq_u32 vcc, 0x200, v8')
    a('v_subrev_u32 v8, %d, v9' % (256 * 3584))
    a('s_lshr_b32 s%d, s2, 3' % sA)
    a('s_lshl_b32 s56, s%d, 7' % sA)
    a('v_cndmask_b32 v8, v9, v8, vcc')
    a('v_add_u32 v9, s50, v9')
    a('v_add_u32 v10, s50, v9')
    a('v_add_u32 v11, s50, v10')
    a('s_cmp_ge_u32 s2, 224')
    a('s_cselect_b32 s56, %d, s56' % OOB)
    a('s_lshl_b32 s%d, s%d, 12' % (sST, sHW))
    a('s_add_u32 s%d, s%d, %d' % (sST, sST, U))
    a('s_sub_u32 s%d, 255, s2' % sA)
    a('s_lshl1_add_u32 s%d, s%d, s%d' % (sF2, sA, sPAR))
    a('s_cmp_ge_u32 s%d, 384' % sF2)
    a('s_cselect_b32 s51, 14, 7')
    a('s_cselect_b32 s54, 1, 4')
    a('s_cselect_b32 s55, 8, 4')
    a('s_cselect_b32 s%d, 56, 4' % sC)
    a('v_and_b32 v20, 1, v3')
    a('v_mul_u32_u24 v20, s55, v20')
    a('v_and_b32 v21, 2, v3')
    a('v_mad_u32_u24 v20, v21, s%d, v20' % sC)
    a('v_lshlrev_b32 v20, 10, v20')
    a('v_lshl_add_u32 v20, v2, 3, v20')
    a('s_bfe_u32 s50, s%d, 0x40003' % sF2)
    a('s_mul_i32 s50, s50, s51')
    a('s_lshr_b32 s%d, s%d, 7' % (sA, sF2))
    a('s_lshl1_add_u32 s50, s%d, s50' % sA)
    a('s_lshl_b32 s50, s50, 7')
    a('s_and_b32 s%d, s%d, 7' % (sA, sF2))
    a('s_add_u32 s50, s50, s%d' % sA)
    a('s_lshl_b32 s50, s50, 7')
    a('s_cmp_ge_u32 s%d, 448' % sF2)
    a('s_cselect_b32 s50, %d, s50' % OOB)
    a('s_lshl_b32 s54, s54, 12')
    a('s_add_u32 s51, s50, s54')
    if OPT['pf2'] in (3, 4): pf2()
    a('s_mov_b32 s%d, %d' % (SG + 2, 512 * 3584))
    a('s_mov_b32 s%d, 0x20000' % (SG + 3))
    a('s_mov_b32 s%d, 0x%x' % (SW + 2, WS_BYTES))
    a('s_mov_b32 s%d, 0x20000' % (SW + 3))
    a('s_mov_b32 s62, %d' % EP_OFF)
    a('s_waitcnt lgkmcnt(0)')
    a('s_bitcmp1_b32 s%d, 0' % sHW)
    a('s_cselect_b32 s%d, s42, s40' % SG)
    a('s_cselect_b32 s%d, s43, s41' % (SG + 1))
    a('s_and_b32 s%d, s%d, 0xffff' % (SG + 1, SG + 1))
    a('s_mov_b32 s%d, s6' % SW)
    a('s_and_b32 s%d, s7, 0xffff' % (SW + 1))
    a('s_mov_b32 m0, s%d' % sST)
    a('s_barrier')
    a('buffer_load_dword v19, off, %s, s62 sc1' % sr(SW, 4))
    if OPT['pf2'] == 3: a(PF2)
    for n in range(4):
        a('buffer_load_dwordx4 v%d, %s, s56 offen lds' % (8 + n, sr(SG, 4)))
        a('s_addk_i32 m0, 1024' if n < 3 else 's_mov_b32 s%d, s44' % SD)
        a(('s_mov_b64 s[38:39], s[46:47]', 's_and_b32 s13, s13, 0xffff', 's_nop 0', 's_and_b32 s%d, s45, 0xffff' % (SD + 1))[n])
    assert 512 * 3584 == 1792 * 1024
    WDL = ['buffer_load_dwordx2 %s, v20, %s, s%d offen offset:%d' % (vr(96 + 2 * jj, 2), sr(SD, 4), 50 + (jj >> 2), (jj & 3) * 1024) for jj in range(8)]
    late_d = OPT['wdl'] != 'A'
    if OPT['pf2'] == 4: a(PF2)
    if not late_d:
        a('s_cmp_lt_u32 s%d, 2' % sHW)
        a('s_cbranch_scc1 %s_mover2' % name)
        for o in WDL: a(o)
    a('s_branch %s_mover2' % name)
    a.label('%s_main' % name)

    st.n = main_n0
    X, W = 128, 192
    AE, AO = 64, 80
    TK, TD = 112, 120
    GQ, GS, ONE = 20, 24, 28
    P = 32
    vm = VM(a)
    vm.issue('pf')
    for i in range(16): vm.issue(('x', i >> 1))
    lg = LG(a)
    WR_ = {'n': 0}
    def wrd(n):
        for i in range(WR_['n'], min(16, WR_['n'] + n)):
            a('ds_read_b128 %s, v1 offset:%d' % (vr(W + 4 * i, 4), i * 1024)); lg.issue(('w', i >> 2))
        WR_['n'] = min(16, WR_['n'] + n)
    V = gapf + ['v_add_u32 v60, 65536, v18', 'v_add_u32 v61, 65536, v19']
    PARM = PAR + ['s_bitcmp1_b32 s%d, 1' % sW8, 's_cselect_b32 s%d, s%d, s%d' % (sPHI, sPHB, sPHA), 's_cmp_eq_u32 s%d, 0' % sP, 's_cselect_b32 s56, 0, -1']
    grp = []
    for o in PARM:
        if o.startswith('s_cselect'): grp[-1] += '\n' + o
        else: grp.append(o)
    V += grp
    V += ['v_cmp_eq_u32 s[50:51], 1, v12', 'v_cmp_eq_u32 s[52:53], 2, v13', 'v_cmp_eq_u32 s[54:55], v14, v3',
          'v_lshl_add_u32 v8, v3, 8, s%d' % sPS, 'v_cvt_f32_u32 v8, v8']
    for tb in range(2):
        V += ['v_add_f32 v11, %s, v10' % fl(16.0 * tb), 'v_mul_f32 v11, %s, v11' % fl(1 / 2048), 'v_fma_f32 v12, v11, v8, s%d' % sPHI]
        for n in range(2):
            V += ['v_fmamk_f32 v13, v11, %s, v12' % fl(128.0 * n), 'v_fmamk_f32 v14, v11, %s, v12' % fl(128.0 * n + 64),
                  'v_cos_f32 v15, v13', 'v_cos_f32 v16, v14', 'v_sin_f32 v13, v13', 'v_sin_f32 v14, v14',
                  'v_cvt_pk_f16_f32 v%d, v15, v16' % (TK + 4 * tb + n), 'v_cvt_pk_f16_f32 v%d, v13, v14' % (TK + 4 * tb + 2 + n),
                  'v_cvt_pk_f16_f32 v%d, -v13, -v14' % (TD + 4 * tb + n), 'v_and_b32 v%d, s56, v%d' % (TD + 4 * tb + 2 + n, TK + 4 * tb + n),
                  'v_and_b32 v%d, s56, v%d' % (TD + 4 * tb + n, TD + 4 * tb + n)]
    V += [
          's_lshl_b32 s%d, s%d, 6' % (sA, sW8), 's_add_u32 s%d, s%d, s%d' % (sA, sA, sR0),
          'v_lshl_add_u32 v8, v2, 2, s%d' % sA,
          'v_mul_u32_u24 v9, 80, v3',
          's_bitcmp1_b32 s%d, 0\ns_cselect_b32 s%d, s%d, s%d' % (sW8, sA, sO1, sO0), 's_lshr_b32 s%d, s%d, 1' % (sB, sW8),
          's_lshl_b32 s%d, s%d, 14' % (sC, sB), 's_add_u32 s%d, s%d, s%d' % (sA, sA, sC), 's_add_u32 s%d, s%d, %d' % (sA, sA, CU_(3) * U),
          's_lshl_b32 s%d, s%d, 2' % (sB, sB), 'v_xor_b32 v10, v3, v5', 'v_xor_b32 v10, s%d, v10' % sB, 'v_lshlrev_b32 v10, 4, v10',
          'v_lshl_add_u32 v10, v2, 7, v10', 'v_add_u32 v10, s%d, v10' % sA, 'v_xor_b32 v11, 64, v10',
          's_lshl_b32 s%d, s%d, 3' % (sA, sW8), 'v_add_u32 v12, s%d, v4' % sA, 'v_xor_b32 v13, v4, v5', 'v_lshlrev_b32 v13, 4, v13',
          'v_lshl_add_u32 v13, v12, 7, v13', 'v_add_u32 v13, %d, v13' % (CU_(3) * U), 'v_add_u32 v14, s%d, v13' % sO1, 'v_add_u32 v13, s%d, v13' % sO0,
          'v_lshlrev_b32 v12, 15, v12', 'v_lshl_add_u32 v12, v5, 4, v12',
          's_lshl4_add_u32 s%d, s%d, s%d' % (sA, sGT, sTAU), 's_lshl_b32 s%d, s%d, 7' % (sA, sA), 's_lshl_b32 s%d, s%d, 12' % (sB, sJ),
          's_add_u32 s57, s%d, s%d' % (sA, sB),
          ]
    VE = [
          's_lshr_b32 s%d, s2, 2' % sA, 's_mul_i32 s%d, s%d, %d' % (sA, sA, FG), 's_and_b32 s%d, s2, 3' % sB, 's_lshl2_add_u32 s%d, s%d, s%d' % (sB, sB, sW8),
          's_lshl_b32 s%d, s%d, 7' % (sB, sB), 's_add_u32 s%d, s%d, s%d' % (sA, sA, sB), 's_add_u32 s95, s%d, %d' % (sA, FLAG_OFF),
          'v_mov_b32 v54, 0', 'v_and_b32 v53, 31, v0', 'v_lshlrev_b32 v53, 2, v53',
          's_and_b32 s%d, s7, 0xffff' % (SW + 1), 's_mov_b32 s%d, 0x%x' % (SW + 2, WS_BYTES), 's_mov_b32 s%d, 0x20000' % (SW + 3)]
    if OPT['epm'] == 0: V[len(gapf):len(gapf)] = VE
    else: V += VE
    def epclr():
        assert VE[-1] not in T
        a('s_mov_b32 s96, %d' % EP_OFF)
        a('buffer_load_dword v55, off, %s, s96 sc1' % sr(SW, 4)); vm.issue('e')
        a('buffer_store_dword v54, v53, %s, s95 offen sc1' % sr(SW, 4)); vm.issue('e')
    assert Z_OFF == 0
    T = V
    def fill(n):
        for o in T[:n]: a(o)
        del T[:n]
    for i in range(OPT['nb'], 16): xburst(i, T, OPT['vw'])
    if OPT['epm'] == 0: epclr()
    mk('pa')
    a('s_barrier')
    wrd(4)
    fill(OPT['vpre'])
    seen = set()
    def main_mfma(ks, nf):
        q, kb = ks >> 2, ks & 3
        lg.wait(('w', kb))
        for cb in range(2):
            for part in range(2):
                r0 = AE + 8 * (q & 1) + 4 * part if cb == 0 else AO + 8 * q + 4 * part
                acc = vr(r0, 4)
                a('v_mfma_f32_16x16x32_bf16 %s, %s, %s, %s' % (acc, vr(X + 4 * ks, 4), vr(W + 16 * kb + 8 * cb + 4 * part, 4), acc if r0 in seen else '0'))
                seen.add(r0)
                fill(nf)
    def stat_mfma(ks):
        lg.wait(ks)
        f = vr(X + 4 * ks, 4)
        for G, B in ((GQ, f), (GS, vr(ONE, 4))):
            a('v_mfma_f32_16x16x32_bf16 %s, %s, %s, %s' % (vr(G, 4), f, B, vr(G, 4) if G in seen else '0'))
            seen.add(G)
            if WR_['n'] < 16: wrd(2)
            else: fill(OPT['nf'])
    def rd(c):
        if c >= 8: return
        vm.wait(('x', c))
        mk('xa')
        for ks in (2 * c, 2 * c + 1):
            a('ds_read_b128 %s, v%d offset:%d' % (vr(X + 4 * ks, 4), (18 if c < 4 else 60) + (ks & 1), (c & 3) * U)); lg.issue(ks)
    rd(0)
    mkw('pa')
    NL = OPT['nlast']
    mains = list(range(16))
    for c in range(8):
        stat_mfma(2 * c)
        if OPT['xpd'] == 1 or c == 0: rd(c + 1)
        stat_mfma(2 * c + 1)
        if c < 7:
            want = min(2 * c + 2, ((16 - NL) * (c + 1) + 6) // 7)
            if OPT['xpd'] == 3: rd(c + 2)
            while 16 - len(mains) < want: main_mfma(mains.pop(0), OPT['nf'])
            if OPT['xpd'] == 2: rd(c + 2)
    fill(len(T))
    if OPT['epm'] == 1: epclr()
    mkw('pa')
    main_mfma(mains.pop(0), 0)
    for G in (GQ, GS):
        T += ['v_cndmask_b32 v%d, v%d, v%d, s[50:51]' % (G, G, G + 1), 'v_cndmask_b32 v%d, v%d, v%d, s[50:51]' % (G + 2, G + 2, G + 3),
              'v_cndmask_b32 v%d, v%d, v%d, s[52:53]' % (G, G, G + 2)]
    T += ['v_mul_f32 v%d, %s, v%d' % (GS, fl(-1 / 512), GS), 'v_mul_f32 v%d, %s, v%d' % (GQ, fl(1 / 512), GQ),
          'v_fma_f32 v%d, -v%d, v%d, v%d' % (GQ, GS, GS, GQ), 'v_max_f32 v%d, 0, v%d' % (GQ, GQ),
          'v_add_f32 v%d, %s, v%d' % (GQ, fl(1e-5), GQ), 'v_rsq_f32 v%d, v%d' % (GQ, GQ), 's_nop 0', 'v_mul_f32 v%d, s%d, v%d' % (GQ, sSC, GQ)]
    if OPT['dpp']: BC = ['v_mov_b32_dpp v%d, v%d row_newbcast:%d row_mask:0x%x bank_mask:0xf' % (ONE + r, GQ, 4 * g + r, 1 << g) for g in range(4) for r in range(4)]
    else: BC = ['ds_bpermute_b32 v%d, v9, v%d offset:%d' % (ONE + r, GQ, 4 * r) for r in range(4)]
    SR = 48

    E1 = ['v_fmac_f32 v%d, v17, v%d' % (AO + i, AO + 12 + i) for i in range(4)]
    E1 += ['v_fma_f32 v%d, -v17, v%d, v%d' % (AO + 4 + i, AO + 8 + i, AO + 4 + i) for i in range(4)]
    E2 = ['v_sub_f32 v%d, v%d, v%d' % (AO + i, AO + i, AO + 16 + i) for i in range(8)]
    if not OPT['dpp']: E2 += ['s_waitcnt lgkmcnt(0)']
    E2 += ['v_mul_f32 v%d, v17, v%d' % (SR + i, ONE + i) for i in range(4)]
    E2 += ['v_mul_f32 v%d, v%d, v%d' % (AE + i, AE + i, ONE + (i & 3)) for i in range(8)]
    E2 += ['v_mul_f32 v%d, v%d, v%d' % (AO + i, AO + i, ONE + (i & 3)) for i in range(8)]
    T += E1[:2] + BC + E1[2:] if OPT['dpp'] else BC + E1
    assert mains[0] <= 13
    while mains:
        ks = mains.pop(0)
        if ks == 13: T += E2
        main_mfma(ks, 2)
    fill(len(T))
    a('s_mov_b64 exec, s[54:55]')
    a('ds_write2st64_b32 v8, v%d, v%d offset0:0 offset1:2' % (GQ, GS))
    a('s_mov_b64 exec, -1')
    mk('pa')
    A2, OUT = P, X
    for i in range(8): a('v_fmac_f32 v%d, v%d, v%d' % (AE + i, SR + (i & 3), AE + 8 + i))
    for n in range(4): a('v_cvt_pk_f16_f32 v%d, v%d, v%d' % (A2 + n, AE + 2 * n, AE + 2 * n + 1))
    T += ['v_fma_f32 v%d, -v%d, v%d, v%d' % (AO + i, SR + i, AO + 28 + i, AO + i) for i in range(4)]
    T += ['v_fmac_f32 v%d, v%d, v%d' % (AO + 4 + i, SR + i, AO + 24 + i) for i in range(4)]
    T += ['v_cvt_pk_f16_f32 v%d, v%d, v%d' % (A2 + 4 + n, AO + 2 * n, AO + 2 * n + 1) for n in range(4)]
    fill(2)
    for cb in range(2):
        for kind, M in enumerate((TK, TD)):
            for tb in range(2):
                a('v_mfma_f32_16x16x32_f16 %s, %s, %s, 0' % (vr(OUT + 16 * kind + 8 * tb + 4 * cb, 4), vr(A2 + 4 * cb, 4), vr(M + 4 * tb, 4)))
                fill(4)
        fill(len(T))
    for kind in range(2):
        for tb in range(2):
            o = OUT + 16 * kind + 8 * tb; d = AE + 8 * kind + 4 * tb
            for r in range(4): a('v_cvt_pk_f16_f32 v%d, v%d, v%d' % (d + r, o + r, o + 4 + r))
            a('ds_write_b128 v%d, %s offset:%d' % (10 + kind, vr(d, 4), tb * 2048))
    a('s_waitcnt lgkmcnt(0)')
    a('s_barrier')
    for w in range(4): a('ds_read_b128 %s, v%d offset:%d' % (vr(P + 4 * w, 4), 13 + (w & 1), (w >> 1) * U))
    a('s_waitcnt lgkmcnt(2)')
    for i in range(4): a('v_pk_add_f16 v%d, v%d, v%d' % (P + i, P + i, P + 4 + i))
    a('s_waitcnt lgkmcnt(0)')
    for i in range(4): a('v_pk_add_f16 v%d, v%d, v%d' % (P + 8 + i, P + 8 + i, P + 12 + i))
    for i in range(4): a('v_pk_add_f16 v%d, v%d, v%d' % (P + i, P + i, P + 8 + i))
    a('buffer_store_dwordx4 %s, v12, %s, s57 offen sc1' % (vr(P, 4), sr(SW, 4)))
    if OPT['epm'] == 2: epclr()
    mk('pa', 'all')
    main_n = st.n
    if OPT['walk'] == 'G1': walk()
    a.raw(';SETUP')
    a('s_branch %s_g1' % name)


    a.label('%s_mover2' % name)
    st.n = 1
    if OPT['mp']: a('s_setprio %d' % OPT['mp'])
    a('s_lshr_b32 s%d, s2, 3' % sA)
    a('s_lshl_b32 s%d, s%d, 7' % (sA, sA))
    a('s_add_u32 s%d, s%d, s%d' % (sWO1, sWO1, sA))
    a('s_lshl_b32 s%d, s%d, 10' % (sWO1, sWO1))
    a('s_add_u32 s%d, s%d, %d' % (sWO1, sWO1, WP_OFF))
    a('s_cmp_ge_u32 s2, 224')
    a('s_cselect_b32 s%d, %d, s%d' % (sWO1, OOB, sWO1))
    a('v_bfe_u32 v32, v0, 2, 2')
    a('v_and_b32 v33, 3, v0')
    a('v_lshlrev_b32 v32, 7, v32')
    a('v_add_u32 v32, s%d, v32' % sST)
    a('v_lshl_add_u32 v32, v33, 3, v32')
    a('v_lshl_add_u32 v32, v3, 9, v32')
    a('s_and_b32 s%d, s%d, 7' % (sA, sF2))
    a('s_mul_i32 s%d, s%d, 56' % (sA, sA))
    a('s_lshr_b32 s%d, s%d, 3' % (sB, sF2))
    a('s_add_u32 s%d, s%d, s%d' % (sA, sA, sB))
    a('s_lshl_b32 s%d, s%d, 12' % (sA, sA))
    a('s_add_u32 s%d, s%d, %d' % (sWO2, sA, WD_OFF))
    a('s_lshl_b32 s%d, s%d, 7' % (sA, sF2))
    a('s_add_u32 s%d, s%d, %d' % (sA, sA, S2_OFF))
    a('s_cmp_lt_u32 s%d, 2' % sHW)
    a('s_cselect_b32 s%d, 448, s%d' % (sF2, sF2))
    a('s_cmp_ge_u32 s%d, 448' % sF2)
    a('s_cselect_b32 s%d, %d, s%d' % (sWO2, OOB, sWO2))
    a('s_cselect_b32 s%d, %d, s%d' % (sF2, OOB, sA))
    XO = [o for c in (0, 7, 1, 6, 2, 5) for q in range(2) for o in xdma(c, q)]
    def xo(when):
        if OPT['xo'] == when:
            for o in XO: a(o)
    NX = 10 if OPT['xo'] == 0 else 0
    assert OPT['pf2'] == 3 and OPT['wds'] not in (0, 1) and not late_d
    XA, XC = OPT['xa'], OPT['xc']
    for o in XO[:3 * XA]: a(o)
    def w1_ops(nafter):
        o = ['s_waitcnt vmcnt(%d)' % nafter]
        o += ['ds_read_b64_tr_b16 %s, v32 offset:%d' % (vr(64 + 4 * f + 2 * n, 2), n * 2048 + f * 32) for f in range(4) for n in range(2)]
        for f in range(4):
            o += ['s_waitcnt lgkmcnt(%d)' % (6 - 2 * f), 'buffer_store_dwordx4 %s, v1, %s, s%d offen sc1' % (vr(64 + 4 * f, 4), sr(SW, 4), sWO1)]
            if f < 3: o += ['s_add_u32 s%d, s%d, 32768' % (sWO1, sWO1)]
        return o
    def w1_part():
        lab = name + '_w1'
        def wait(n):
            u = a.uid(lab)
            n += XA
            a('s_waitcnt vmcnt(%d)' % (n + 8))
            a('s_cmp_ge_u32 s%d, 2' % sW)
            a('s_cbranch_scc1 %s' % u)
            a('s_waitcnt vmcnt(%d)' % n)
            a.label(u)
        wait(5)
        a('s_cselect_b32 s%d, %d, %d' % (sB, 8 + XA, XA))
        for o in tagops(10, 19): a(o)
        a('s_movk_i32 s%d, %d' % (sDEF, OPT['tries']))
        a.label(lab + 'l')
        a('s_getreg_b32 s%d, hwreg(HW_REG_IB_STS, 0, 4)' % sA)
        if XA:
            a('s_getreg_b32 s%d, hwreg(HW_REG_IB_STS, 30, 2)' % sC)
            a('s_lshl4_add_u32 s%d, s%d, s%d' % (sA, sC, sA))
        a('s_cmp_le_u32 s%d, s%d' % (sA, sB) if OPT['tries'] >= 0 else 's_branch %se' % lab)
        a('s_cbranch_scc1 %sg' % lab)
        if OPT['sl0']: a('s_sleep 1')
        a('s_sub_u32 s%d, s%d, 1' % (sDEF, sDEF))
        a('s_cbranch_scc0 %sl' % lab)
        a('s_branch %se' % lab)
        a.label(lab + 'g')
        wait(0)
        for o in w1_ops(0)[1:]: a(o)
        a.label(lab + 'e')
        for o in XO[3 * XA:3 * (XA + XC)]: a(o)
    a('s_mov_b32 s52, 0x05040100')
    a('s_mov_b32 s53, 0x07060302')
    a('v_mov_b32 v41, 0')
    def w1at(p):
        if OPT['w1p'] == p:
            mkw('pa')
            w1_part()
            mk('pa')
    w1at(0)
    a('s_cmp_ge_u32 s%d, 2' % sHW)
    a('s_cbranch_scc1 %s_g2' % name)
    WDS = []
    for db in range(4):
        WDS += ['v_perm_b32 v%d, v%d, v%d, s%d' % (80 + 4 * db + t, 96 + 4 * t + 2 + (db >> 1), 96 + 4 * t + (db >> 1), 52 + (db & 1)) for t in range(4)]
        WDS += ['buffer_store_dwordx4 %s, v1, %s, s%d offen offset:%d sc1' % (vr(80 + 4 * db, 4), sr(SW, 4), sWO2, 1024 * db)]
    npf = 0
    a('v_lshlrev_b32 v47, 2, v0')
    if OPT['pf2'] == 1:
        pf2(); npf += 1
    for o in PAR: a(o)
    a('s_sub_u32 s%d, 64, s%d' % (sA, sP))
    a('s_cmp_eq_u32 s%d, 0' % sP)
    a('s_cselect_b32 s%d, 32, s%d' % (sPB, sA))
    a('s_lshl_b32 s%d, s%d, 2' % (sT0, sJ))
    a('v_add_u32 v41, s%d, v3' % sT0)
    a('v_cvt_f32_u32 v42, v41')
    a('v_mul_f32 v42, %s, v42' % fl(1 / 2048))
    for sg, (sres, sph) in enumerate(((sP, sPHA), (sPB, sPHB))):
        a('v_lshl_add_u32 v43, v2, 6, s%d' % sres)
        a('v_cvt_f32_u32 v43, v43')
        if sph: a('v_fma_f32 v43, v43, v42, s%d' % sph)
        else: a('v_mul_f32 v43, v43, v42')
        a('v_fmamk_f32 v48, v42, %s, v43' % fl(1024.0))
        a('v_cos_f32 v%d, v43' % (50 + 4 * sg))
        a('v_cos_f32 v%d, v48' % (51 + 4 * sg))
        a('v_sin_f32 v%d, v43' % (52 + 4 * sg))
        a('v_sin_f32 v%d, v48' % (53 + 4 * sg))
    a('v_lshlrev_b32 v40, 2, v2')
    a('v_add_u32 v40, s%d, v40' % sR0)
    for q in range(4): a('v_add_u32 v%d, %d, v40' % (104 + q, 64 * q))
    a('v_add_u32 v47, s%d, v47' % sR0)
    a('s_sub_u32 s%d, 4, s%d' % (sA, sUU))
    a('s_cmp_eq_u32 s%d, 0' % sGT)
    a('s_cselect_b32 s%d, 0, s%d' % (sA, sA))
    a('s_cselect_b32 s%d, s%d, 2' % (sB, sUU))
    a('s_lshl_b32 s%d, s%d, 12' % (sA, sA))
    a('s_lshl_b32 s%d, s%d, 12' % (sB, sB))
    a('v_lshrrev_b32 v36, 1, v2')
    a('v_lshlrev_b32 v36, 4, v36')
    a('v_lshl_add_u32 v36, v2, 7, v36')
    a('v_add_u32 v37, s%d, v36' % sB)
    a('v_add_u32 v36, s%d, v36' % sA)
    a('v_mov_b32 v34, s%d' % sP)
    a('v_mov_b32 v35, s%d' % sPB)
    a('v_cmp_gt_u32 vcc, 32, v0')
    a('v_and_b32 v33, 31, v0')
    a('v_lshlrev_b32 v33, 4, v33')
    a('v_cndmask_b32 v34, v35, v34, vcc')
    a('v_cndmask_b32 v38, v37, v36, vcc')
    a('v_and_b32 v39, 16, v0')
    a('v_lshl_add_u32 v38, v39, 7, v38')
    a('v_add_u32 v38, %d, v38' % (CU_(4) * U))
    a('v_lshl_add_u32 v33, v34, 9, v33')
    a('s_cmp_eq_u32 s%d, 0' % sJ)
    a('s_mov_b32 s%d, %d' % (50, MX_OFF))
    a('s_cselect_b32 s%d, s%d, %d' % (50, 50, OOB))
    a('v_lshlrev_b32 v41, 3, v3')
    if OPT['zw']: a('v_lshl_add_u32 v41, v2, 5, v41')
    a('s_lshl4_add_u32 s%d, s%d, s%d' % (sA, sGT, sTAU))
    a('s_lshl3_add_u32 s%d, s%d, s%d' % (sA, sA, sJ))
    a('s_lshl_b32 s%d, s%d, 7' % (sA, sA))
    a('s_add_u32 s%d, s%d, %d' % (51, sA, SF_OFF))
    mov_n = st.n
    def fpos(k): return (k // NPL) * FL + (k % NPL) * 4
    sPV = 40
    def poll_ops(offs, kind):
        w = 16 // len(offs)
        return ['s_load_dword%s %s, s[%d:%d], 0x%x glc' % ('x%d' % w if w > 1 else '', sr(sPV + w * j, w), b, b + 1, o + kind * FK) for j, (b, o) in enumerate(offs)]
    def poll_fold():
        o = ['s_waitcnt lgkmcnt(0)']
        for step in (2, 4, 8):
            o += ['s_and_b64 s[%d:%d], s[%d:%d], s[%d:%d]' % (k, k + 1, k, k + 1, k + step, k + step + 1) for k in range(40, 56, 2 * step)]
        return o + ['s_and_b32 s40, s40, s41']
    def poll_issue(offs, kind):
        for o in poll_ops(offs, kind): a(o if OPT['glc1'] else o.replace(' glc', ''))
    def poll_check(offs, kind, who, slow_first=(), slow_last=(), fast=()):
        lab = '%s_%s_p%d' % (name, who, kind)
        for o in poll_fold(): a(o)
        a('s_cbranch_scc0 %s_slow' % lab)
        for o in fast: a(o)
        a.label('%s_ok' % lab)
        tail.label('%s_slow' % lab)
        if (who, kind) == ('g2', 3) and OPT['st5']: tail.raw(';STUB')
        for o in slow_first: tail(o)
        tail.label('%s_spin' % lab)
        for o in poll_ops(offs, kind): tail(o)
        tail('s_add_u32 s%d, s%d, 1' % (sCNT, sCNT))
        tail('s_cmp_gt_u32 s%d, %d' % (sCNT, OPT['spin']))
        tail('s_cselect_b32 s57, 1, 0')
        for o in poll_fold(): tail(o)
        tail('s_or_b32 s40, s40, s57')
        tail('s_cbranch_scc0 %s_spin' % lab)
        for o in slow_last: tail(o)
        tail('s_branch %s_ok' % lab)

    a.label('%s_g2' % name)
    w1at(1)
    sL0, sZS, sWS, sDS, sRS, sM, sN = 92, 93, 37, 96, 97, 98, 99
    G2ACC, G2ST, G2W = 16, 80, 128
    a('s_lshl4_add_u32 s%d, s%d, s%d' % (sA, sGT, sTAU))
    a('s_and_b32 s%d, s%d, 1' % (sB, sJ))
    a('s_lshl1_add_u32 s%d, s%d, s%d' % (sA, sA, sB))
    a('s_lshl_b32 s%d, s%d, %d' % (sA, sA, OPT['l1']))
    FS = OPT['fs']
    FX = 1
    FST = 'buffer_store_dword v10, v1, %s, s%d offen sc1'
    assert FS + 2 <= OPT['l1']
    a('s_lshr_b32 s%d, s%d, 1' % (sB, sJ))
    a('s_lshl_b32 s%d, s%d, %d' % (sB, sB, FS))
    a('s_add_u32 s%d, s%d, s%d' % (sA, sB, sA))
    a('s_add_u32 s%d, s%d, %d' % (sA, sA, S1_OFF))
    a('s_cmp_eq_u32 s%d, %d' % (sW, OPT['fw']))
    a('s_cselect_b32 s57, s%d, %d' % (sA, OOB))
    def wds():
        lab = a.uid(name + '_wd')
        a('s_cmp_lt_u32 s%d, 2' % sW)
        a('s_cbranch_scc1 %s' % lab)
        for o in WDS:
            if o.startswith('v_perm'): a(o)
        a.label(lab)
        for o in WDS:
            if not o.startswith('v_perm'):
                a(o); vm.issue('wd')
    def flag2():
        assert '    ' + WDS[-1] in a.lines
        vm.wait('wd')
        a('s_mov_b64 exec, %d' % FX)
        a(FST % (sr(SW, 4), sF2)); vm.issue('f2')
        a('s_mov_b64 exec, -1')
    for o in KFS: a(o)
    a('v_min_u32 v12, 13, v0')
    a('v_lshrrev_b32 v13, 2, v12')
    a('v_and_b32 v14, 3, v12')
    a('v_lshl_add_u32 v13, v13, 4, v14')
    a('s_lshl_b32 s%d, s%d, 2' % (sA, sW))
    a('v_add_u32 v13, s%d, v13' % sA)
    a('v_lshl_add_u32 v14, v12, 2, s%d' % sW)
    a('v_cmp_gt_u32 vcc, 8, v12')
    a('s_lshl_b32 s%d, s%d, 7' % (sA, sDT))
    a('s_add_u32 s56, s%d, %d' % (sA, S2_OFF))
    a('v_cndmask_b32 v12, v14, v13, vcc')
    a('v_lshlrev_b32 v12, 10, v12')
    L3, F3 = 8, 2
    a('s_lshl_b32 s%d, s2, %d' % (sA, L3))
    a('s_lshl_b32 s%d, s%d, %d' % (sB, sW, F3))
    a('s_add_u32 s%d, s%d, s%d' % (sA, sA, sB))
    a('s_add_u32 s55, s%d, %d' % (sA, S3_OFF))
    a('s_mul_i32 s%d, s%d, 7' % (sA, sSL))
    a('s_add_u32 s%d, s%d, 6' % (sB, sA))
    a('s_lshr_b32 s%d, s%d, 2' % (sA, sA))
    a('s_lshr_b32 s%d, s%d, 2' % (sB, sB))
    a('v_add_u32 v14, s%d, v4' % sA)
    a('v_min_u32 v14, s%d, v14' % sB)
    a('v_lshlrev_b32 v14, %d, v14' % (L3 + 3))
    a('v_and_b32 v15, 4, v0')
    a('v_lshl_add_u32 v14, v15, %d, v14' % L3)
    a('v_and_b32 v15, 3, v0')
    a('v_lshl_add_u32 v14, v15, %d, v14' % F3)
    a('s_lshl_b32 s%d, s%d, %d' % (sA, sW, L3))
    a('s_add_u32 s54, s%d, %d' % (sA, S3_OFF))
    a('s_lshl_b32 s%d, s%d, 12' % (sL0, sW))
    a('s_lshl_b32 s%d, s%d, 15' % (sA, sT1))
    a('s_lshl_b32 s%d, s%d, 12' % (sB, sPAR))
    a('s_add_u32 s%d, s%d, s%d' % (sZS, sA, sB))
    a('v_and_b32 v8, 16, v0')
    a('v_lshlrev_b32 v8, 1, v8')
    a('v_xor_b32 v8, v8, v1')
    a('v_lshrrev_b32 v11, 2, v0')
    a('v_cmp_eq_u32 vcc, 1, v11')
    a('v_cmp_eq_u32 s[40:41], 0, v11')
    a('v_add_u32 v2, 1984, v8')
    a('v_add_u32 v3, 2048, v8')
    a('v_add_u32 v11, 64, v8')
    a('v_cndmask_b32 v2, v8, v2, vcc')
    a('v_cndmask_b32 v3, v3, v11, s[40:41]')
    a('s_mul_i32 s%d, s%d, %d' % (sWS, sSL, 7 * 32768))
    a('s_add_u32 s%d, s%d, s%d' % (sWS, sWS, sL0))
    a('s_mul_i32 s%d, s%d, 229376' % (sA, sDT))
    a('s_add_u32 s%d, s%d, s%d' % (sDS, sA, sL0))
    a('s_lshl_b32 s%d, s%d, 14' % (sB, sW))
    a('s_add_u32 s%d, s%d, s%d' % (sRS, sA, sB))
    a('s_lshl_b32 s%d, s%d, %d' % (sA, sPAR, OPT['l1']))
    a('s_add_u32 s94, s%d, %d' % (sA, S1_OFF))
    a('v_lshrrev_b32 v9, 1, v0')
    a('v_lshlrev_b32 v9, %d, v9' % (OPT['l1'] + 1))
    a('v_and_b32 v11, 1, v0')
    a('v_lshl_add_u32 v9, v11, %d, v9' % FS)
    assert OPT['lay']
    w1at(2)
    mk('pb')
    a('s_cmp_ge_u32 s%d, 2' % sW)
    a('s_barrier')
    a('s_cbranch_scc1 %s_g2b' % name)
    a('s_cmp_eq_u32 s%d, 0' % sW)
    a('s_cbranch_scc1 %s_h0' % name)
    a('ds_read_b32 v60, v47 offset:512')
    a('ds_read_u16 v62, v38')
    a('v_mov_b32 v61, v10')
    a('v_mov_b32 v63, v10')
    a('s_waitcnt lgkmcnt(0)')
    a('buffer_store_dwordx4 v[60:63], v33, %s, s%d offen sc1' % (sr(SW, 4), 50))
    a('s_branch %s_g2b' % name)
    a.label('%s_h0' % name)
    for q in range(4):
        a('ds_read_u16 v%d, v%d offset:%d' % (60 + q, 36 + (q >> 1), CU_(0) * U + 2048 * (q & 1)))
        a('ds_read2st64_b32 %s, v%d offset0:0 offset1:2' % (vr(96 + 2 * q, 2), 104 + q))
    a('s_waitcnt lgkmcnt(0)')
    for q in range(4):
        a('v_lshlrev_b32 v%d, 16, v%d' % (60 + q, 60 + q))
        a('v_add_f32 v%d, v%d, v%d' % (60 + q, 60 + q, 97 + 2 * q))
        a('v_mul_f32 v%d, v%d, v%d' % (60 + q, 60 + q, 96 + 2 * q))
    a('v_mul_f32 v58, v56, v62')
    a('v_mul_f32 v59, v52, v60')
    a('v_fmac_f32 v58, v57, v63')
    a('v_fmac_f32 v59, v53, v61')
    a('v_mul_f32 v58, s%d, v58' % sLAM)
    a('v_mul_f32 v59, s%d, v59' % sLAM)
    a('v_fma_f32 v58, -v50, v60, v58')
    a('v_fma_f32 v59, -v54, v62, v59')
    a('v_fma_f32 v58, -v51, v61, v58')
    a('v_fma_f32 v59, -v55, v63, v59')
    for rot in (8, 4, 2, 1):
        a('v_add_f32_dpp v58, v58, v58 row_ror:%d row_mask:0xf bank_mask:0xf' % rot)
        a('v_add_f32_dpp v59, v59, v59 row_ror:%d row_mask:0xf bank_mask:0xf' % rot)
    a('v_cvt_pk_f16_f32 v58, v58, v59')
    a('v_mov_b32 v59, v10')
    a('s_mov_b32 exec_lo, 0x%x' % (0xf000f if OPT['zw'] else 0x10001))
    a('s_mov_b32 exec_hi, 0x%x' % (0xf000f if OPT['zw'] else 0x10001))
    a('buffer_store_dwordx2 v[58:59], v41, %s, s%d offen sc1' % (sr(SW, 4), 51))
    a('s_mov_b64 exec, -1')
    a('s_branch %s_g2b' % name)
    a.raw('.p2align 12')
    a.label('%s_g2b' % name)
    if OPT['walk'] == 'Bz': walk()
    X0 = XA + XC; X1 = X0 + OPT['xb']
    for o in XO[3 * X0:3 * X1]: a(o)
    assert X1 <= 10
    mk('pa', 'all')
    a('s_mov_b64 exec, %d' % FX)
    a('s_barrier')
    a(FST % (sr(SW, 4), 57))
    a('s_mov_b64 exec, -1')
    mk('pa', 'all')
    a('s_cmp_lt_i32 s%d, 0' % sDEF)
    a('s_cbranch_scc1 %s_w1late' % name)
    a.label('%s_w1back' % name)
    if OPT['mp']: a('s_setprio 0')
    tail.label('%s_w1late' % name)
    for o in w1_ops(1 + OPT['xb']): tail(o)
    tail('s_branch %s_w1back' % name)
    for o in XO[3 * X1:3 * OPT['xs']]: a(o)
    assert OPT['wdl'] == 'A' and OPT['wds'] != 1
    if OPT['walk'] == 'S0': walk()
    PA_ = 'buffer_load_dword v11, v9, %s, s94 offen sc1' % sr(SW, 4)
    a(PA_)
    if OPT['walk'] == 'S0b': walk()
    nx2 = 12 - OPT['xs']
    sx_late = nx2 or OPT['sxl']
    assert sx_late
    if sx_late:
        for o in XO[3 * OPT['xs']:]: a(o)
        a('s_waitcnt vmcnt(%d)' % nx2)
        def flagw():
            a('s_mov_b64 exec, %d' % FX)
            a(FST % (sr(SW, 4), 55))
            a('s_mov_b64 exec, -1')
        if OPT['fwp'] == 0: flagw()
        a('s_branch %s_s1c' % name)
    else:
        a('s_waitcnt vmcnt(1)')
        a('s_barrier')
    a.label('%s_s1' % name)
    a('s_add_u32 s%d, s%d, 1' % (sCNT, sCNT))
    a('s_waitcnt vmcnt(0)')
    a.label('%s_s1c' % name)
    a('v_cmp_ne_u32 vcc, v10, v11')
    a('s_cmp_gt_u32 s%d, %d' % (sCNT, OPT['spin']))
    a('s_cbranch_scc1 %s_s1ok' % name)
    a('s_cbranch_vccz %s_s1ok' % name)
    if OPT['f2e'] and OPT['wds'] in (0, 1):
        a('s_mov_b64 exec, 1')
        a('buffer_store_dword v10, v1, %s, s%d offen sc1' % (sr(SW, 4), sF2))
        a('s_mov_b32 s%d, %d' % (sF2, OOB))
        a('s_mov_b64 exec, vcc')
    else: a('s_and_b64 exec, exec, vcc')
    if OPT['sl1']: a('s_sleep %d' % OPT['sl1'])
    a(PA_)
    a('s_branch %s_s1' % name)
    a.label('%s_s1ok' % name)
    a('s_mov_b64 exec, -1')
    mk('pa', 'all')
    vm = VM(a)
    for _ in range(nx2): vm.issue('xo')
    P2 = 'buffer_load_dword v13, v12, %s, s56 offen sc1' % sr(SW, 4)
    PB = 'buffer_load_dword v11, v9, %s, s94 offen offset:%d sc1' % (sr(SW, 4), 2 << FS)
    PW = 'buffer_load_dword v15, v14, %s, s54 offen sc1' % sr(SW, 4)
    R_OK = {'v': False}
    def vcheck(tag, ld, reg):
        assert '    ' + ld in a.lines
        vm.wait(tag)
        a('v_cmp_ne_u32 vcc, v10, v%d' % reg)
        a('s_nop 1')
        a('s_cbranch_vccnz %s_%s_slow' % (name, tag))
        a.label('%s_%s_ok' % (name, tag))
        tail.label('%s_%s_slow' % (name, tag))
        tail(ld)
        tail('s_add_u32 s%d, s%d, 1' % (sCNT, sCNT))
        tail('s_waitcnt vmcnt(0)')
        tail('v_cmp_ne_u32 vcc, v10, v%d' % reg)
        tail('s_cmp_gt_u32 s%d, %d' % (sCNT, OPT['spin']))
        tail('s_cbranch_scc1 %s_%s_ok' % (name, tag))
        tail('s_cbranch_vccnz %s_%s_slow' % (name, tag))
        tail('s_branch %s_%s_ok' % (name, tag))
    bars = ['pre'] + ['P%d' % k for k in range(0, 8, 2)] + ['B0'] + (['B9'] if OPT['b9'] else []) + ['B%d' % i for i in range(1, 6)]
    early = {('Z', 2, 0): 'P0', ('Z', 3, 0): 'P0', ('W', 0, 0): OPT['w0e'], ('W', 0, 1): OPT['w0e'], ('W', 1, 0): OPT['w0e'], ('W', 1, 1): OPT['w0e'],
             ('W', 2, 0): 'P4', ('W', 2, 1): 'P6', ('W', 3, 0): 'B0', ('W', 3, 1): 'B0', ('W', 4, 0): 'B0', ('W', 4, 1): 'B0',
             ('W', 5, 0): 'B1', ('W', 5, 1): 'B1', ('W', 6, 0): 'B2', ('W', 6, 1): 'B2',
             ('D', 0, 0): 'B3', ('D', 0, 1): 'B3', ('D', 1, 0): 'B4', ('D', 1, 1): 'B4', ('D', 2, 0): 'B5', ('D', 2, 1): 'B5'}
    items = [(c, int(i), int(h)) for c, i, h in OPT['ord'].split()]
    for i in range(7): items += [('W', i, 0), ('W', i, 1)]
    for r in range(3): items += [('D', r, 0), ('D', r, 1)]
    lq = [(it, q) for it in items for q in range(2 if it[0] == 'X' else 4)]
    rq = [(('R', s, 0), q) for s in range(8) for q in range(4)]
    need = {'P%d' % k: [('Z', k >> 1, 0)] for k in range(0, 8, 2)}
    need['P6'] += [('X', 3, 0), ('X', 4, 0)]
    need.update({'B%d' % i: [('W', i + 1, 0), ('W', i + 1, 1)] for i in range(6)})
    if OPT['b9']:
        need['B9'] = need['B0']; need['B0'] = [('W', 0, 0), ('W', 0, 1)]
    DROP = OPT['drop']
    assert not set(DROP) & {'P0', 'P2', 'B0', 'B5', 'B9'}
    for b in reversed(bars[2:]):
        if b in DROP:
            p = bars[bars.index(b) - 1]; need[p] = need[p] + need[b]; need[b] = []
    for it in early:
        while early[it] in DROP: early[it] = bars[bars.index(early[it]) + 1]
    def emit(it, q):
        k, i, h = it
        if k == 'R':
            if q == 0: a('s_add_u32 s%d, s%d, %d' % (sN, sRS, WD_OFF + ((i >> 2) * 16 + (i & 3)) * 4096))
            a('buffer_load_dwordx4 %s, v1, %s, s%d offen offset:%d sc1' % (vr(G2W + 16 * i + 4 * q, 4), sr(SW, 4), sN, 1024 * q))
        elif k == 'X':
            for o in xdma(i, q): a(o)
        elif k == 'Z':
            if q == 0: a('s_add_u32 s%d, s%d, %d' % (sM, sZS, Z_OFF + 8192 * i))
            if q != 1: a('s_add_u32 m0, s%d, %d' % (sL0, ZU[i] * U + (2048 if q == 2 else 0)))
            a('buffer_load_dwordx4 v%d, %s, s%d offen offset:%d sc1 lds' % ((2, 8, 3, 8)[q], sr(SW, 4), sM, (0, 1024, 0, 3072)[q]))
        else:
            if q == 0:
                a('s_add_u32 m0, s%d, %d' % (sL0, (WU if k == 'W' else DU)[i][h] * U))
                base, off = {'W': (sWS, WP_OFF + 32768 * i + 16384 * h), 'D': (sDS, WD_OFF + (32 + 8 * i + 4 * h) * 4096)}[k]
                a('s_add_u32 s%d, s%d, %d' % (sM, base, off))
            a('buffer_load_dwordx4 v1, %s, s%d offen offset:%d sc1 lds' % (sr(SW, 4), sM, 1024 * q))
        vm.issue(it)
    OF2 = [(58 + 2 * (j >> 1), (j & 1) * 32 * FG + fpos(k)) for j in range(4) for k in range(0, 4, min(4, NPL))]
    g2map = [G2ST, G2ST + 16, G2ST + 32, G2ST, G2W, G2ST + 16, G2W + 16, G2ST + 32]
    def g2load(s):
        if s >= 8: return []
        pre = 's_add_u32 s%d, s56, %d\n' % (sN, (s >> 2) * JS + (s & 3) * 1024)
        return [((pre if j == 0 else '') + 'buffer_load_dwordx4 %s, v%d, %s, s%d offen sc1' % (vr(g2map[s] + 4 * j, 4), 12 + j, sr(SW, 4), sN), ('act', s, j)) for j in range(4)]
    head = [x for s in range(3) for x in g2load(s)]
    cnt = {}
    for bi, b in enumerate(bars):
        if b != 'pre':
            for it in need[b]:
                assert all(x[0] != it for x in lq), (b, it)
                vm.wait(it)
            if b == 'P0': mk('pa')
            if b[0] == 'P' or b == 'B0': mk('pro')
            if b[0] == 'B': mk('b')
            if b not in DROP: a('s_barrier')
            if b in ('P0', 'B0'): mk('all')
        cap = OPT['cap_pre'] if b == 'pre' else OPT['cap_p'] if b[0] == 'P' else OPT['cap_b']
        if OPT['b9'] and b in ('B0', 'B9'): cap = OPT['b9'][1 + (b == 'B9')]
        if isinstance(cap, list): cap = cap[int(b[1]) // (2 if b[0] == 'P' else 1)]
        if b == OPT['hb']: poll_issue(OF2, 0)
        def events(pos):
            if OPT['wds'] == pos: wds()
            if OPT['f2'] == pos: flag2()
            if OPT['p2'][0] == pos:
                a(P2); vm.issue('p2')
        events(b + 'a')
        if b == 'P4':
            a('s_lshl4_add_u32 s%d, s2, s%d' % (sA, sW))
            a('s_cmp_eq_u32 s%d, 0' % sA)
            a('s_mov_b32 s%d, %d' % (sA, EP_OFF))
            a('s_cselect_b32 s%d, s%d, %d' % (sA, sA, OOB))
            a('s_mov_b64 exec, 1')
            a('buffer_store_dword v10, off, %s, s%d' % (sr(SW, 4), sA))
            a('s_mov_b64 exec, -1')
        if OPT['pwi'] == b + 'a':
            a(PW); vm.issue('pw')
        if OPT['pbi'] == b + 'a':
            a(PB); vm.issue('pb')
        nxt = need[bars[bi + 1]] if b != 'B5' else [('D', r, h) for r in range(3) for h in range(2)]
        while True:
            must = any(x[0] in nxt for x in lq) or (b == 'B5' and rq)
            if cap <= 0 and not must: break
            ok = [k for k, x in enumerate(lq) if bars.index(early.get(x[0], 'pre')) <= bi and (k == 0 or (x[0][0] == 'X' and lq[0][1] == 0))]
            if ok and lq[ok[0]] == (('Z', 2, 0), 0):
                assert b == 'P0'
                vcheck('pb', PB, 11)
            if ok and lq[ok[0]] == (('W', 0, 0), 0): vcheck('pw', PW, 15)
            if ok: emit(*lq.pop(ok[0]))
            elif rq and bi >= bars.index(OPT['p2'][1]):
                if not R_OK['v']: vcheck('p2', P2, 13)
                R_OK['v'] = True
                emit(*rq.pop(0))
            else: break
            cap -= 1; cnt[b] = cnt.get(b, 0) + 1
            if b == 'pre' and cnt[b] == OPT['fwp']:
                flagw(); vm.issue('fw')
            if b == 'pre' and sx_late and cnt[b] == OPT['sxn']:
                vm.wait('xo'); a('s_barrier')
        if b == OPT['pwi']:
            a(PW); vm.issue('pw')
        if b == OPT['pbi']:
            a(PB); vm.issue('pb')
        if b == 'pre': mk('pa')
        if b == OPT['walk']: walk()
        if b == OPT['walk2'] and nstub:
            a('s_mov_b64 exec, 0')
            a('s_cmp_eq_u32 s%d, 0' % sW)
            a('s_cbranch_scc1 %s_stub0' % name)
            a.label('%s_ret2' % name)
            a('s_mov_b64 exec, -1')
        events(b)
        if b == OPT['hb']: poll_check(OF2, 0, 'g2')
        while bi >= bars.index(OPT['hb']) and not rq and head and cap >= 4:
            for o, t in head[:4]: a(o); vm.issue(t)
            del head[:4]; cap -= 4; cnt[b] += 4
        if b == 'B2':
            assert R_OK['v']
            a('s_mul_i32 s%d, s%d, %d' % (sB, sW, fpos(4)))
            a('s_add_u32 s%d, s%d, %d' % (sB, sB, FLAG_OFF))
            for k, t in enumerate((sTAU, sT1G1)):
                a('s_mul_i32 s%d, s%d, %d' % (sA, t, FG))
                a('s_add_u32 s%d, s%d, s%d' % (sA, sA, sB))
                a('s_add_u32 s%d, s6, s%d' % (58 + 2 * k, sA))
                a('s_addc_u32 s%d, s7, 0' % (59 + 2 * k))
            a('s_add_u32 s%d, s%d, s%d' % (sA, sTAU, sT1G1))
            a('s_sub_u32 s%d, s%d, s%d' % (sA, sA, sT1))
            a('s_lshl_b32 s%d, s%d, 5' % (sB, sPAR))
            a('s_add_u32 s%d, s%d, s%d' % (sC, sA, sB))
            for k, g in enumerate((sPP, sC)):
                a('s_mul_i32 s%d, s%d, %d' % (sA, g, GRP))
                a('v_add_u32 v%d, s%d, v1' % (12 + 2 * k, sA))
                a('s_xor_b32 s%d, s%d, 32' % (sA, g))
                a('s_mul_i32 s%d, s%d, %d' % (sA, sA, GRP))
                a('v_add_u32 v%d, s%d, v1' % (13 + 2 * k, sA))
            a('s_mul_i32 s%d, s%d, %d' % (sA, sGT, GRP // 2))
            a('s_add_u32 s%d, s%d, %d' % (sA, sA, ACT_OFF))
            a('s_add_u32 s56, s%d, s%d' % (sA, sL0))
            a('s_mul_i32 s%d, s%d, %d' % (sB, sPP, GRP))
            a('s_add_u32 s%d, s%d, s%d' % (sA, sA, sB))
            a('s_add_u32 s93, s%d, %d' % (sA, 3 * JS))
            a('s_add_u32 s94, s%d, %d' % (sA, 3 * JS + 4096))
        if b == 'B4':
            assert all(x[0][0] == 'D' for x in lq)
            for k in range(4):
                a('s_xor_b32 s%d, s%d, %d' % (sA, sW, k))
                a('s_lshl_b32 s%d, s%d, 2' % (sA, sA))
                a('s_lshr_b32 s%d, 0x%x, s%d' % (sA, PU[0] | PU[1] << 4 | PU[2] << 8 | PU[3] << 12, sA))
                a('s_and_b32 s%d, s%d, 15' % (sA, sA))
                a('s_lshl_b32 s%d, s%d, 14' % (sA, sA))
                a('v_add_u32 v%d, s%d, v1' % (4 + k, sA))
            a('s_mul_i32 s%d, s%d, %d' % (sA, sPP, FG))
            a('s_add_u32 s%d, s%d, %d' % (sA, sA, FLAG_OFF))
            a('s_add_u32 s36, s6, s%d' % sA)
            a('s_addc_u32 s37, s7, 0')
            a('s_lshl_b32 s%d, s%d, 10' % (sA, sPP))
            a('s_lshl_b32 s%d, s%d, 7' % (sB, sDT))
            a('s_add_u32 s%d, s%d, s%d' % (sA, sA, sB))
            a('s_lshl_b32 s%d, s%d, 20' % (sB, sGT))
            a('s_add_u32 s34, s%d, s%d' % (sA, sB))
            a.srd(SO, 38, 2048 * 1024)
            a('v_lshrrev_b32 v9, 4, v0')
            a('v_lshlrev_b32 v9, 18, v9')
            a('v_and_b32 v10, 15, v0')
            a('v_lshl_add_u32 v9, v10, 3, v9')
            a('v_add_u32 v10, 65536, v1')
    assert not rq and not lq
    if OPT.get('show'): print(cnt, 'head left', len(head))
    def b7():
        vm.wait(('D', 2, 1))
        mk('b')
        a('s_barrier')
        mk('all', 'end')
        if OPT['prio']: a('s_setprio 1')
    if OPT['ne'] == 0: vm.wait(('D', 2, 1))
    poll_issue(OF2, 1)
    if OPT['ne'] == 0: b7()
    elif OPT['prio']: a('s_setprio %d' % OPT['nep'])
    for o, t in head: a(o); vm.issue(t)
    OF6 = [(36, fpos(k)) for k in range(0, 16, NPL)]
    A6 = G2W + 32
    L6 = [('buffer_load_dwordx4 %s, v1, %s, s%d offen offset:%d sc1' % (vr(A6 + 4 * j, 4), sr(SW, 4), 93 + (j >> 2), 1024 * (j & 3)), ('a6', j)) for j in range(8)]
    L6ops = [o for o, t in L6]
    pcs = OPT['pcs']
    def wr(k): return ['ds_write_b128 v4, %s offset:%d' % (vr(G2ACC + 16 * k + 4 * j, 4), 4096 * k + 1024 * j) for j in range(4)]
    dblk = [(4, G2ST), (5, G2W), (5, G2W + 64), (6, G2ST + 16), (6, G2W + 80), (7, G2W + 16), (7, G2W + 96), (8, G2ST + 32)]
    dreg = [b + 4 * j for s, b in dblk for j in range(4)]
    D2 = {'f': 0}
    def d2rd(s):
        f = D2['f']
        if f >= 32 or dblk[f >> 2][0] > s: return
        D2['f'] += 1
        u = DU[2][f >> 4]
        a('ds_read_b128 %s, v%d offset:%d' % (vr(dreg[f], 4), (1, 10)[u >> 2], (u & 3) * U + (f & 15) * 1024))
    for s in range(8):
        pend = []
        if 1 <= s <= 3: pend = g2load(2 * s + 1) + g2load(2 * s + 2)
        if s and s == OPT['ne']:
            assert s <= 4
            for _ in range(min(OPT['nel'], len(pend))):
                if s == 1 and len(pend) == 4: poll_check(OF2, 1, 'g2')
                o, t = pend.pop(0); a(o); vm.issue(t)
            b7()
        if s == pcs[0]: poll_issue(OF6, 3)
        if s == pcs[1]:
            poll_check(OF6, 3, 'g2'); pend = L6; L6 = []
        R = g2map[s]
        for tg in ((1, 2, 3, 0) if s == 7 else range(4)):
            vm.wait(('act', s, tg))
            if tg == 3 and s in (0, 2, 4): mk('end')
            for db in range(4):
                if pend and db % 2 == 0:
                    if s == 1 and len(pend) == 4: poll_check(OF2, 1, 'g2')
                    o, t = pend.pop(0)
                    a(o); vm.issue(t)
                acc = vr(G2ACC + 16 * tg + 4 * db, 4)
                a('v_mfma_f32_16x16x32_bf16 %s, %s, %s, %s' % (acc, vr(R + 4 * tg, 4), vr(G2W + 16 * s + 4 * db, 4), acc if s else '0'))
                if db & 1: d2rd(s)
        assert not pend
    mk('end')
    def l6():
        poll_check(OF6, 3, 'g2')
        for o, t in L6: a(o); vm.issue(t)
    if pcs[0] == 8: poll_issue(OF6, 3)
    if pcs[1] == 8: l6()
    for o in wr(1) + wr(2) + wr(3): a(o)
    while D2['f'] < 32: d2rd(8)
    if pcs[1] == 9: l6()
    a('s_waitcnt lgkmcnt(0)')
    mk('end')
    if OPT['prio']: a('s_setprio %d' % OPT['g2p'])
    F = []
    def prd(ks):
        for k in ks:
            for db in range(4): a('ds_read_b128 %s, v%d offset:%d' % (vr((G2ACC + 16 * k if k else 240) + 4 * db, 4), 4 + k, 4096 * k + 1024 * db))
    def padd(srcs):
        o = []
        for n, src in enumerate(srcs):
            o += ['s_waitcnt lgkmcnt(%d)' % (4 * (len(srcs) - 1 - n))] + ['v_add_f32 v%d, v%d, v%d' % (G2ACC + 16 + i, G2ACC + 16 + i, src + i) for i in range(16)]
        return o
    two = OPT['jx'] < 16
    if two:
        a('s_barrier')
        prd((1, 2, 3))
        for o in padd((G2ACC + 32, G2ACC + 48)): a(o)
    for j in range(9):
        if j == OPT['xj']:
            a('s_barrier')
            mkw('all', 'end')
            prd((0,) if two else (1, 2, 3, 0))
            F = padd((240,) if two else (G2ACC + 32, G2ACC + 48, 240))
            for o in F[:OPT['npre']]: a(o)
            del F[:OPT['npre']]
        if j == 8: break
        vm.wait(('a6', j))
        for db in range(4):
            acc = vr(G2ACC + 4 * db, 4)
            a('v_mfma_f32_16x16x32_bf16 %s, %s, %s, %s' % (acc, vr(A6 + 4 * j, 4), vr(dreg[4 * j + db], 4), acc))
            if j > OPT['xj'] or OPT['npre']:
                for o in F[:2]: a(o)
                del F[:2]
    for o in F: a(o)
    mk('end')
    for r in range(4):
        for db in range(4): a('v_add_f32 v%d, v%d, v%d' % (G2ACC + 4 * db + r, G2ACC + 4 * db + r, G2ACC + 16 + 4 * db + r))
        for t in range(2): a('v_cvt_pk_bf16_f32 v%d, v%d, v%d' % (64 + 2 * r + t, G2ACC + 8 * t + r, G2ACC + 8 * t + 4 + r))
        a('buffer_store_dwordx2 %s, v9, %s, s34 offen %s' % (vr(64 + 2 * r, 2), sr(SO, 4), OPT['st_o']))
        if r < 3: a('s_add_u32 s34, s34, 65536')
    mk('end')
    assert st.n <= 13
    st.flush(SW, sW8)
    a('s_endpgm')

    a.raw(';TAIL')
    a.raw('.p2align 12')
    a.label('%s_g1' % name)
    st.n = main_n
    if OPT['prio']: a('s_setprio 2')
    XH, DR, PA, CM, vDON, ACC, RG, NR = 128, 16, 24, 32, 40, 56, 88, 10
    DL, PI = XH + 112, XH + 120
    vZ, vX, vVA, vDM, vMSK = 2, 6, 8, 10, 11
    T = ACC
    vN, vG = 12, 13
    n_setup = len(a.lines)
    for o in KFS: a(o)
    a('v_and_b32 v%d, 15, v0' % vN)
    a('v_lshrrev_b32 v%d, 4, v0' % vG)
    a('v_lshlrev_b32 v%d, 3, v%d' % (T, vG))
    a('v_and_b32 v%d, 31, v0' % (46))
    a('v_lshlrev_b32 v%d, 10, v%d' % (46, 46))
    a('v_lshlrev_b32 v%d, 4, v%d' % (47, vN))
    a('s_lshr_b32 s%d, s%d, 2' % (sA, sT1))
    a('s_lshl_b32 s%d, s%d, 7' % (sA, sA))
    a('s_and_b32 s%d, s%d, 3' % (sB, sT1))
    a('s_lshl3_add_u32 s%d, s%d, s%d' % (sA, sB, sA))
    a('s_add_u32 s%d, s%d, %d' % (16, sA, SF_OFF))
    a('s_lshl_b32 s%d, s%d, 9' % (sB, sPP))
    a('s_add_u32 s%d, s%d, %d' % (17, sB, MX_OFF))
    ZC, MX, ZV = RG + 32, RG, RG + 8
    ZL = ['buffer_load_dwordx2 %s, v46, %s, s16 offen sc1' % (vr(ZV, 2), sr(SW, 4))]
    ZL += ['buffer_load_dwordx4 %s, v47, %s, s17 offen offset:%d sc1' % (vr(MX + 4 * tb, 4), sr(SW, 4), 256 * tb) for tb in range(2)]
    assert len(a.lines) - n_setup <= OPT['zl'] and OPT['sw'] <= OPT['zl']
    a('s_cmp_eq_u32 s%d, 0' % sT1)
    a('s_cselect_b32 s%d, 64, 63' % sC)
    a('v_cvt_f32_u32 v%d, v%d' % (T + 2, vG))
    a('v_add_f32 v%d, v%d, v%d' % (T + 2, T + 2, T + 2))
    a('v_cmp_eq_u32 vcc, 0, v%d' % vG)
    def dmat(D, tb, mirror):
        a('v_lshl_add_u32 v%d, v%d, 1, s%d' % (T + 3, vN, sPAR))
        if tb: a('v_add_u32 v%d, 32, v%d' % (T + 3, T + 3))
        if mirror: a('v_sub_u32 v%d, s%d, v%d' % (T + 3, sC, T + 3))
        a('v_lshlrev_b32 v%d, 30, v%d' % (T + 4, T + 3))
        a('v_cvt_f32_u32 v%d, v%d' % (T + 3, T + 3))
        a('v_and_or_b32 v%d, v%d, s34, 1.0' % (T + 4, T + 4))
        a('v_mul_f32 v%d, %s, v%d' % (T + 3, fl(1 / 64), T + 3))
        a('v_mul_f32 v%d, v%d, v%d' % (T + 5, T + 3, T + 2))
        a('v_add_f32 v%d, v%d, v%d' % (T + 6, T + 5, T + 3))
        a('v_fmamk_f32 v%d, v%d, %s, v%d' % (T + 7, T + 3, fl(8.0), T + 5))
        a('v_fmamk_f32 v%d, v%d, %s, v%d' % (T + 8, T + 3, fl(8.0), T + 6))
        for t in range(4): a('v_sin_f32 v%d, v%d' % (T + 9 + t, T + 5 + t))
        for t in range(4): a('v_cos_f32 v%d, v%d' % (T + 5 + t, T + 5 + t))
        a('v_cndmask_b32 v%d, v%d, v%d, vcc' % (T + 9, T + 9, T + 4))
        for t in range(4): a('v_cvt_pk_f16_f32 v%d, v%d, v%d' % (D + 4 * tb + t, T + 5 + t, T + 9 + t))
        for t in range(4): a('v_pk_add_f16 v%d, v%d, v%d' % ((D + 4 * tb + t,) * 3))
    a('s_brev_b32 s34, 1')
    dmat(DL, 0, 0); dmat(DL, 1, 0); dmat(DR, 0, 1); dmat(DR, 1, 1)
    a('v_mov_b32 v%d, 0x10000' % (T + 3))
    a('v_cndmask_b32 v%d, 0, v%d, vcc' % (vDM, T + 3))
    def onehot(dst, vIdx, sgn):
        a('v_lshlrev_b32 v%d, 4, v%d' % (T + 5, vIdx))
        a('v_mov_b32 v%d, 0x3f80' % (T + 6))
        a('v_lshlrev_b32 v%d, v%d, v%d' % (T + 5, T + 5, T + 6))
        a('v_ashrrev_i32 v%d, 1, v%d' % (T + 4, vIdx))
        for i in range(8): a('v_cmp_eq_u32 s[%d:%d], %d, v%d' % (40 + 2 * i, 41 + 2 * i, sgn * 8 * (i >> 2) + (i & 3), T + 4))
        for i in range(8): a('v_cndmask_b32 v%d, 0, v%d, s[%d:%d]' % (dst + i, T + 5, 40 + 2 * i, 41 + 2 * i))
    a('v_sub_u32 v%d, v%d, v%d' % (T + 3, vN, T))
    onehot(PI, T + 3, -1)
    a('v_add_u32 v%d, v%d, v%d' % (T + 3, vN, T))
    a('v_sub_u32 v%d, 32, v%d' % (T + 3, T + 3))
    onehot(PA, T + 3, 1)
    a('v_cmp_ne_u32 vcc, 0, v%d' % vN)
    a('v_lshrrev_b32 v%d, 2, v0' % (T + 3))
    a('v_lshlrev_b32 v%d, 6, v%d' % (T + 3, T + 3))
    a('v_cndmask_b32 v%d, 0, -1, vcc' % vMSK)
    a('v_and_b32 v%d, 3, v0' % (T + 4))
    a('v_lshl_add_u32 v%d, v%d, 3, v%d' % (T + 3, T + 4, T + 3))
    a('v_and_b32 v%d, 1, v%d' % (T + 4, vG))
    a('v_lshl_add_u32 v%d, v%d, 5, v%d' % (T + 3, T + 4, T + 3))
    a('s_lshl_b32 s%d, s%d, 13' % (sA, sG))
    a('v_add_u32 v%d, s%d, v%d' % (vZ, sA, T + 3))
    a('s_lshl_b32 s%d, s%d, 13' % (sA, sGM))
    a('v_add_u32 v%d, s%d, v%d' % (vZ + 2, sA, T + 3))
    a('s_mul_i32 s92, s%d, 0x80008000' % sPAR)
    a('s_or_b32 s92, s92, 0x3c003c00')
    a('s_and_b32 s%d, s%d, 1' % (sB, sC))
    a('s_mul_i32 s%d, s%d, 0x80008000' % (sB, sB))
    a('s_xor_b32 s93, s92, s%d' % sB)
    a('v_xor_b32 v%d, 32, v%d' % (vZ + 1, vZ))
    a('v_xor_b32 v%d, 32, v%d' % (vZ + 3, vZ + 2))
    a('v_lshrrev_b32 v%d, 1, v%d' % (T + 3, vN))
    a('v_xor_b32 v%d, v%d, v%d' % (T + 3, vG, T + 3))
    a('v_lshlrev_b32 v%d, 4, v%d' % (T + 3, T + 3))
    a('v_lshl_add_u32 v%d, v%d, 7, v%d' % (T + 3, vN, T + 3))
    a('s_lshl_b32 s%d, s%d, 12' % (sA, sW))
    a('s_add_u32 s%d, s%d, %d' % (sA, sA, CU_(0) * U))
    a('v_add_u32 v%d, s%d, v%d' % (vX, sA, T + 3))
    a('v_xor_b32 v%d, 64, v%d' % (vX + 1, vX))
    vXR = 44
    for t in range(2): a('v_add_u32 v%d, 65536, v%d' % (vXR + t, vX + t))
    sAS, sFO, sAL, sPB = 36, 56, 59, 60
    a('s_mul_i32 s%d, s%d, %d' % (sA, sPP, GRP))
    a('s_add_u32 s%d, s%d, %d' % (sA, sA, ACT_OFF))
    a('s_lshl_b32 s%d, s%d, 10' % (sB, sSL))
    a('s_add_u32 s%d, s%d, s%d' % (sAS, sA, sB))
    a('s_add_u32 s%d, s%d, %d' % (sAS + 1, sAS, GRP // 2))
    a('s_mul_i32 s%d, s%d, %d' % (sB, sGT, GRP // 2))
    a('s_add_u32 s%d, s%d, s%d' % (sAL, sA, sB))
    a('s_mul_i32 s%d, s%d, %d' % (sA, sPP, FG))
    a('s_add_u32 s%d, s%d, %d' % (sA, sA, FLAG_OFF))
    a('s_add_u32 s%d, s6, s%d' % (sPB, sA))
    a('s_addc_u32 s%d, s7, 0' % (sPB + 1))
    a('s_lshr_b32 s%d, s%d, %d' % (sB, sSL, NPL.bit_length() - 1))
    a('s_mul_i32 s%d, s%d, %d' % (sB, sB, FL))
    a('s_add_u32 s%d, s%d, s%d' % (sFO, sA, sB))
    a('s_and_b32 s%d, s%d, %d' % (sB, sSL, NPL - 1))
    a('s_lshl_b32 s%d, s%d, 2' % (sB, sB))
    a('s_add_u32 s%d, s%d, s%d' % (sFO, sFO, sB))
    sI0, sI1, sSG, sS0, sDU = 12, 13, 14, 15, 63
    a('s_lshl_b32 s%d, s%d, 4' % (sA, sDT))
    a('s_sub_u32 s%d, 176, s%d' % (sB, sA))
    a('s_cmp_ge_u32 s%d, 4' % sDT)
    a('s_cselect_b32 s%d, s%d, s%d' % (sA, sB, sA))
    a('s_cselect_b32 s%d, -1, 1' % sSG)
    a('s_cselect_b32 s%d, 64, 0' % sS0)
    a('s_add_u32 s%d, s%d, 16' % (sB, sA))
    a('s_cmp_eq_u32 s%d, 4' % sDT)
    a('s_cselect_b32 s%d, 64, s%d' % (sB, sB))
    a('s_lshl_b32 s%d, s%d, 2' % (sC, sGT))
    a('s_add_u32 s%d, s%d, s%d' % (sI0, sA, sC))
    a('s_add_u32 s%d, s%d, s%d' % (sI1, sB, sC))
    MK = (44, 46, 48, 50, 52, 54, 4, 18, 38)
    def mkmasks():
        a('s_lshr_b32 s%d, s%d, 2' % (sA, sS0))
        a('v_mov_b32 v%d, s%d' % (T + 12, sA))
        a('v_mad_i32_i24 v%d, v%d, s%d, v%d' % (T + 12, vN, sSG, T + 12))
        a('s_lshr_b32 s%d, s%d, 6' % (sA, sS0))
        a('v_subrev_u32 v%d, s%d, v%d' % (T + 13, sA, T + 12))
        for k in range(2): a('v_sub_u32 v%d, v%d, v%d' % (T + 12 + k, T + 12 + k, vG))
        for k in range(9): a('v_cmp_eq_u32 s[%d:%d], %d, v%d' % (MK[k], MK[k] + 1, 4 * (k & 3) if k < 8 else 16, T + 12 + (k >> 2 & 1)))
    for Q in range(4): a('s_add_u32 s%d, s%d, %d' % (94 + Q, sAL, 2 * JS + 4096 * Q))
    a('s_lshl_b32 s%d, s%d, 2' % (sA, sW))
    a('s_lshr_b32 s%d, 0x%x, s%d' % (sA, PU[0] | PU[1] << 4 | PU[2] << 8 | PU[3] << 12, sA))
    a('s_and_b32 s%d, s%d, 15' % (sA, sA))
    a('s_lshl_b32 s98, s%d, 14' % sA)
    def a6off(v, t):
        return ['v_lshrrev_b32 v%d, 1, v%d' % (v, vG), 'v_lshlrev_b32 v%d, 8, v%d' % (v, v), 'v_lshl_add_u32 v%d, v%d, 4, v%d' % (v, vN, v),
                'v_and_b32 v%d, 1, v%d' % (t, vG), 'v_mul_u32_u24 v%d, %d, v%d' % (t, GRP // 2, t), 'v_add_u32 v%d, v%d, v%d' % (v, v, t)]
    a('s_lshl_b32 s%d, s%d, 9' % (sA, sSL))
    a('s_sub_u32 s99, s%d, s%d' % (sAS, sA))
    a('s_add_u32 s99, s99, %d' % (3 * JS))
    a('v_add_u32 v14, 65536, v1')
    a('v_add_u32 v15, 131072, v1')
    for o in tagops(55, 55): a(o)
    a('s_mov_b32 s40, 0x05040100')
    a('s_mov_b32 s41, 0x07060302')
    k = min(n_setup + OPT['zl'], len(a.lines))
    a.lines[k:k] = ['    ' + o for o in ZL]
    k = n_setup + OPT['sw']
    a.lines[k:k] = ['    s_waitcnt vmcnt(0)', '    s_barrier']
    mk('pa', 'all')
    order = []
    for L in range(4): order += [2 * L, 2 * L + 1, 8 + 2 * L, 9 + 2 * L]
    def xins(n, tb, dst):
        beta = order[n]; L = n >> 2; half = beta >> 3
        return 'ds_read_b128 %s, v%d offset:%d' % (vr(dst + 4 * tb, 4), (vXR if half else vX) + ((beta & 1) ^ half), (3 - L if half else L) * U + tb * 2048)
    k = a.lines.index(';SETUP')
    if OPT['lay']:
        moved = a.lines[n_setup - 1:]; del a.lines[n_setup - 1:]
        a.lines[k:k + 1] = moved
    else: del a.lines[k]
    def sxr():
        a('s_barrier')
        for n in range(12):
            for tb in range(2): a(xins(n, tb, XH + 8 * order[n]))
    if not OPT['zfirst']: sxr()
    a.label('%s_zc' % name)
    a('s_add_u32 s%d, s%d, 1' % (sCNT, sCNT))
    a('s_waitcnt vmcnt(0)')
    for k, r in enumerate((ZV + 1, MX + 1, MX + 3, MX + 5, MX + 7)): a('v_cmp_ne_u32 s[%d:%d], v55, v%d' % (42 + 2 * k, 43 + 2 * k, r))
    a('s_cmp_gt_u32 s%d, %d' % (sCNT, OPT['spin']))
    a('s_cbranch_scc1 %s_zcok' % name)
    a('s_or_b64 s[42:43], s[42:43], s[44:45]')
    a('s_or_b64 s[46:47], s[46:47], s[48:49]')
    a('s_or_b64 s[42:43], s[42:43], s[50:51]')
    a('s_or_b64 s[42:43], s[42:43], s[46:47]')
    a('s_cbranch_scc0 %s_zcok' % name)
    if OPT['sl2']: a('s_sleep %d' % OPT['sl2'])
    for o in ZL: a(o)
    a('s_branch %s_zc' % name)
    a.label('%s_zcok' % name)
    mk('pa')
    a('v_mov_b32 v%d, v%d' % (T + 4, ZV))
    a('v_mov_b32 v%d, v%d' % (T + 5, ZV))
    a('v_permlane16_swap_b32 v%d, v%d' % (T + 4, T + 5))
    a('v_perm_b32 v%d, v%d, v%d, s40' % (T + 6, T + 5, T + 4))
    a('v_perm_b32 v%d, v%d, v%d, s41' % (T + 7, T + 5, T + 4))
    a('v_cndmask_b32 v%d, v%d, v%d, vcc' % (T + 4, T + 6, T + 4))
    a('v_cndmask_b32 v%d, v%d, v%d, vcc' % (T + 5, T + 7, T + 5))
    a('v_pk_fma_f16 v%d, v%d, s92, v%d' % (T + 4, T + 5, T + 4))
    for t in range(4): a('ds_bpermute_b32 v%d, v%d, v%d offset:%d' % (ZC + t, T, T + 4, 32 * (t >> 1) + 4 * (t & 1)))
    for tb in range(2):
        for i in range(4): a('v_mov_b32 v%d, v%d' % (CM + 4 * tb + i, MX + 4 * tb))
        a('v_mul_u32_u24 v%d, v%d, v%d' % (vDON + tb, MX + 2 + 4 * tb, vDM))
    a('s_waitcnt lgkmcnt(0)')
    for tb in range(2):
        a('v_mfma_f32_16x16x32_f16 %s, %s, %s, %s' % (vr(CM + 4 * tb, 4), vr(ZC, 4), vr(DL + 4 * tb, 4), vr(CM + 4 * tb, 4)))
    if OPT['msk']: mkmasks()
    if OPT['zfirst']:
        sxr()
        a('s_waitcnt lgkmcnt(0)')
    vm = VM(a)
    lg = LG(a)
    S = {'rd': 0}
    vB1, vB2 = 14, 15
    LO, XS, GR = (RG, RG + 8), (RG + 24, RG + 32), 48
    def hi_(n): return RG + 16 if n % 2 == 0 else XH + 56 if n < 15 else DL
    WRING = [RG + 4 * k for k in (0, 1, 4, 5, 6, 7, 2, 3, 8, 9)] + ([44, 32, 36, 40] if OPT['w2'] else [])
    def slot(f): return WRING[f % len(WRING)]
    def pbar(k):
        mk('pro')
        if 'P%d' % k not in OPT['drop']: a('s_barrier')
        if k == 0: mkw('all', 'pa')
    def zrd(n, j):
        if n >= 16: return
        beta = order[n]; L = n >> 2; half = beta >> 3; u, hi = j >> 1, j & 1
        if n % 4 == 0 and j == 0: pbar(2 * L)
        for q in range(2):
            a('ds_read_b64_tr_b16 %s, v%d offset:%d' % (vr((hi_(n) if hi else LO[n & 1]) + 4 * u + 2 * q, 2), vZ + 2 * half + u,
                                                       ZU[L] * U + (beta & 1) * 4096 + hi * 2048 + q * 1024))
            lg.issue(('z', n, u))
    def xreg(n): return XH + 8 * order[n] if n < 12 else XS[n & 1]
    def xrd(n, tb):
        if 12 <= n < 16:
            a(xins(n, tb, XS[n & 1])); lg.issue(('x', n))
    def bfly(n):
        if n >= 16: return []
        return [('lw', ('z', n, 1))] + ['v_pk_fma_f16 v%d, v%d, s%d, v%d' % (LO[n & 1] + i, hi_(n) + i, 92 + (order[n] >> 3), LO[n & 1] + i) for i in range(8)]
    def putl(o):
        if isinstance(o, str): a(o)
        else: lg.wait(o[1])
    def rd():
        g = S['rd']
        if g >= 224: return
        S['rd'] += 1
        i, j = divmod(g, 32)
        u = WU[i][j >> 4]
        a('ds_read_b128 %s, v%d offset:%d' % (vr(slot(g), 4), (1, vB1, vB2)[u >> 2], (u & 3) * U + (j & 15) * 1024)); lg.issue(g)
    def post(n):
        beta = order[n]; acc = ACC + 16 * (n & 1); ops = []
        for tb in range(2):
            if beta >= 8: ops.append('v_add_f32 v%d, v%d, v%d' % (acc + 4 * tb, acc + 4 * tb, vDON + 2 * (beta & 1) + tb))
            for u in range(2):
                for t in range(2):
                    r = acc + 8 * u + 4 * tb + 2 * t
                    ops += ['v_cvt_pk_bf16_f32 v%d, v%d, v%d' % (XH + 8 * beta + 4 * tb + 2 * u + t, r, r + 1)]
        return ops
    def gram(n, tb):
        f = vr(XH + 8 * order[n] + 4 * tb, 4); g = vr(GR + 4 * tb, 4)
        return 'v_mfma_f32_16x16x32_bf16 %s, %s, %s, %s' % (g, f, f, g if n else '0')
    for j in range(4): zrd(0, j)
    for tb in range(2): xrd(0, tb)
    for j in range(2): zrd(1, j)
    for o in bfly(0): putl(o)
    for j in range(2, 4): zrd(1, j)
    for i in range(4): a('v_and_b32 v%d, v%d, v%d' % (LO[0] + i, vMSK, LO[0] + i))
    for n in range(16):
        beta = order[n]; acc = ACC + 16 * (n & 1); half = beta >> 3
        pp_ = post(n - 1) if n else []
        cut = OPT['bcut'] if n else 0
        pend = pp_[:cut] + bfly(n + 1) + pp_[cut:]
        tot = len(pend)
        W8 = OPT['pw']
        seq = [0, 1, 'g0', 2, 3, 'g1', 4, 5, 6, 7]
        for jj, j in enumerate(seq):
            if j == 4: lg.wait(('x', n))
            if isinstance(j, str):
                if n >= 2: a(gram(n - 2, int(j[1])))
                j = -1
            elif j < 4:
                u, tb = j >> 1, j & 1
                a('v_mfma_f32_16x16x32_f16 %s, %s, %s, %s' % (vr(acc + 8 * u + 4 * tb, 4), vr(LO[n & 1] + 4 * u, 4), vr((DR if half else DL) + 4 * tb, 4), vr(CM + 4 * tb, 4)))
            else:
                tb, u = (j - 4) >> 1, j & 1
                d = vr(acc + 8 * u + 4 * tb, 4)
                a('v_mfma_f32_16x16x32_bf16 %s, %s, %s, %s' % (d, vr((PA if half else PI) + 4 * u, 4), vr(xreg(n) + 4 * tb, 4), d))
            if j == 0:
                for tb in range(2): xrd(n + 1, tb)
            if j >= 4: zrd(n + 2, j - 4)
            if n == 15 and j == 4:
                mk('b', 'pro')
                a('s_barrier')
            if n == 15 and j >= 4:
                for _ in range(2):
                    if S['rd'] < OPT['wpd'] - 2: rd()
            k = -(-tot * sum(W8[:jj + 1]) // sum(W8)) - (tot - len(pend))
            if n == 0 and jj < 4: k = 0
            for o in pend[:k]: putl(o)
            pend = pend[k:]
            if j == 7 and half and beta < 15:
                for tb in range(2): a('v_mul_u32_u24 v%d, v%d, v%d' % (vDON + 2 * ((beta + 1) & 1) + tb, xreg(n) + 4 * tb, vDM))
        assert not pend
    mk('all')
    TMP, OUT, vC1, vIR, vM, vFO, vONE, vL8 = 16, 48, 2, 4, 6, 7, 10, 11
    p15 = post(15)
    a('s_cmp_eq_u32 s%d, 0' % sGT)
    a('s_cselect_b64 s[40:41], -1, 0')
    first = ['v_cndmask_b32 v%d, v%d, v%d, s[40:41]' % (vM, CM + 4, CM), p15[0], p15[5], gram(14, 0), gram(14, 1), 'v_cmp_gt_u32 vcc, %d, v0' % OPT['rep'], 'v_lshlrev_b32 v%d, 11, v0' % vONE] + p15[1:5] + p15[6:]
    first += ['v_mov_b32 v%d, %d' % (vFO, OOB), 's_nop 0', gram(15, 0), gram(15, 1)]
    first += ['v_cndmask_b32 v%d, v%d, v%d, vcc' % (vFO, vFO, vONE), 'v_mov_b32 v%d, 1' % vONE, 'v_and_b32 v%d, 1, v0' % vC1, 'v_and_b32 v%d, 2, v0' % (vC1 + 1),
              'v_cmp_eq_u32 s[40:41], 1, v%d' % vC1, 'v_cmp_eq_u32 s[42:43], 2, v%d' % (vC1 + 1),
              'v_lshrrev_b32 v%d, 2, v%d' % (vIR, vN), 'v_lshl_add_u32 v%d, v%d, 4, v%d' % (vIR, vIR, vN), 'v_lshlrev_b32 v%d, 2, v%d' % (vIR, vIR)]
    for tb in range(2):
        G = GR + 4 * tb
        first += ['v_cndmask_b32 v%d, v%d, v%d, s[40:41]' % (G, G, G + 1), 'v_cndmask_b32 v%d, v%d, v%d, s[40:41]' % (G + 2, G + 2, G + 3),
                  'v_cndmask_b32 v%d, v%d, v%d, s[42:43]' % (G, G, G + 2), ('ds', 'ds_bpermute_b32 v%d, v%d, v%d' % (vVA + tb, vIR, G), 'bp')]
    first += a6off(vL8, vC1)
    first += ['v_mov_b32 v%d, %s' % (vC1, fl(1e-5)), ('lw', 'bp')]
    first += ['v_fmamk_f32 v%d, v%d, %s, v%d' % (vIR + tb, vVA + tb, fl(1 / 512), vC1) for tb in range(2)]
    first += ['v_rsq_f32 v%d, v%d' % (vC1 + tb, vIR + tb) for tb in range(2)]
    first += ['v_sub_f32 v%d, 0, v%d' % (vM, vM)]
    first += ['v_mul_f32 v%d, %s, v%d' % (vC1 + tb, fl(-1.4426950408889634), vC1 + tb) for tb in range(2)]
    def flag(kind): return 'buffer_store_dword v%d, v%d, %s, s%d offen offset:%d sc1' % (vONE, vFO, sr(SW, 4), sFO, kind * FK)
    def outb(i): return OUT
    def store(i, tb):
        if i < 6:
            o = 'buffer_store_dwordx4 %s, v1, %s, s%d offen %s' % (vr(outb(i) + 4 * tb, 4), sr(SW, 4), sAS + tb, 'sc1')
            return [('vm', o, ('st', i)), 's_add_u32 s%d, s%d, %d' % (sAS + tb, sAS + tb, JS)]
    def epi(i):
        acc = ACC + 16 * (i & 1); ops = []
        for tb in range(2):
            R = range(4 * tb, 4 * tb + 4)
            ops += ['v_mul_f32 v%d, v%d, v%d' % (TMP + r, vC1 + tb, acc + r) for r in R]
            for r in R: ops += ['v_exp_f32 v%d, v%d' % (TMP + r, TMP + r), 'v_mul_f32 v%d, v%d, v%d' % (TMP + 8 + r, acc + r, acc + 8 + r)]
            ops += ['v_fma_f32 v%d, v%d, v%d, v%d' % (TMP + r, TMP + r, vIR + tb, vIR + tb) for r in R]
            ops += ['v_rcp_f32 v%d, v%d' % (TMP + r, TMP + r) for r in R]
            ops += ['v_mul_f32 v%d, v%d, v%d' % (TMP + r, TMP + r, TMP + 8 + r) for r in R]
            o = outb(i) + 4 * tb + 2 * (i & 1) if i < 6 else OUT + 2 * tb
            ops += ['v_cvt_pk_bf16_f32 v%d, v%d, v%d' % (o + t, TMP + 4 * tb + 2 * t, TMP + 4 * tb + 2 * t + 1) for t in range(2)]
        if i & 1: ops += store(i, 0) + store(i, 1)
        if i == 6:
            ops += ['v_permlane16_swap_b32 v%d, v%d' % (OUT + t, OUT + 2 + t) for t in range(2)]
            ops += [('vm', 'buffer_store_dwordx4 %s, v%d, %s, s99 offen sc1' % (vr(OUT, 4), vL8, sr(SW, 4)), ('st', 6))]
        return ops
    def put(o):
        if isinstance(o, str): a(o)
        elif o[0] == 'lw': lg.wait(o[1])
        elif o[0] == 'ds': a(o[1]); lg.issue(o[2])
        else: a(o[1]); vm.issue(o[2])
    cost = lambda o: 2 if isinstance(o, str) and o.startswith(('v_exp', 'v_rcp', 'v_rsq', 'v_perml')) else 1
    for i in range(7):
        pend = epi(i - 1) if i else first
        total = sum(map(cost, pend)); done = 0; gap = 0
        for beta in range(16):
            f = 32 * i + 2 * beta
            if not OPT['w2'] or f < 8: lg.wait(f + 1)
            elif beta % 2 == 0: lg.wait(f + 3)
            if (i and beta == 0) or (i, beta) == (6, 15): mk('b')
            if (1 <= i <= 5 and beta == 0 and 'B%d' % i not in OPT['drop']) or ((i, beta) == (6, 15) and OPT['b7p'] < 0) or (OPT['b9'] and (i, beta) == (0, OPT['b9'][0])): a('s_barrier')
            for mat, tb in ((0, 0), (0, 1), (1, 1), (1, 0)):
                acc = vr(ACC + 16 * (i & 1) + 8 * mat + 4 * tb, 4)
                a('v_mfma_f32_16x16x32_bf16 %s, %s, %s, %s' % (acc, vr(slot(f + mat), 4), vr(XH + 8 * beta + 4 * tb, 4), acc if beta else '0'))
                gap += 1
                if tb == mat: rd()
                elif OPT['w2'] and i == 0 and beta in (2, 3): rd()
                lim = total * (gap - (3 if i else 0)) / (50.0 if i == 0 else OPT['espan'][i])
                while pend and done + cost(pend[0]) <= lim + 0.5:
                    done += cost(pend[0]); put(pend.pop(0))
            if (i, beta) in OPT['fb']:
                a('s_waitcnt vmcnt(0)'); vm.q = []
                a(flag(i >= 5)); vm.issue('fl')
        assert not pend
    mk('all', 'end', 'b')
    A45, HC, A2 = XH + 64, 16, 32
    SEL = XH
    ring = list(range(56, 124, 4)) + list(range(XH + 32, XH + 64, 4))
    N0 = len(ring)
    if OPT['big']:
        ring += [52]; N0 += 1
        ring += list(range(XH, XH + 32, 4)) + [124, 16, 20, 24, 48, 28]
    NW = len(ring)
    OF1 = [(sPB, fpos(k)) for k in range(0, 16, NPL)]
    lg = LG(a)
    D = {'rd': 0}
    def drd():
        f = D['rd']
        if f >= 64: return
        D['rd'] += 1
        u = DU[f >> 5][(f >> 4) & 1]
        a('ds_read_b128 %s, v%d offset:%d' % (vr(ring[f % NW], 4), (1, vB1, vB2)[u >> 2], (u & 3) * U + (f & 15) * 1024))
        lg.issue(f)
    E = epi(6)
    def fB():
        vm.wait(('st', 5)); a(flag(2)); vm.issue('fl')
    for k, o in enumerate(E):
        if k - len(E) == OPT['fbp']: fB()
        if k - len(E) == OPT['pbp']: poll_issue(OF1, 2)
        put(o)
    mk('end')
    Fl = ['v_lshlrev_b32 v2, 4, v%d' % vG]
    Fl += ['ds_bpermute_b32 v%d, v2, v%d offset:%d' % (28 + r, vM, 4 * r) for r in range(4)]
    Fl += ['\n'.join(['s_set_gpr_idx_on s%d, gpr_idx(SRC0)' % sI0] + ['v_mov_b32 v%d, v%d' % (HC + i, XH + (i & 3) + 8 * (i >> 2)) for i in range(8)]
                     + ['s_set_gpr_idx_off', 's_set_gpr_idx_on s%d, gpr_idx(SRC0)' % sI1]
                     + ['v_mov_b32 v%d, v%d' % (HC + 8 + i, XH + i) for i in range(4)] + ['s_set_gpr_idx_off'])]
    if OPT['msk']:
        Fl += ['s_cmp_eq_u32 s%d, 0\ns_cselect_b32 s%d, 1.0, 0\ns_cselect_b32 s%d, 0, 1.0' % (sS0, sA, sB),
               'v_mov_b32 v3, s%d' % sA, 'v_mov_b32 v4, s%d' % sB, 'v_mov_b32 v5, 0x3f80']
        for db in range(4):
            for k in range(4):
                m = 's[%d:%d]' % (MK[k + (4 if db else 0)], MK[k + (4 if db else 0)] + 1)
                for h in range(2):
                    d = SEL + 8 * db + 2 * k + h
                    if db & 1: Fl += ['v_cndmask_b32 v%d, 0, v%d, %s' % (d, 3 + (h ^ (db >> 1)), m)]
                    elif h == db >> 1: Fl += ['v_cndmask_b32 v%d, 0, v5, %s' % (d, m)]
                    else: Fl += ['v_mov_b32 v%d, 0' % d]
        Fl += ['v_cndmask_b32 v124, 0, v5, s[%d:%d]' % (MK[8], MK[8] + 1)] + ['v_mov_b32 v%d, 0' % (124 + i) for i in range(1, 4)]
        assert OPT['pbp'] > len(Fl) and OPT['nfill'] > len(Fl)
    else:
        Fl += ['v_lshlrev_b32 v2, 2, v%d' % vN, 'v_mov_b32 v3, s%d' % sS0, 'v_mad_i32_i24 v2, v2, s%d, v3' % sSG, 'v_mov_b32 v9, 0x3f80']
        SP = (22, 26, 30, 92)
        for db in range(4):
            if db: Fl += ['v_add_u32 v2, s%d, v2' % sSG]
            Fl += ['v_bfe_u32 v3, v2, 2, 2', 'v_cmp_eq_u32 vcc, v3, v%d' % vG, 'v_lshlrev_b32 v4, 4, v2', 'v_lshlrev_b32 v4, v4, v9',
                   'v_lshrrev_b32 v3, 4, v2', 'v_bfe_u32 v5, v2, 1, 1', 'v_cndmask_b32 v4, 0, v4, vcc', 'v_lshl_or_b32 v3, v3, 1, v5']
            if db == 0: Fl += ['v_cmp_eq_u32 vcc, 8, v3']
            for h in range(2):
                Fl += ['v_cmp_eq_u32 s[%d:%d], %d, v3' % (SP[i], SP[i] + 1, 4 * h + i) for i in range(4)]
                Fl += ['v_cndmask_b32 v%d, 0, v4, s[%d:%d]' % (SEL + 8 * db + 4 * h + i, SP[i], SP[i] + 1) for i in range(4)]
            if db == 0: Fl += ['v_cndmask_b32 v124, 0, v4, vcc'] + ['v_mov_b32 v%d, 0' % (124 + i) for i in range(1, 4)]
    Fl += ['v_add_u32 v8, s98, v1']
    RM = ['v_mfma_f32_16x16x32_bf16 %s, %s, %s, v[28:31]' % (vr(A2 + 4 * db, 4), vr(HC, 4), vr(SEL + 8 * db, 4)) for db in range(4)]
    RM += ['v_mfma_f32_16x16x32_bf16 %s, %s, %s, %s' % (vr(A2 + 4 * db, 4), vr(HC + 4, 4), vr(SEL + 8 * db + 4, 4), vr(A2 + 4 * db, 4)) for db in range(4)]
    RM += ['v_mfma_f32_16x16x32_bf16 %s, %s, v[124:127], %s' % (vr(A2, 4), vr(HC + 8, 4), vr(A2, 4))]
    if stamps: a('s_waitcnt lgkmcnt(0)')
    nf = min(OPT['nfill'], len(Fl) + len(RM) + 1)
    assert nf >= 6
    if nf > 30: Fl.insert(30, 's_waitcnt lgkmcnt(0)')
    Fl += RM
    fC = lambda: (vm.wait(('st', 6)), a(flag(3)), vm.issue('fl'))
    ev = {}
    for key, fn in ((OPT['fbp'], fB), (OPT['fcp'] if OPT['fcj'] < 0 else -1, fC), (OPT['pbp'], lambda: poll_issue(OF1, 2)), (OPT['b7p'], lambda: a('s_barrier'))):
        if key >= 0: ev.setdefault(min(key, nf), []).append(fn)
    for k, o in enumerate(Fl[:nf] + [None]):
        for fn in ev.get(k, []): fn()
        if o: a(o)
        if k > max(30, OPT['b7p']) and (k % OPT['dk'] == 0 or OPT['msk']) and D['rd'] < min(N0, NW - 1): drd()
    del Fl[:nf]
    assert not (OPT['big'] and Fl)
    if OPT['big'] == 2:
        while D['rd'] < NW - 1: drd()
    mk('end')
    poll_check(OF1, 2, 'g1', ['s_waitcnt vmcnt(0)', flag(3)] if OPT['fcj'] >= 0 else [])
    lg.q = []
    mkw('end')
    L45 = ['buffer_load_dwordx4 %s, v1, %s, s%d offen offset:%d sc1' % (vr(A45 + 4 * j, 4), sr(SW, 4), 94 + (j >> 2), 1024 * (j & 3)) for j in range(16)]
    nb = OPT['n45']
    per = -(-len(Fl) // nb)
    d0 = D['rd']
    for j in range(nb):
        a(L45[j]); vm.issue(('a', j))
        if j == OPT['fcj']: fC()
        for o in Fl[:per]: a(o)
        del Fl[:per]
        while D['rd'] < d0 + (NW - 1 - d0) * (j + 1) // nb: drd()
    assert OPT['fcj'] < nb
    if OPT['prio'] and nb == 16: a('s_setprio %d' % OPT['g1p'])
    mkw('end')
    for j in range(16):
        if j == OPT['jx']: a('s_barrier')
        if nb + j < 16:
            a(L45[nb + j]); vm.issue(('a', nb + j))
        vm.wait(('a', j))
        for db in range(4):
            f = 4 * j + db
            if db == 0: lg.wait(f + 3)
            acc = vr(A2 + 4 * db, 4)
            a('v_mfma_f32_16x16x32_bf16 %s, %s, %s, %s' % (acc, vr(A45 + 4 * j, 4), vr(ring[f % NW], 4), acc))
            want = min(64, (NW - 1) + -(-(f + 1) * (64 - (NW - 1)) // (64 - OPT['dtail'])))
            while D['rd'] < min(want, f + NW): drd()
    mk('end')
    for db in range(4): a('ds_write_b128 v8, %s offset:%d' % (vr(A2 + 4 * db, 4), 1024 * db))
    a('s_waitcnt lgkmcnt(0)')
    a('s_barrier')
    mk('end')
    assert st.n <= 13
    st.flush(SW, sW8)
    a('s_endpgm')
    k = a.lines.index(';TAIL')
    if OPT['lay']: a.lines[k:k + 1] = tail.lines
    else:
        del a.lines[k]
        a.lines += tail.lines
    a.label('%s_end' % name)
    a('s_endpgm')
    return a.text(), descriptor(name, 256, 256), (name, 256, 512, LDS)

PAGE = '.text\n.p2align 12\n.fill %d, 4, 0xbf810000\n' % ((4096 - 0x300) // 4)
NAME = 'sequential_preLN__spectral_fnet__swiglu_ffn__prompt_kernel'

def jitter(t, seed, bits, amount):
    out = []; n = 0
    for l in t.split('\n'):
        x = l.strip()
        if x.startswith('v_readfirstlane_b32 s3,'):
            out += [l, '    s_memtime s[88:89]', '    s_waitcnt lgkmcnt(0)', '    s_lshl4_add_u32 s90, s2, s3', '    s_mul_i32 s90, s90, 0x%x' % (seed * 2 + 0x9e3779b1 & 0xffffffff),
                    '    s_xor_b32 s90, s90, s88']
            continue
        if x.startswith('s_barrier') or (x.startswith('buffer_store') and 'sc1' in x) or (x.startswith('s_load') and 'glc' in x and 's[40:43]' in x):
            n += 1
            out += ['    s_cselect_b32 s91, 1, 0', '    s_mul_i32 s90, s90, 1664525', '    s_add_u32 s90, s90, 1013904223', '    s_lshr_b32 s89, s90, %d' % (32 - bits),
                    '    s_cbranch_scc1 L_jit%d' % n, '    s_sleep %d' % amount, 'L_jit%d:' % n, '    s_cmp_eq_u32 s91, 1']
        out.append(l)
    return '\n'.join(out)

def build(path, stamps, verbose=False, extra=None, o={}, al=1, stubs=True, plain=False, jit=None):
    header = ''.join(l for l in open('ref_stub.txt') if l.startswith(';') and '@launch' not in l and 'grid=' not in l and 'Override' not in l)
    Stamps.LITE = stamps == 3
    if stamps == 3: stamps = 0
    save = dict(OPT); OPT.update(o)
    try: t, d, l = gen(NAME, stamps, 4 if stubs else 0)
    except AssertionError:
        OPT.clear(); OPT.update(save); raise
    first = 'L_g2b' if OPT['lay'] else 'L_g1'
    w2_ = OPT['walk2']
    OPT.clear(); OPT.update(save)
    t = t.replace(NAME + '_', 'L_')
    if jit: t = jitter(t, *jit)
    t, nstub = align.layout(hazard.fix(t, verbose, ext=True)[0], al, ('L', 'L_ret', 4, first) if stubs else None)
    if w2_ and stubs:
        assert nstub == 4
        t = t.replace('L_stub0:\n    s_cbranch_execz L_ret', 'L_stub0:\n    s_cbranch_execz L_ret2')
    t = t.replace('.p2align 12', '.p2alignl 12, 0xbf810000')
    if verbose: print('stubs', nstub)
    body, descs, launches = PAGE + t + '\n', [d], [l]
    if extra: body, descs, launches = extra(body, descs, launches)
    txt = build_file(launches, body, descs, header)
    if plain: txt = txt.replace('; @launch kernel=%s ' % NAME, '; @launch ')
    open(path, 'w').write(txt)

if __name__ == '__main__':
    build('s_dbg.s', 1, '-v' in sys.argv, o=dict(spin=20000))
    build('s.s', 0, plain=True)
    build('s_list.s', 0)
```
